```python
import torch

def _softmax(x, axis=-1):
    return torch.softmax(x, dim=axis)
def _gelu(x):
    return torch.nn.functional.gelu(x, approximate="tanh")
def _silu(x):
    return torch.nn.functional.silu(x)
def _sigmoid(x):
    return torch.sigmoid(x)
def _layernorm(x, axis=-1, eps=1e-5):
    m = x.mean(dim=axis, keepdim=True)
    v = x.var(dim=axis, keepdim=True, unbiased=False)
    return (x - m) / torch.sqrt(v + eps)
def _scatter_add(tgt, idx, src, axis=0):
    return tgt.clone().index_add_(axis, idx, src)
def _segment_sum(src, seg, n):
    out = torch.zeros((n,) + src.shape[1:], dtype=src.dtype)
    return out.index_add_(0, seg, src)
def _pad(x, pw):
    flat = tuple(v for pair in reversed(pw) for v in pair)
    return torch.nn.functional.pad(x, flat)

kernel_name = 'gated_mix__sliding_block__dense_activation_relu__prompt'

def setup_inputs():

    _w = (lambda a: (lambda t: t.to(torch.bfloat16) if t.is_floating_point() else t)(torch.as_tensor(a)))
    def _A_setup():
        B, S, D = 1, 2048, 512
        return {
            "x": _w((lambda *s: torch.randn(*s, dtype=torch.bfloat16) * 0.05)(B, S, D)),
            "wqkv": _w((lambda *s: torch.randn(*s, dtype=torch.bfloat16) * 0.8)(D, 3 * D)),
            "wo": _w((lambda *s: torch.randn(*s, dtype=torch.bfloat16) * 0.05)(D, D)),
        }
    _A_in = _A_setup()

    def _B_setup():
        B, S, D, Dff = 1, 2048, 512, 1376
        return {
            "x": _w((lambda *s: torch.randn(*s, dtype=torch.bfloat16) * 0.05)(B, S, D)),
            "w1": _w((lambda *s: torch.randn(*s, dtype=torch.bfloat16) * 0.05)(D, Dff)),
            "w2": _w((lambda *s: torch.randn(*s, dtype=torch.bfloat16) * 0.05)(Dff, D)),
        }
    _B_in = _B_setup()

    return {
        "A_x": _A_in["x"],
        "A_wqkv": _A_in["wqkv"],
        "A_wo": _A_in["wo"],
        "B_x": _B_in["x"],
        "B_w1": _B_in["w1"],
        "B_w2": _B_in["w2"],
        "gate_w": _w((lambda *s: torch.randn(*s, dtype=torch.bfloat16) * 0.05)(512) * 16.0),
    }

def reference(A_x, A_wqkv, A_wo, B_x, B_w1, B_w2, gate_w):
    def _A_ref(x, wqkv, wo):
        B, S, D = x.shape
        H = 32; Dh = D // H; W = 256
        qkv = (lambda x, *d: x.permute(*d))((x @ wqkv).reshape(B, S, 3, H, Dh), 2, 0, 3, 1, 4)
        q, k, v = qkv[0], qkv[1], qkv[2]
        scores = torch.einsum("bhqd,bhkd->bhqk", q, k) * (Dh ** -0.5)
        idx = torch.arange(S)
        mask = (idx[:, None] - idx[None, :] >= 0) & (idx[:, None] - idx[None, :] < W)
        scores = torch.where(mask[None, None], scores, -1e9)
        p = _softmax(scores, axis=-1)
        o = torch.einsum("bhqk,bhkd->bhqd", p, v)
        return (lambda x, *d: x.permute(*d))(o, 0, 2, 1, 3).reshape(B, S, D) @ wo

    def _B_ref(x, w1, w2):
        h = torch.einsum("bsd,df->bsf", x, w1)
        zero = torch.zeros_like(h)
        h = torch.maximum(h, zero)
        return torch.einsum("bsf,fd->bsd", h, w2)

    x = A_x
    g = _sigmoid((x * gate_w).sum(-1, keepdims=True))
    a = _A_ref(x, A_wqkv, A_wo)
    b = _B_ref(x, B_w1, B_w2)
    return g * a + (1 - g) * b
```

```python
class Asm:
    def __init__(self):
        self.lines = []
        self.uid = 0
    def __call__(self, s):
        for l in s.strip("\n").split("\n"):
            self.lines.append("    " + l.strip())
    def label(self, name):
        self.lines.append(name + ":")
    def newlabel(self, base="L"):
        self.uid += 1
        return f".{base}_{self.uid}"
    def comment(self, s):
        self.lines.append("    ; " + s)
    def text(self):
        return "\n".join(self.lines) + "\n"

def vr(a, n=1):
    return f"v{a}" if n == 1 else f"v[{a}:{a+n-1}]"
def sr(a, n=1):
    return f"s{a}" if n == 1 else f"s[{a}:{a+n-1}]"
def ar(a, n=1):
    return f"a{a}" if n == 1 else f"a[{a}:{a+n-1}]"

def kernel_wrap(name, body, vgpr, sgpr=96, accum=None):
    if accum is None:
        accum = (vgpr + 3) // 4 * 4
    return f""".text
.globl {name}
.p2align 8
.type {name},@function
{name}:
{body}    s_endpgm
.section .rodata,"a"
.p2align 6
.amdhsa_kernel {name}
  .amdhsa_next_free_vgpr {vgpr}
  .amdhsa_next_free_sgpr {sgpr}
  .amdhsa_accum_offset {accum}
  .amdhsa_group_segment_fixed_size 0
  .amdhsa_kernarg_size 80
  .amdhsa_user_sgpr_count 2
  .amdhsa_user_sgpr_kernarg_segment_ptr 1
  .amdhsa_system_sgpr_workgroup_id_x 1
.end_amdhsa_kernel
"""

def srd(a, dst, base_lo, nbytes, off=0):
    if off:
        a(f"s_add_u32 s{dst}, s{base_lo}, {off}")
        a(f"s_addc_u32 s{dst+1}, s{base_lo+1}, 0")
    else:
        a(f"s_mov_b32 s{dst}, s{base_lo}")
        a(f"s_mov_b32 s{dst+1}, s{base_lo+1}")
    a(f"s_mov_b32 s{dst+2}, {nbytes}")
    a(f"s_mov_b32 s{dst+3}, 0x00020000")
```

```python
import sys
from asmlib import *

QF, KF, VF = 0x000000, 0x200000, 0x400000
AF = 0x600000
WF = 0xE00000
GOFF = 0x1000000
WSBYTES = 0x1100000
CSCALE = 0x3EB8AA3B
NINF = 0xFF800000

def load_ptrs(a):
    a("s_load_dwordx16 s[16:31], s[0:1], 0")
    a("s_load_dwordx4 s[32:35], s[0:1], 64")

STAGE = 40960
def gen_k1():
    a = Asm()
    a("s_cmp_ge_u32 s2, 256")
    a("s_cbranch_scc1 .Lk1_end")
    load_ptrs(a)
    a("v_lshrrev_b32 v1, 6, v0")
    a("v_and_b32 v0, 63, v0")
    a("v_readfirstlane_b32 s3, v1")
    a("s_and_b32 s4, s2, 7")
    a("s_lshr_b32 s5, s2, 3")
    a("s_and_b32 s6, s5, 15")
    a("s_lshr_b32 s7, s5, 4")
    a("s_waitcnt lgkmcnt(0)")
    srd(a, 36, 16, 2048*1024)
    srd(a, 44, 34, WSBYTES)
    a("s_cmp_eq_u32 s7, 0")
    a("s_cselect_b32 s40, s18, s24")
    a("s_cselect_b32 s41, s19, s25")
    a(f"s_mov_b32 s42, {512*3072}")
    a(f"s_cselect_b32 s42, s42, {512*2752}")
    a("s_mov_b32 s43, 0x00020000")
    a("s_mov_b32 s8, 3072")
    a("s_cselect_b32 s8, s8, 2752")
    a("s_cselect_b32 s9, 512, 64")
    a("s_cselect_b32 s10, 64, 192")
    a("s_mul_i32 s10, s10, s4")
    a("s_cmp_ge_u32 s3, 4")
    a("s_cbranch_scc1 .Lk1_loader")

    ACC = 0; XF = 96; WFR = 112; XA = 136; WA = 140; XB = 141; WB = 145; TMP = 146
    L = 150
    a(f"v_mov_b32 v{L}, v0")
    a("s_lshr_b32 s11, s3, 1")
    a("s_and_b32 s12, s3, 1")
    a(f"v_and_b32 v{TMP}, 31, v{L}")
    a(f"v_lshrrev_b32 v{TMP+1}, 5, v{L}")
    a(f"v_bfe_u32 v{TMP+2}, v{L}, 1, 3")
    a("s_lshl_b32 s13, s11, 13")
    for sp in range(4):
        a(f"v_add_u32 v{TMP+3}, {2*sp}, v{TMP+1}")
        a(f"v_xor_b32 v{TMP+3}, v{TMP+3}, v{TMP+2}")
        a(f"v_lshlrev_b32 v{TMP+3}, 4, v{TMP+3}")
        a(f"v_lshl_add_u32 v{TMP+3}, v{TMP}, 7, v{TMP+3}")
        a(f"v_add_u32 v{XB+sp}, s13, v{TMP+3}")
    a(f"v_mul_u32_u24 v{WB}, 3072, v{TMP+1}")
    a(f"v_bfe_u32 v{TMP+3}, v{L}, 2, 2")
    a(f"v_lshl_add_u32 v{WB}, v{TMP+3}, 6, v{WB}")
    a(f"v_bfe_u32 v{TMP+3}, v{L}, 4, 1")
    a(f"v_lshl_add_u32 v{WB}, v{TMP+3}, 5, v{WB}")
    a(f"v_and_b32 v{TMP+3}, 3, v{L}")
    a(f"v_lshl_add_u32 v{WB}, v{TMP+3}, 3, v{WB}")
    a("s_lshl_b32 s13, s12, 8")
    a("s_add_u32 s13, s13, 16384")
    a(f"v_add_u32 v{WB}, s13, v{WB}")
    for i in range(96):
        a(f"v_mov_b32 v{ACC+i}, 0")
    for sp in range(4):
        a(f"v_mov_b32 v{XA+sp}, v{XB+sp}")
    a(f"v_mov_b32 v{WA}, v{WB}")
    a("s_mov_b32 s14, 0")
    a("s_mov_b32 s15, 0")

    def reads(buf, sp, ntiles):
        r = []
        for rt in range(2):
            r.append(f"ds_read_b128 {vr(XF+buf*8+rt*4,4)}, v{XA+sp} offset:{rt*4096}")
        for t in range(ntiles):
            for rd in range(2):
                r.append(f"ds_read_b64_tr_b16 {vr(WFR+buf*12+t*4+rd*2,2)}, v{WA} offset:{(4*sp+rd)*1536+t*512}")
        return r
    def mfmas(buf, kinds):
        m = []
        for t, kd in enumerate(kinds):
            for rt in range(2):
                acc = vr(ACC+(t*2+rt)*16, 16)
                x = vr(XF+buf*8+rt*4, 4); w = vr(WFR+buf*12+t*4, 4)
                if kd == 'T': m.append(f"v_mfma_f32_32x32x16_bf16 {acc}, {w}, {x}, {acc}")
                else:         m.append(f"v_mfma_f32_32x32x16_bf16 {acc}, {x}, {w}, {acc}")
        return m
    def interleave(m, r):
        out = []
        per = -(-len(r) // len(m))
        ri = 0
        for mm in m:
            out.append(mm)
            for _ in range(per):
                if ri < len(r): out.append(r[ri]); ri += 1
        return out
    def mainloop(name, kinds):
        nt = len(kinds); nr = 2 + 2*nt
        a("s_barrier")
        for l in reads(0, 0, nt): a(l)
        a.label(f".L{name}_loop")
        for sp in range(3):
            a("s_waitcnt lgkmcnt(0)")
            for l in interleave(mfmas(sp & 1, kinds), reads((sp+1) & 1, sp+1, nt)): a(l)
        a("s_waitcnt lgkmcnt(0)")
        a("s_add_u32 s15, s15, 1")
        a("s_cmp_eq_u32 s15, 8")
        a(f"s_cbranch_scc1 .L{name}_last")
        a("s_barrier")
        a(f"s_add_u32 s14, s14, {STAGE}")
        a(f"s_cmp_eq_u32 s14, {4*STAGE}")
        a("s_cselect_b32 s14, 0, s14")
        for sp in range(4):
            a(f"v_add_u32 v{XA+sp}, s14, v{XB+sp}")
        a(f"v_add_u32 v{WA}, s14, v{WB}")
        for l in interleave(mfmas(1, kinds), reads(0, 0, nt)): a(l)
        a(f"s_branch .L{name}_loop")
        a.label(f".L{name}_last")
        for l in mfmas(1, kinds): a(l)
        a("s_nop 15")

    a("s_cmp_eq_u32 s7, 0")
    a("s_cbranch_scc0 .Lk1_h")
    mainloop("k1q", "TTN")
    a("s_lshl_b32 s13, s6, 2")
    a("s_lshl_b32 s14, s11, 1")
    a("s_add_u32 s13, s13, s14")
    a("s_lshl_b32 s14, s4, 2")
    a("s_lshl_b32 s15, s12, 1")
    a("s_add_u32 s14, s14, s15")
    a("s_lshl_b32 s14, s14, 6")
    a("s_add_u32 s13, s13, s14")
    a("s_lshl_b32 s13, s13, 10")
    a(f"v_lshlrev_b32 v{TMP}, 4, v{L}")
    a(f"v_add_u32 v{TMP}, s13, v{TMP}")
    a(f"v_add_u32 v{TMP+1}, 0x10000, v{TMP}")
    a(f"v_and_b32 v{TMP+2}, 15, v{L}")
    a(f"v_lshrrev_b32 v{TMP+3}, 5, v{L}")
    a(f"v_lshl_add_u32 v{TMP+2}, v{TMP+3}, 4, v{TMP+2}")
    a(f"v_lshlrev_b32 v{TMP+2}, 4, v{TMP+2}")
    a(f"v_bfe_u32 v{TMP+3}, v{L}, 4, 1")
    a(f"v_lshl_add_u32 v{TMP+2}, v{TMP+3}, 16, v{TMP+2}")
    a(f"v_add_u32 v{TMP+2}, s13, v{TMP+2}")
    a(f"s_mov_b32 s14, {CSCALE}")
    a(f"s_mov_b32 s50, {QF}")
    a(f"s_mov_b32 s51, {KF}")
    a(f"s_mov_b32 s52, {VF}")
    for t in range(3):
        for rt in range(2):
            b = ACC + (t*2+rt)*16
            if t == 0:
                for i in range(16): a(f"v_mul_f32 v{b+i}, s14, v{b+i}")
            for i in range(8): a(f"v_cvt_pk_bf16_f32 v{b+i}, v{b+2*i}, v{b+2*i+1}")
            if t < 2:
                a(f"buffer_store_dwordx4 {vr(b,4)}, v{TMP}, s[44:47], s{50+t} offen offset:{rt*1024}")
                a(f"buffer_store_dwordx4 {vr(b+4,4)}, v{TMP+1}, s[44:47], s{50+t} offen offset:{rt*1024}")
            else:
                a(f"buffer_store_dwordx4 {vr(b,4)}, v{TMP+2}, s[44:47], s52 offen offset:{rt*1024}")
                a(f"buffer_store_dwordx4 {vr(b+4,4)}, v{TMP+2}, s[44:47], s52 offen offset:{rt*1024+512}")
    a("s_branch .Lk1_end")
    a.label(".Lk1_h")
    a("s_cmp_eq_u32 s4, 7")
    a("s_cselect_b32 s13, s12, 0")
    a("s_cmp_eq_u32 s13, 1")
    a("s_cbranch_scc1 .Lk1_gate")
    mainloop("k1h", "TTT")
    a("s_lshl_b32 s13, s6, 2")
    a("s_lshl_b32 s14, s11, 1")
    a("s_add_u32 s13, s13, s14")
    a("s_mul_i32 s13, s13, 118")
    a("s_mul_i32 s14, s4, 12")
    a("s_add_u32 s13, s13, s14")
    a("s_lshl_b32 s14, s12, 1")
    a("s_add_u32 s13, s13, s14")
    a("s_lshl_b32 s13, s13, 10")
    a(f"s_add_u32 s13, s13, {AF}")
    a(f"v_lshlrev_b32 v{TMP}, 4, v{L}")
    a(f"v_add_u32 v{TMP}, s13, v{TMP}")
    a(f"v_add_u32 v{TMP+1}, {118*1024}, v{TMP}")
    a("s_mov_b32 s50, 0")
    a("s_mov_b32 s51, 4096")
    a("s_mov_b32 s52, 8192")
    for t in range(3):
        for rt in range(2):
            b = ACC + (t*2+rt)*16
            for i in range(8): a(f"v_cvt_pk_bf16_f32 v{b+i}, v{b+2*i}, v{b+2*i+1}")
            for i in range(8): a(f"v_pk_max_i16 v{b+i}, v{b+i}, 0")
            a(f"buffer_store_dwordx4 {vr(b,4)}, v{TMP+rt}, s[44:47], s{50+t} offen")
            a(f"buffer_store_dwordx4 {vr(b+4,4)}, v{TMP+rt}, s[44:47], s{50+t} offen offset:1024")
        if t == 0:
            a("s_cmp_eq_u32 s4, 7")
            a("s_cbranch_scc1 .Lk1_end")
    a("s_branch .Lk1_end")
    a.label(".Lk1_gate")
    srd(a, 48, 28, 1024)
    GC = 32; GN = 48
    a(f"v_lshrrev_b32 v{TMP}, 5, v{L}")
    a(f"v_lshlrev_b32 v{TMP}, 4, v{TMP}")
    a("s_mov_b32 s13, 0")
    for sp in range(4):
        a(f"buffer_load_dwordx4 {vr(GN+sp*4,4)}, v{TMP}, s[48:51], s13 offen offset:{sp*32}")
    a("s_barrier")
    a.label(".Lk1g_loop")
    a("s_waitcnt vmcnt(0)")
    for i in range(16): a(f"v_mov_b32 v{GC+i}, v{GN+i}")
    a("s_add_u32 s13, s13, 128")
    for sp in range(4):
        a(f"buffer_load_dwordx4 {vr(GN+sp*4,4)}, v{TMP}, s[48:51], s13 offen offset:{sp*32}")
    for sp in range(4):
        for rt in range(2):
            a(f"ds_read_b128 {vr(64+sp*8+rt*4,4)}, v{XA+sp} offset:{rt*4096}")
    a("s_waitcnt lgkmcnt(0)")
    for sp in range(4):
        for rt in range(2):
            a(f"v_mfma_f32_32x32x16_bf16 {vr(rt*16,16)}, {vr(GC+sp*4,4)}, {vr(64+sp*8+rt*4,4)}, {vr(rt*16,16)}")
    a("s_add_u32 s15, s15, 1")
    a("s_cmp_eq_u32 s15, 8")
    a("s_cbranch_scc1 .Lk1g_done")
    a("s_barrier")
    a(f"s_add_u32 s14, s14, {STAGE}")
    a(f"s_cmp_eq_u32 s14, {4*STAGE}")
    a("s_cselect_b32 s14, 0, s14")
    for sp in range(4):
        a(f"v_add_u32 v{XA+sp}, s14, v{XB+sp}")
    a("s_branch .Lk1g_loop")
    a.label(".Lk1g_done")
    a("s_nop 15")
    a(f"v_cmp_gt_u32 vcc, 32, v{L}")
    a("s_nop 1")
    a("v_cndmask_b32 v0, v16, v0, vcc")
    a("v_cvt_pk_bf16_f32 v0, v0, v0")
    a("v_lshlrev_b32 v0, 16, v0")
    a("v_mul_f32 v0, 0xbfb8aa3b, v0")
    a("v_exp_f32 v0, v0")
    a("s_nop 0")
    a("v_add_f32 v0, 1.0, v0")
    a("v_rcp_f32 v0, v0")
    a("s_nop 0")
    a("v_cvt_pk_bf16_f32 v0, v0, v0")
    a("v_lshlrev_b32 v0, 16, v0")
    a("s_lshl_b32 s13, s6, 7")
    a("s_lshl_b32 s14, s11, 6")
    a("s_add_u32 s13, s13, s14")
    a("s_lshl_b32 s13, s13, 2")
    a(f"s_add_u32 s13, s13, {GOFF}")
    a(f"v_lshlrev_b32 v1, 2, v{L}")
    a("buffer_store_dword v0, v1, s[44:47], s13 offen")
    a("s_branch .Lk1_end")

    a.label(".Lk1_loader")
    a("s_sub_u32 s11, s3, 4")
    VA = 8; VB = 12
    a("v_lshrrev_b32 v1, 3, v0")
    a("v_and_b32 v2, 7, v0")
    a("v_lshrrev_b32 v3, 4, v0")
    a("s_lshl_b32 s12, s6, 7")
    a("s_lshl_b32 s13, s11, 5")
    a("s_add_u32 s12, s12, s13")
    for j in range(4):
        a(f"v_add_u32 v4, {4*(j&1)}, v3")
        a("v_xor_b32 v4, v4, v2")
        a("v_lshlrev_b32 v4, 4, v4")
        a(f"v_add_u32 v5, {8*j}, v1")
        a("v_add_u32 v5, s12, v5")
        a(f"v_lshl_add_u32 v{VA+j}, v5, 10, v4")
    a("v_bfe_u32 v1, v0, 2, 2")
    a("v_and_b32 v2, 3, v0")
    a("s_lshl_b32 s12, s11, 4")
    for j in range(6):
        a(f"v_add_u32 v4, {4*j}, v3")
        a("v_mul_u32_u24 v5, 43, v4")
        a("v_lshrrev_b32 v5, 8, v5")
        a("v_mul_u32_u24 v6, 6, v5")
        a("v_sub_u32 v4, v4, v6")
        a("v_lshl_add_u32 v5, v5, 2, v1")
        a("v_add_u32 v5, s12, v5")
        a("v_mul_lo_u32 v5, v5, s8")
        a("v_lshrrev_b32 v6, 1, v4")
        a("v_mul_lo_u32 v6, v6, s9")
        a("v_and_b32 v4, 1, v4")
        a("v_lshl_add_u32 v6, v4, 5, v6")
        a("v_lshl_add_u32 v6, v2, 3, v6")
        a("v_add_u32 v6, s10, v6")
        a(f"v_lshl_add_u32 v{VB+j}, v6, 1, v5")
    a("s_lshl_b32 s12, s11, 12")
    a("s_mul_i32 s13, s11, 6144")
    a("s_add_u32 s13, s13, 16384")
    a("s_lshl_b32 s53, s8, 6")
    a("s_mov_b32 s54, 0")
    a("s_mov_b32 s55, 0")
    def issue(stage):
        for j in range(4):
            a(f"s_add_u32 m0, s12, {stage*STAGE + j*1024}")
            a("s_nop 0")
            a(f"buffer_load_dwordx4 v{VA+j}, s[36:39], s54 offen lds")
        for j in range(6):
            a(f"s_add_u32 m0, s13, {stage*STAGE + j*1024}")
            a("s_nop 0")
            a(f"buffer_load_dwordx4 v{VB+j}, s[40:43], s55 offen lds")
        a("s_add_u32 s54, s54, 128")
        a("s_add_u32 s55, s55, s53")
    for c in range(4): issue(c)
    a("s_lshl_b32 s56, s2, 3")
    a("s_lshl_b32 s57, s11, 1")
    a("s_add_u32 s56, s56, s57")
    a("s_lshr_b32 s57, s56, 4")
    a("s_and_b32 s56, s56, 15")
    a("s_cmp_lt_u32 s57, 86")
    a("s_cselect_b32 s48, s26, s20")
    a("s_cselect_b32 s49, s27, s21")
    a(f"s_mov_b32 s50, {1376*1024}")
    a(f"s_cselect_b32 s50, s50, {512*1024}")
    a("s_mov_b32 s51, 0x00020000")
    a("s_cselect_b32 s58, 0, 86")
    a("s_sub_u32 s58, s57, s58")
    a("s_lshl_b32 s58, s58, 14")
    a("s_lshl_b32 s59, s56, 6")
    a("s_add_u32 s58, s58, s59")
    a("v_lshl_add_u32 v4, v3, 2, v1")
    a("v_lshlrev_b32 v4, 10, v4")
    a("v_lshl_add_u32 v20, v2, 4, v4")
    a("v_add_u32 v21, 64, v20")
    a("s_waitcnt vmcnt(30)")
    a("s_barrier")
    for c in range(1, 5):
        a("s_waitcnt vmcnt(20)")
        a("s_barrier")
        issue((c-1) & 3)
    a("s_waitcnt vmcnt(20)")
    a("s_barrier")
    a("s_lshl_b32 s12, s11, 11")
    a("s_mov_b32 m0, s12")
    a("s_nop 0")
    a("buffer_load_dwordx4 v20, s[48:51], s58 offen lds")
    a("s_add_u32 m0, s12, 1024")
    a("s_nop 0")
    a("buffer_load_dwordx4 v21, s[48:51], s58 offen lds")
    a("s_waitcnt vmcnt(12)")
    a("s_barrier")
    a("s_waitcnt vmcnt(2)")
    a("s_barrier")
    a("s_cmp_ge_u32 s2, 236")
    a("s_cbranch_scc1 .Lk1_end")
    a("v_lshrrev_b32 v4, 5, v0")
    a("v_lshlrev_b32 v4, 8, v4")
    a("v_lshl_add_u32 v4, v1, 6, v4")
    a("v_bfe_u32 v5, v0, 4, 1")
    a("v_lshl_add_u32 v4, v5, 5, v4")
    a("v_lshl_add_u32 v4, v2, 3, v4")
    a("v_add_u32 v4, s12, v4")
    a("s_waitcnt vmcnt(0)")
    a("ds_read_b64_tr_b16 v[24:25], v4")
    a("ds_read_b64_tr_b16 v[26:27], v4 offset:512")
    a("ds_read_b64_tr_b16 v[28:29], v4 offset:1024")
    a("ds_read_b64_tr_b16 v[30:31], v4 offset:1536")
    a("s_mul_i32 s56, s56, 118")
    a("s_add_u32 s56, s56, s57")
    a("s_lshl_b32 s56, s56, 10")
    a(f"s_add_u32 s56, s56, {WF}")
    a(f"s_add_u32 s57, s56, {118*1024}")
    a("v_lshlrev_b32 v5, 4, v0")
    a("s_waitcnt lgkmcnt(0)")
    a("buffer_store_dwordx4 v[24:27], v5, s[44:47], s56 offen")
    a("buffer_store_dwordx4 v[28:31], v5, s[44:47], s57 offen")
    a.label(".Lk1_end")
    return kernel_wrap("k1_kernel", a.text(), 152)

def gen_k2():
    a = Asm()
    a("s_cmp_ge_u32 s2, 256")
    a("s_cbranch_scc1 .Lk2_end")
    load_ptrs(a)
    a("v_lshrrev_b32 v1, 6, v0")
    a("v_and_b32 v0, 63, v0")
    a("v_readfirstlane_b32 s3, v1")
    a("s_and_b32 s4, s2, 7")
    a("s_lshr_b32 s5, s2, 3")
    a("s_and_b32 s6, s5, 3")
    a("s_lshl_b32 s4, s4, 2")
    a("s_add_u32 s4, s4, s6")
    a("s_lshr_b32 s5, s5, 2")
    a("s_lshl_b32 s5, s5, 3")
    a("s_add_u32 s5, s5, s3")
    a("s_waitcnt lgkmcnt(0)")
    srd(a, 44, 34, WSBYTES)
    Q = 4; K = 8; V = 44; S = 116; CD = 148; CF = 164; NM = 180; P = 196; O = 212; M = 228; T0 = 230
    a("s_sub_i32 s6, 8, s5")
    a("s_max_i32 s6, s6, 0")
    a("s_lshl_b32 s7, s4, 6")
    a("s_add_u32 s7, s7, s5")
    a("s_lshl_b32 s7, s7, 10")
    a("v_lshlrev_b32 v1, 4, v0")
    a("v_and_b32 v2, 15, v0")
    a("v_lshrrev_b32 v3, 5, v0")
    a("v_lshl_add_u32 v2, v3, 4, v2")
    a("v_lshlrev_b32 v2, 4, v2")
    for i in range(72): a(f"v_mov_b32 v{V+i}, 0x3f803f80")
    a(f"buffer_load_dwordx4 {vr(Q,4)}, v1, s[44:47], s7 offen")
    a(f"s_add_u32 s8, s7, {KF}")
    a(f"s_add_u32 s9, s7, {VF}")
    for u in range(8, -1, -1):
        a(f"buffer_load_dwordx4 {vr(K+4*u,4)}, v1, s[44:47], s8 offen")
        if u > 0:
            a("s_sub_u32 s8, s8, 1024")
            a(f"s_cmp_eq_u32 s6, {u}")
            a("s_cbranch_scc1 .Lk2_kdone")
    a.label(".Lk2_kdone")
    a("s_mov_b32 exec_lo, 0xffff")
    a("s_mov_b32 exec_hi, 0xffff")
    for u in range(8, -1, -1):
        a(f"buffer_load_dwordx4 {vr(V+8*u,4)}, v2, s[44:47], s9 offen")
        a(f"buffer_load_dwordx4 {vr(V+8*u+4,4)}, v2, s[44:47], s9 offen offset:512")
        if u > 0:
            a("s_sub_u32 s9, s9, 1024")
            a(f"s_cmp_eq_u32 s6, {u}")
            a("s_cbranch_scc1 .Lk2_vdone")
    a.label(".Lk2_vdone")
    a("s_mov_b64 exec, -1")
    a("v_and_b32 v2, 31, v0")
    a("v_lshlrev_b32 v3, 2, v3")
    a(f"v_sub_u32 v{T0}, v2, v3")
    a(f"v_mov_b32 v{T0+1}, {NINF}")
    for r in range(16):
        br = (r & 3) + 8*(r >> 2)
        a(f"v_cmp_le_i32 vcc, {br}, v{T0}")
        a("s_nop 1")
        a(f"v_cndmask_b32 v{CD+r}, v{T0+1}, 0, vcc")
        a(f"v_cndmask_b32 v{CF+r}, 0, v{T0+1}, vcc")
    for i in range(16): a(f"v_mov_b32 v{O+i}, 0")
    a(f"v_mov_b32 v{M}, {NINF}")
    def smfma(u, c):
        return f"v_mfma_f32_32x32x16_bf16 {vr(S+16*(u&1),16)}, {vr(K+4*u,4)}, {vr(Q,4)}, {c}"
    def c1(u): return vr(CD,16) if u == 8 else (vr(CF,16) if u == 0 else "0")
    def c2(u): return vr(CD,16) if u == 8 else (vr(CF,16) if u == 0 else vr(NM,16))
    a("s_waitcnt vmcnt(0)")
    a(smfma(8, c1(8)))
    for u in range(8, -1, -1):
        if u > 0:
            a(f"s_cmp_eq_u32 s6, {u}")
            a(f"s_cbranch_scc1 .Lk2_p1s{u}")
            a(smfma(u-1, c1(u-1)))
            a.label(f".Lk2_p1s{u}")
        a("s_nop 15")
        b = S + 16*(u & 1)
        for i in range(8):
            a(f"v_max3_f32 v{M}, v{b+2*i}, v{b+2*i+1}, v{M}")
        if u > 0:
            a("s_cbranch_scc1 .Lk2_p1done")
    a.label(".Lk2_p1done")
    a(f"v_mov_b32 v{M+1}, v{M}")
    a("s_nop 1")
    a(f"v_permlane32_swap_b32 v{M}, v{M+1}")
    a("s_nop 1")
    a(f"v_max_f32 v{M}, v{M}, v{M+1}")
    for i in range(16): a(f"v_sub_f32 v{NM+i}, 0, v{M}")
    for i in range(16): a(f"v_sub_f32 v{CD+i}, v{CD+i}, v{M}")
    for i in range(16): a(f"v_sub_f32 v{CF+i}, v{CF+i}, v{M}")
    a("s_nop 1")
    a(smfma(8, c2(8)))
    for u in range(8, -1, -1):
        if u > 0:
            a(f"s_cmp_eq_u32 s6, {u}")
            a(f"s_cbranch_scc1 .Lk2_p2s{u}")
            a(smfma(u-1, c2(u-1)))
            a.label(f".Lk2_p2s{u}")
        a("s_nop 15")
        b = S + 16*(u & 1)
        p = P + 8*(u & 1)
        for i in range(16): a(f"v_exp_f32 v{b+i}, v{b+i}")
        a("s_nop 0")
        for i in range(8): a(f"v_cvt_pk_bf16_f32 v{p+i}, v{b+2*i}, v{b+2*i+1}")
        a("s_nop 1")
        a(f"v_mfma_f32_32x32x16_bf16 {vr(O,16)}, {vr(V+8*u,4)}, {vr(p,4)}, {vr(O,16)}")
        a(f"v_mfma_f32_32x32x16_bf16 {vr(O,16)}, {vr(V+8*u+4,4)}, {vr(p+4,4)}, {vr(O,16)}")
        if u > 0:
            a("s_cbranch_scc1 .Lk2_p2done")
    a.label(".Lk2_p2done")
    a("s_nop 15")
    a(f"v_rcp_f32 v{M}, v{O+8}")
    a("s_nop 0")
    for i in range(8): a(f"v_mul_f32 v{O+i}, v{O+i}, v{M}")
    for i in range(4): a(f"v_cvt_pk_bf16_f32 v{O+i}, v{O+2*i}, v{O+2*i+1}")
    a("s_mul_i32 s7, s5, 118")
    a("s_add_u32 s7, s7, s4")
    a("s_lshl_b32 s7, s7, 10")
    a(f"s_add_u32 s7, s7, {AF + 86*1024}")
    a(f"buffer_store_dwordx4 {vr(O,4)}, v1, s[44:47], s7 offen")
    a.label(".Lk2_end")
    return kernel_wrap("k2_kernel", a.text(), 232)

def gen_k3():
    a = Asm()
    a("s_cmp_ge_u32 s2, 256")
    a("s_cbranch_scc1 .Lk3_end")
    load_ptrs(a)
    a("v_mov_b32 v200, v0")
    a("v_lshrrev_b32 v1, 6, v0")
    a("v_and_b32 v0, 63, v0")
    a("v_readfirstlane_b32 s3, v1")
    a("s_and_b32 s4, s2, 7")
    a("s_lshr_b32 s5, s2, 3")
    a("s_and_b32 s6, s5, 7")
    a("s_lshr_b32 s5, s5, 3")
    a("s_lshl_b32 s4, s4, 2")
    a("s_add_u32 s5, s5, s4")
    a("s_mul_i32 s7, s3, 29")
    a("s_add_u32 s8, s7, 29")
    a("s_min_u32 s8, s8, 86")
    a("s_cmp_eq_u32 s3, 3")
    a("s_cselect_b32 s7, 86, s7")
    a("s_cselect_b32 s8, 118, s8")
    a("s_lshl_b32 s8, s8, 10")
    a("s_waitcnt lgkmcnt(0)")
    a(f"s_mul_i32 s9, s5, {2*118*1024}")
    a(f"s_add_u32 s9, s9, {AF}")
    for rt in range(2):
        a(f"s_add_u32 s{36+4*rt}, s34, s9")
        a(f"s_addc_u32 s{37+4*rt}, s35, 0")
        a(f"s_mov_b32 s{38+4*rt}, s8")
        a(f"s_mov_b32 s{39+4*rt}, 0x00020000")
        a(f"s_add_u32 s9, s9, {118*1024}")
    srd(a, 44, 34, WSBYTES)
    srd(a, 48, 30, 2048*1024)
    a(f"s_mul_i32 s10, s6, {2*118*1024}")
    a(f"s_add_u32 s10, s10, {WF}")
    a(f"s_add_u32 s11, s10, {118*1024}")
    a("v_lshlrev_b32 v1, 4, v0")
    a("s_lshl_b32 s7, s7, 10")
    a("v_add_u32 v1, s7, v1")
    ACC = 4; FR = 68; D = 8
    for i in range(64): a(f"v_mov_b32 v{ACC+i}, 0")
    def loads(k):
        f = FR + (k % D)*16
        if k and k % 4 == 0: a("v_add_u32 v1, 4096, v1")
        o = (k % 4)*1024
        a(f"buffer_load_dwordx4 {vr(f,4)}, v1, s[36:39], 0 offen offset:{o}")
        a(f"buffer_load_dwordx4 {vr(f+4,4)}, v1, s[40:43], 0 offen offset:{o}")
        a(f"buffer_load_dwordx4 {vr(f+8,4)}, v1, s[44:47], s10 offen offset:{o}")
        a(f"buffer_load_dwordx4 {vr(f+12,4)}, v1, s[44:47], s11 offen offset:{o}")
    for k in range(D): loads(k)
    a("v_lshrrev_b32 v201, 2, v200")
    a("s_lshl_b32 s12, s5, 8")
    a(f"s_add_u32 s12, s12, {GOFF}")
    a("v_lshlrev_b32 v202, 2, v201")
    for k in range(32):
        rem = min(D-1, 31-k)
        a(f"s_waitcnt vmcnt({4*rem})")
        f = FR + (k % D)*16
        for nt in range(2):
            for rt in range(2):
                acc = vr(ACC+(nt*2+rt)*16, 16)
                a(f"v_mfma_f32_32x32x16_bf16 {acc}, {vr(f+8+4*nt,4)}, {vr(f+4*rt,4)}, {acc}")
        if k + D < 32: loads(k + D)
    a("buffer_load_dword v203, v202, s[44:47], s12 offen")
    a("v_and_b32 v2, 31, v0")
    a("v_mul_u32_u24 v2, 272, v2")
    a("v_lshrrev_b32 v3, 5, v0")
    a("v_lshl_add_u32 v2, v3, 4, v2")
    a("s_mul_i32 s13, s3, 17408")
    a("v_add_u32 v2, s13, v2")
    a("s_nop 8")
    for nt in range(2):
        for rt in range(2):
            for q in range(4):
                a(f"ds_write_b128 v2, {vr(ACC+(nt*2+rt)*16+4*q,4)} offset:{rt*32*272 + nt*128 + q*32}")
    a("s_waitcnt lgkmcnt(0)")
    a("s_barrier")
    a("v_mul_u32_u24 v2, 272, v201")
    a("v_and_b32 v3, 3, v200")
    a("v_lshl_add_u32 v2, v3, 6, v2")
    for w in range(4):
        for i in range(4):
            a(f"ds_read_b128 {vr(4+w*16+i*4,4)}, v2 offset:{w*17408+i*16}")
    a("s_waitcnt vmcnt(0) lgkmcnt(0)")
    a("v_sub_f32 v204, 1.0, v203")
    a("v_cvt_pk_bf16_f32 v204, v204, v204")
    a("v_lshlrev_b32 v204, 16, v204")
    a("s_mov_b32 s14, 0xffff0000")
    for i in range(16):
        a(f"v_add_f32 v{4+i}, v{4+i}, v{20+i}")
    for i in range(16):
        a(f"v_add_f32 v{4+i}, v{4+i}, v{36+i}")
    def rnd(b):
        for i in range(8): a(f"v_cvt_pk_bf16_f32 v{80+i}, v{b+2*i}, v{b+2*i+1}")
        for i in range(8):
            a(f"v_lshlrev_b32 v{b+2*i}, 16, v{80+i}")
            a(f"v_and_b32 v{b+2*i+1}, s14, v{80+i}")
    rnd(4); rnd(52)
    for i in range(16): a(f"v_mul_f32 v{4+i}, v{4+i}, v204")
    for i in range(16): a(f"v_mul_f32 v{52+i}, v{52+i}, v203")
    rnd(4); rnd(52)
    for i in range(16): a(f"v_add_f32 v{4+i}, v{4+i}, v{52+i}")
    for i in range(8): a(f"v_cvt_pk_bf16_f32 v{4+i}, v{4+2*i}, v{4+2*i+1}")
    a("s_lshl_b32 s13, s5, 16")
    a("s_lshl_b32 s14, s6, 7")
    a("s_add_u32 s13, s13, s14")
    a("v_lshlrev_b32 v2, 10, v201")
    a("v_lshl_add_u32 v2, v3, 5, v2")
    a("buffer_store_dwordx4 v[4:7], v2, s[48:51], s13 offen")
    a("buffer_store_dwordx4 v[8:11], v2, s[48:51], s13 offen offset:16")
    a.label(".Lk3_end")
    return kernel_wrap("k3_kernel", a.text(), 208)

hdr = open("gated_mix__sliding_block__dense_activation_relu__prompt.s.ref").read().split("; Override launch")[0]
out = hdr
out += "; @launch kernel=k1_kernel grid=(256,1,1) block=(512,1,1) lds=163840\n"
out += "; @launch kernel=k2_kernel grid=(256,1,1) block=(512,1,1) lds=0\n"
out += "; @launch kernel=k3_kernel grid=(256,1,1) block=(256,1,1) lds=69632\n"
out += '.amdgcn_target "amdgcn-amd-amdhsa--gfx950"\n'
out += gen_k1() + gen_k2() + gen_k3()
open(sys.argv[1] if len(sys.argv) > 1 else "v1.s", "w").write(out)
```

```python
import sys, os, json
from asmlib import *

QF, KF, VF = 0x000000, 0x200000, 0x400000
AF = 0x600000
WF = 0xE00000
GOFF = 0x1000000
FLG = 0x1010000
WSBYTES = 0x1600000
CSCALE = 0x3EB8AA3B
NINF = 0xFF800000
PROF = len(sys.argv) > 2 and sys.argv[2] == "prof"
PROFOFF = 0x1080000
SC = " sc1"
SPIN = 1 << 14
PFW1 = int(os.environ.get("PFW1", "1"))
LOCAL = 0
PUBA_T = int(os.environ.get("PUBA_T", "8"))
K2F, V2F = 0x1200000, 0x1400000

a = Asm()
def stamp(i):
    if PROF:
        a("s_memrealtime s[98:99]")
        a("s_waitcnt lgkmcnt(0)")
        a(f"v_writelane_b32 v255, s98, {i}")
ticks = {}
def tick(name):
    if PROF:
        if name not in ticks: ticks[name] = 16 + len(ticks)
        assert ticks[name] < 64
        stamp(ticks[name])

SLOT = 28672
R1 = 114688
BH = [R1, R1+12288, R1+24576, 0, 12288, SLOT, SLOT+12288, 2*SLOT]
BOUNCE = R1 + 36864
NONCE_LDS = BOUNCE + 8192
STG = 69632
EAREA = 49152; ESZ = 16384
DAREA = [0, 24576, 114688, 139264]
NSL = 11
CNT_LDS = 161792

S_XCD, S_IDX, S_RB, S_J, S_HEAD, S_QB, S_RT, S_CT, S_ROT, S_NONCE = 4, 5, 6, 7, 8, 9, 10, 11, 12, 13
X_, WQ_, WS_, W1_, WT_, OUT_, DBG_, GT_ = 36, 40, 44, 48, 52, 60, 64, 68
def S4(b): return f"s[{b}:{b+3}]"

class Q:
    def __init__(self, kind, cap): self.q = []; self.kind = kind; self.cap = cap
    def issue(self, tag, n=1): self.q.extend([tag]*n)
    def wait(self, *tags):
        idx = [i for i, t in enumerate(self.q) if t in tags]
        if not idx: return
        n = len(self.q) - 1 - max(idx)
        a(f"s_waitcnt {self.kind}({min(n, self.cap)})")
        self.q = self.q[max(idx)+1:]
    def drain(self): self.q = []

def poll_flags(off_sreg, mask, vtmp, name, pre=False):
    a(f"s_mov_b32 s74, {SPIN}")
    a.label(f".L{name}_poll")
    a(f"buffer_load_dword v{vtmp+1}, v{vtmp}, {S4(WS_)}, s{off_sreg} offen{SC}")
    a("s_waitcnt vmcnt(0)")
    a(f"v_cmp_ne_u32 vcc, s{S_NONCE}, v{vtmp+1}")
    a(f"s_and_b64 s[72:73], vcc, s[{mask}:{mask+1}]")
    a(f"s_cbranch_scc0 .L{name}_ok")
    a("s_sleep 1")
    a("s_sub_u32 s74, s74, 1")
    a("s_cmp_lg_u32 s74, 0")
    a(f"s_cbranch_scc1 .L{name}_poll")
    a.label(f".L{name}_ok")

def publish(off_sreg, vtmp, dual=False):
    l = a.newlabel("pub")
    a("s_cmp_lg_u32 s3, 0")
    a(f"s_cbranch_scc1 {l}")
    a("s_mov_b64 exec, 1")
    a(f"v_mov_b32 v{vtmp}, 0")
    a(f"v_mov_b32 v{vtmp+1}, s{S_NONCE}")
    if dual: a(f"buffer_store_dword v{vtmp+1}, v{vtmp}, {S4(WS_)}, s{off_sreg} offen offset:{0x2000 & 0xfff | 0x800}")
    a(f"buffer_store_dword v{vtmp+1}, v{vtmp}, {S4(WS_)}, s{off_sreg} offen{SC}")
    a("s_mov_b64 exec, -1")
    a.label(l)

def wpublish(off_sreg, vtmp, dual=False):
    a("s_mov_b64 exec, 1")
    a(f"v_mov_b32 v{vtmp}, 0")
    a(f"v_mov_b32 v{vtmp+1}, s{S_NONCE}")
    if dual:
        a(f"s_add_u32 s72, s{off_sreg}, 0x1000")
        a(f"buffer_store_dword v{vtmp+1}, v{vtmp}, {S4(WS_)}, s72 offen")
    a(f"buffer_store_dword v{vtmp+1}, v{vtmp}, {S4(WS_)}, s{off_sreg} offen{SC}")
    a("s_mov_b64 exec, -1")

def inter(m, r):
    out = []; per = -(-len(r) // len(m)) if r else 0; ri = 0
    for mm in m:
        out.append(mm)
        for _ in range(per):
            if ri < len(r): out.append(r[ri]); ri += 1
    return out

a("s_cmp_ge_u32 s2, 256")
a("s_cbranch_scc1 .Lend")
a("s_load_dwordx16 s[16:31], s[0:1], 0")
a("s_load_dwordx4 s[32:35], s[0:1], 64")
if PROF: a("v_mov_b32 v255, 0")
stamp(0)
if PROF:
    a("s_memtime s[98:99]")
    a("s_waitcnt lgkmcnt(0)")
    a("v_writelane_b32 v255, s98, 12")
a("v_lshrrev_b32 v1, 6, v0")
a("v_and_b32 v0, 63, v0")
a("v_readfirstlane_b32 s3, v1")
a(f"s_and_b32 s{S_XCD}, s2, 7")
a(f"s_lshr_b32 s{S_IDX}, s2, 3")
a(f"s_and_b32 s72, s{S_XCD}, 1")
a(f"s_lshr_b32 s73, s{S_XCD}, 1")
a(f"s_and_b32 s74, s{S_IDX}, 7")
a(f"s_lshr_b32 s75, s{S_IDX}, 3")
a(f"s_lshl_b32 s{S_RB}, s72, 3")
a(f"s_add_u32 s{S_RB}, s{S_RB}, s74")
a(f"s_lshl_b32 s{S_J}, s73, 2")
a(f"s_add_u32 s{S_J}, s{S_J}, s75")
a(f"s_lshl_b32 s{S_ROT}, s75, 1")
a(f"s_add_u32 s{S_ROT}, s{S_ROT}, s74")
a(f"s_and_b32 s{S_ROT}, s{S_ROT}, 7")
a(f"s_lshl_b32 s{S_HEAD}, s73, 3")
a(f"s_add_u32 s{S_HEAD}, s{S_HEAD}, s74")
a(f"s_lshl_b32 s{S_QB}, s72, 2")
a(f"s_add_u32 s{S_QB}, s{S_QB}, s75")
a(f"s_lshl_b32 s{S_RT}, s{S_XCD}, 2")
a(f"s_add_u32 s{S_RT}, s{S_RT}, s75")
a(f"s_mov_b32 s{S_CT}, s74")
a(f"s_mov_b32 s{S_NONCE}, 0")
a("s_and_b32 s14, s3, 3")
a("s_cmp_lt_u32 s3, 4")
a("s_cbranch_scc1 .Lcompute")

VX = 240; VWA = 244; VWB = 245; VWB2 = 246; LN16 = 247; T = 248; L = 254
a(f"v_mov_b32 v{L}, v0")
a("v_lshrrev_b32 v1, 3, v0")
a("v_and_b32 v2, 7, v0")
a("v_lshrrev_b32 v3, 4, v0")
a(f"s_lshl_b32 s72, s{S_RB}, 7")
a("s_lshl_b32 s73, s14, 5")
a("s_add_u32 s72, s72, s73")
for j in range(4):
    a(f"v_add_u32 v4, {4*(j&1)}, v3")
    a("v_xor_b32 v4, v4, v2")
    a("v_lshlrev_b32 v4, 4, v4")
    a(f"v_add_u32 v5, {8*j}, v1")
    a("v_add_u32 v5, s72, v5")
    a(f"v_lshl_add_u32 v{VX+j}, v5, 10, v4")
a("v_lshrrev_b32 v1, 2, v0")
a("s_lshl_b32 s72, s14, 4")
a("v_add_u32 v6, s72, v1")
a("v_and_b32 v2, 3, v0")
a("v_lshlrev_b32 v2, 4, v2")
a(f"s_lshl_b32 s72, s{S_J}, 6")
a(f"v_mul_u32_u24 v{VWA}, 3072, v6")
a(f"v_add3_u32 v{VWA}, v{VWA}, v2, s72")
a(f"s_lshl_b32 s78, s{S_ROT}, 7")
a(f"s_mul_i32 s79, s{S_ROT}, {64*3072}")
a(f"s_mul_i32 s80, s{S_ROT}, {64*2752}")
a("s_lshl_b32 s81, s14, 12")
a("s_lshl_b32 s82, s14, 10")
a("s_waitcnt lgkmcnt(0)")
srd(a, X_, 16, 2048*1024)
srd(a, WQ_, 18, 512*3072)
vq = Q("vmcnt", 63)
def issue_A(p):
    slot = p % 4
    for j in range(4):
        a(f"s_add_u32 m0, s81, {slot*SLOT + j*1024}")
        a("s_nop 0")
        a(f"buffer_load_dwordx4 v{VX+j}, {S4(X_)}, s78 offen lds")
    for b in range(3):
        a(f"s_add_u32 m0, s82, {slot*SLOT + 16384 + b*4096 - b*1024}")
        a("s_nop 0")
        a(f"buffer_load_dwordx4 v{VWA}, {S4(WQ_)}, s79 offen offset:{b*1024} lds")
    a("s_add_u32 s78, s78, 128")
    a(f"s_add_u32 s79, s79, {64*3072}")
    a("s_cmp_eq_u32 s78, 1024")
    a("s_cselect_b32 s78, 0, s78")
    a("s_cselect_b32 s79, 0, s79")
    vq.issue(("A", p), 7)
def issue_Bhalf(h):
    for b in range(3):
        a(f"s_add_u32 m0, s82, {BH[h] + b*4096 - b*64}")
        a("s_nop 0")
        a(f"buffer_load_dwordx4 v{VWB if b == 0 else VWB2}, {S4(W1_)}, s80 offen offset:{b*64} lds")
    a(f"s_add_u32 s80, s80, {64*2752}")
    a(f"s_cmp_eq_u32 s80, {512*2752}")
    a("s_cselect_b32 s80, 0, s80")
    vq.issue(("B", h), 3)
AW1 = int(os.environ.get("AW1", "0"))
issue_A(0)
if not AW1:
    issue_A(1); issue_A(2)
srd(a, WS_, 34, WSBYTES)
srd(a, W1_, 24, 512*2752)
srd(a, OUT_, 30, 2048*1024)
a(f"s_mul_i32 s72, s{S_J}, 192")
a(f"v_mul_u32_u24 v{VWB}, 2752, v6")
a(f"v_add3_u32 v{VWB}, v{VWB}, v2, s72")
a(f"v_mov_b32 v{VWB2}, v{VWB}")
a(f"s_cmp_lt_u32 s{S_J}, 14")
a("s_cbranch_scc1 .Lwbok")
a(f"v_mov_b32 v{VWB2}, 0x40000000")
a(f"s_cmp_lt_u32 s{S_J}, 15")
a("s_cbranch_scc1 .Lwbok")
a(f"v_mov_b32 v{VWB}, 0x40000000")
a.label(".Lwbok")
a(f"v_lshlrev_b32 v{LN16}, 4, v0")
BSCHED = {2: [0], 3: [1], 4: [2], 5: [3, 4], 6: [5, 6], 7: [7]}
for p in range(8):
    vq.wait(("A", p))
    a("s_barrier")
    if p == 0: stamp(1)
    if p == 0 and AW1:
        issue_A(1); issue_A(2)
    if p + 3 < 8: issue_A(p+3)
    for h in BSCHED.get(p, []): issue_Bhalf(h)
    if p == 4:
        a(f"v_mov_b32 v4, {NONCE_LDS}")
        a("ds_read_b32 v5, v4")
        a("s_waitcnt lgkmcnt(0)")
        a(f"v_readfirstlane_b32 s{S_NONCE}, v5")
stamp(2)
a("s_mul_i32 s86, s14, 22")
a("s_cmp_eq_u32 s14, 3")
a("s_cselect_b32 s86, 65, s86")
a("s_add_u32 s87, s86, 22")
a("s_cmp_ge_u32 s14, 2")
a("s_cselect_b32 s88, 1, 0")
a("s_sub_u32 s87, s87, s88")
a(f"s_mul_i32 s92, s{S_CT}, 3")
a(f"s_lshr_b32 s72, s{S_IDX}, 3")
a("s_mul_i32 s72, s72, 5")
a("s_add_u32 s92, s92, s72")
a("s_cmp_ge_u32 s92, 22")
a("s_cselect_b32 s72, 22, 0")
a("s_sub_u32 s92, s92, s72")
a("s_lshl_b32 s92, s92, 10")
a("s_mov_b32 s93, s92")
a(f"s_mul_i32 s72, s{S_CT}, {2*118}")
a("s_add_u32 s72, s72, s86")
a("s_lshl_b32 s72, s72, 10")
a(f"s_add_u32 s72, s72, {WF}")
a(f"v_add_u32 v{T}, s72, v{LN16}")
a(f"v_add_u32 v{T+1}, {118*1024}, v{T}")
a(f"v_lshlrev_b32 v{T+2}, 2, v{L}")
vq.wait(("B", 3))
a("s_barrier")
vq.wait(("B", 7))
a("s_barrier")
stamp(3)
W2R = 0; DACC = 160; HB = 224; NPRE = 20
def w2load(k):
    f = W2R + (k % NPRE)*8
    a(f"buffer_load_dwordx4 {vr(f,4)}, v{T}, {S4(WS_)}, s92 offen")
    a(f"buffer_load_dwordx4 {vr(f+4,4)}, v{T+1}, {S4(WS_)}, s92 offen")
    a("s_add_u32 s92, s92, 1024")
    a(f"s_cmp_eq_u32 s92, {22*1024}")
    a("s_cselect_b32 s92, 0, s92")
    vq.issue(("w", k), 2)
a("s_mov_b32 s85, 0")
a("s_cmp_lg_u32 s3, 4")
a("s_cbranch_scc1 .Lnostage")
a(f"s_lshr_b32 s76, s{S_HEAD}, 1")
a("s_lshl_b32 s76, s76, 8")
a(f"s_lshl_b32 s77, s{S_QB}, 5")
a("s_add_u32 s76, s76, s77")
a(f"s_add_u32 s76, s76, {FLG - 32}")
a(f"s_add_u32 s77, s76, 0x1000")
a("s_mov_b32 s84, 0xffff")
a(f"s_cmp_eq_u32 s{S_QB}, 0")
a("s_cselect_b32 s84, 0xff00, s84")
a(f"s_mov_b32 s74, {SPIN}")
a("s_mov_b64 exec, 0xffff")
a.label(".Lfa_poll")
a(f"buffer_load_dword v{T+3}, v{T+2}, {S4(WS_)}, s76 offen{SC}")
a(f"buffer_load_dword v{T+4}, v{T+2}, {S4(WS_)}, s77 offen{SC}")
a("s_waitcnt vmcnt(0)")
a(f"v_cmp_ne_u32 vcc, s{S_NONCE}, v{T+3}")
a("s_and_b64 s[72:73], vcc, s[84:85]")
a(f"v_cmp_ne_u32 vcc, s{S_NONCE}, v{T+4}")
a("s_and_b64 s[72:73], vcc, s[72:73]")
a("s_cbranch_scc0 .Lfa_ok")
a("s_sleep 1")
a("s_sub_u32 s74, s74, 1")
a("s_cmp_lg_u32 s74, 0")
a("s_cbranch_scc1 .Lfa_poll")
a.label(".Lfa_ok")
a("s_mov_b64 exec, -1")
stamp(11)
a(f"s_lshl_b32 s72, s{S_HEAD}, 6")
a(f"s_lshl_b32 s73, s{S_QB}, 3")
a("s_add_u32 s72, s72, s73")
a("s_lshl_b32 s72, s72, 10")
a(f"s_add_u32 s74, s72, {KF - 8192}")
a(f"s_add_u32 s75, s74, {VF - KF}")
for (src, dst, n) in (("s72", 32768, 8), ("s74", 0, 16), ("s75", 16384, 16)):
    for g in range(n // 4):
        a(f"s_mov_b32 m0, {STG + dst + g*4096}")
        a("s_nop 0")
        for i in range(4): a(f"buffer_load_dwordx4 v{LN16}, {S4(WS_)}, {src} offen offset:{i*1024} lds")
        a(f"s_add_u32 {src}, {src}, 4096")
a("s_waitcnt vmcnt(0)")
a.label(".Lnostage")
vq.drain()
a(f"s_mul_i32 s72, s{S_RT}, {2*118*1024}")
a(f"s_add_u32 s72, s72, {AF}")
a("s_lshl_b32 s73, s87, 10")
for rt in range(2):
    a(f"s_add_u32 s{76+4*rt}, s34, s72")
    a(f"s_addc_u32 s{77+4*rt}, s35, 0")
    a(f"s_mov_b32 s{78+4*rt}, s73")
    a(f"s_mov_b32 s{79+4*rt}, 0x00020000")
    a(f"s_add_u32 s72, s72, {118*1024}")
a(f"s_mul_i32 s89, s14, 24576")
a("s_cmp_ge_u32 s14, 2")
a(f"s_cselect_b32 s72, {114688 - 49152}, 0")
a("s_add_u32 s89, s89, s72")
a("s_barrier")
stamp(4)
a(f"s_lshl_b32 s91, s{S_CT}, 7")
a("s_add_u32 s91, s91, s86")
a("s_lshl_b32 s91, s91, 2")
a(f"s_add_u32 s91, s91, {FLG + 0x4000}")
a("s_mov_b32 s84, 0x3fffff")
poll_flags(91, 84, T+2, "fw")
tick("fwOK")
for k in range(NPRE): w2load(k)
tick("w2iss")
a(f"s_lshl_b32 s91, s{S_RT}, 7")
a(f"s_add_u32 s91, s91, {FLG + 0x2000}")
a("s_mov_b32 s84, -1")
poll_flags(91, 84, T+2, "fb")
vq.drain()
stamp(7)
a("s_lshl_b32 s72, s86, 10")
a(f"v_add_u32 v{T+4}, s72, v{LN16}")
a(f"v_add_u32 v{T+5}, s89, v{LN16}")
def hdma(k):
    sl = k % NSL
    for rt in range(2):
        a(f"s_add_u32 m0, s89, {sl*2048 + rt*1024}")
        a("s_nop 0")
        a(f"buffer_load_dwordx4 v{T+4}, s[{76+4*rt}:{79+4*rt}], s93 offen lds")
    a("s_add_u32 s93, s93, 1024")
    a(f"s_cmp_eq_u32 s93, {22*1024}")
    a("s_cselect_b32 s93, 0, s93")
    vq.issue(("h", k), 2)
def hreads(k):
    return [f"ds_read_b128 {vr(HB+(k&1)*8+rt*4,4)}, v{T+5} offset:{(k % NSL)*2048 + rt*1024}" for rt in range(2)]
HW1 = int(os.environ.get("HW1", "0"))
for k in range(NSL):
    hdma(k)
    if k == HW1-1: vq.wait(("h", k))
GV = VX
a(f"v_and_b32 v{T+2}, 31, v{L}")
a(f"v_lshlrev_b32 v{T+2}, 2, v{T+2}")
a(f"s_lshl_b32 s72, s{S_RT}, 8")
a(f"s_add_u32 s72, s72, {GOFF}")
a(f"buffer_load_dword v{GV}, v{T+2}, {S4(WS_)}, s72 offen")
a(f"buffer_load_dword v{GV+1}, v{T+2}, {S4(WS_)}, s72 offen offset:128")
vq.issue("g", 2)
vq.wait(("h", 0))
for l in hreads(0): a(l)
PUBC_AT = int(os.environ.get("PUBC_AT", "0"))
for k in range(22):
    if k < 21: vq.wait(("h", k+1), ("w", k))
    else: vq.wait(("w", k))
    a("s_waitcnt lgkmcnt(0)")
    if k in (0, 1, 4, 8, 12, 16, 20): tick(f"D{k}")
    f = W2R + (k % NPRE)*8
    m = []
    for nt in range(2):
        for rt in range(2):
            acc = vr(DACC+(nt*2+rt)*16, 16)
            m.append(f"v_mfma_f32_32x32x16_bf16 {acc}, {vr(f+4*nt,4)}, {vr(HB+(k&1)*8+4*rt,4)}, {'0' if k == 0 else acc}")
    for l in inter(m, hreads(k+1) if k < 21 else []): a(l)
    if k + NSL < 22: hdma(k + NSL)
    if k + NPRE < 22: w2load(k + NPRE)
a("s_waitcnt vmcnt(0)")
for i in range(2):
    a(f"v_sub_f32 v{GV+i}, 1.0, v{GV+i}")
    a(f"v_cvt_pk_bf16_f32 v{GV+i}, v{GV+i}, v{GV+i}")
    a(f"v_lshlrev_b32 v{GV+i}, 16, v{GV+i}")
a("s_mov_b32 s90, s89")
a("s_branch .Lreduce")

a.label(".Lcompute")
XR = 0; ACC = 128; WFR = 176; XA = 212; XA2 = 216; WA = 232; TMP = 224; WFA = 235; WFD = 236
a(f"v_mov_b32 v{L}, v0")
a(f"v_and_b32 v{TMP}, 31, v{L}")
a(f"v_lshrrev_b32 v{TMP+1}, 5, v{L}")
a(f"v_bfe_u32 v{TMP+2}, v{L}, 1, 3")
a("s_lshl_b32 s72, s3, 12")
for sp in range(4):
    a(f"v_add_u32 v{TMP+3}, {2*sp}, v{TMP+1}")
    a(f"v_xor_b32 v{TMP+3}, v{TMP+3}, v{TMP+2}")
    a(f"v_lshlrev_b32 v{TMP+3}, 4, v{TMP+3}")
    a(f"v_lshl_add_u32 v{TMP+3}, v{TMP}, 7, v{TMP+3}")
    a(f"v_add_u32 v{XA+sp}, s72, v{TMP+3}")
    a(f"v_add_u32 v{XA2+sp}, {2*SLOT}, v{XA+sp}")
a(f"v_lshlrev_b32 v{WA}, 9, v{TMP+1}")
a(f"v_bfe_u32 v{TMP+3}, v{L}, 2, 2")
a(f"v_lshl_add_u32 v{WA}, v{TMP+3}, 6, v{WA}")
a(f"v_bfe_u32 v{TMP+3}, v{L}, 4, 1")
a(f"v_lshl_add_u32 v{WA}, v{TMP+3}, 5, v{WA}")
a(f"v_and_b32 v{TMP+3}, 3, v{L}")
a(f"v_lshl_add_u32 v{WA}, v{TMP+3}, 3, v{WA}")
a(f"v_add_u32 v{WA+1}, 0x10000, v{WA}")
a(f"v_add_u32 v{WA+2}, 0x20000, v{WA}")
a(f"v_lshlrev_b32 v{LN16}, 4, v{L}")
a("s_waitcnt lgkmcnt(0)")
srd(a, WS_, 34, WSBYTES)
srd(a, OUT_, 30, 2048*1024)
srd(a, DBG_, 32, 256)
srd(a, GT_, 28, 1024)
a("s_or_b32 s72, s2, s3")
a("s_cmp_lg_u32 s72, 0")
a("s_cbranch_scc1 .Lnononce")
a("s_memrealtime s[72:73]")
a("s_waitcnt lgkmcnt(0)")
a("s_or_b32 s72, s72, 1")
a(f"v_mov_b32 v{TMP}, 0")
a(f"v_mov_b32 v{TMP+1}, s72")
a("s_mov_b64 exec, 1")
a(f"buffer_store_dword v{TMP+1}, v{TMP}, {S4(DBG_)}, 0 offen{SC}")
a("s_mov_b64 exec, -1")
a("s_mov_b32 s72, 0")
a("s_mov_b32 s73, 0")
a.label(".Lnononce")

srd(a, W1_, 24, 512*2752)
a(f"s_lshl_b32 s83, s{S_IDX}, 2")
a("s_add_u32 s83, s83, s14")
a("s_cmp_lt_u32 s83, 86")
a(f"s_cselect_b32 s{WT_}, s26, s20")
a(f"s_cselect_b32 s{WT_+1}, s27, s21")
a(f"s_mov_b32 s{WT_+2}, {1376*1024}")
a(f"s_cselect_b32 s{WT_+2}, s{WT_+2}, {512*1024}")
a(f"s_mov_b32 s{WT_+3}, 0x00020000")
a("s_cselect_b32 s84, 0, 86")
a("s_sub_u32 s84, s83, s84")
a("s_lshl_b32 s84, s84, 14")
a(f"s_lshl_b32 s85, s{S_XCD}, 7")
a("s_add_u32 s84, s84, s85")
a(f"v_lshrrev_b32 v1, 2, v{L}")
a(f"v_and_b32 v2, 3, v{L}")
a("v_lshlrev_b32 v8, 10, v1")
a("v_lshl_add_u32 v8, v2, 4, v8")
a("s_lshl_b32 s85, s14, 11")
a(f"s_add_u32 s85, s85, {BOUNCE}")
a(f"v_mov_b32 v{WFD}, v8")
a("s_mov_b32 s86, s84")
a("s_mov_b32 s87, s85")
if PFW1:
    a(f"s_lshl_b32 s72, s{S_ROT}, 6")
    a(f"v_add_u32 v3, s72, v{L}")
    a("v_mul_u32_u24 v3, 2752, v3")
    a(f"s_mul_i32 s72, s{S_J}, 192")
    a("s_lshl_b32 s73, s14, 6")
    a("s_add_u32 s72, s72, s73")
    a(f"s_cmp_lt_u32 s{S_J}, 15")
    a("s_cselect_b32 s72, s72, 0x40000000")
    a(f"v_mov_b32 v{WFD+1}, v3")
    a("s_mov_b32 s88, s72")
a(f"v_lshrrev_b32 v9, 5, v{L}")
a("v_lshlrev_b32 v9, 8, v9")
a(f"v_bfe_u32 v4, v{L}, 2, 2")
a("v_lshl_add_u32 v9, v4, 6, v9")
a(f"v_bfe_u32 v4, v{L}, 4, 1")
a("v_lshl_add_u32 v9, v4, 5, v9")
a("v_lshl_add_u32 v9, v2, 3, v9")
a("v_add_u32 v9, s85, v9")
a(f"s_mul_i32 s84, s{S_XCD}, {2*118}")
a("s_add_u32 s84, s84, s83")
a("s_lshl_b32 s84, s84, 10")
a(f"s_add_u32 s84, s84, {WF}")
a("s_cmp_lt_u32 s83, 118")
a("s_cselect_b32 s84, s84, 0x40000000")
a(f"s_add_u32 s85, s84, {118*1024}")
a(f"v_mov_b32 v{WFA}, v9")

def wread(dst, addr):
    return f"ds_read_b64_tr_b16 {vr(dst,2)}, v{WA + (addr >> 16)} offset:{addr & 0xffff}"
def reads_A(t):
    p, sp = t >> 2, t & 3
    slot = p % 4
    r = [f"ds_read_b128 {vr(XR+4*t,4)}, v{(XA if slot < 2 else XA2)+sp} offset:{(slot & 1)*SLOT}"]
    for b in range(3):
        for rd in range(2):
            r.append(wread(WFR + (t % 3)*12 + b*4 + rd*2, slot*SLOT + 16384 + b*4096 + (4*sp+rd)*256))
    return r
def reads_B(t):
    p, sp = t >> 2, t & 3
    return [wread(WFR + (t % 3)*12 + b*4 + rd*2, BH[p] + b*4096 + (4*sp+rd)*256) for b in range(3) for rd in range(2)]
def mf(t, kinds, first):
    m = []
    for b, kd in enumerate(kinds):
        acc = vr(ACC+16*b, 16); x = vr(XR+4*t, 4); w = vr(WFR+(t % 3)*12+b*4, 4)
        c = "0" if first else acc
        if kd == 'T': m.append(f"v_mfma_f32_32x32x16_bf16 {acc}, {w}, {x}, {c}")
        else:         m.append(f"v_mfma_f32_32x32x16_bf16 {acc}, {x}, {w}, {c}")
    return m
lq = Q("lgkmcnt", 15)
a(f"s_lshl_b32 s76, s{S_J}, 4")
a(f"s_add_u32 s76, s76, s{S_RB}")
a("s_lshl_b32 s76, s76, 2")
a("s_add_u32 s76, s76, s3")
a("s_lshl_b32 s76, s76, 2")
a(f"s_add_u32 s76, s76, {FLG}")
a(f"s_lshl_b32 s77, s{S_XCD}, 7")
a("s_add_u32 s77, s77, s83")
a("s_lshl_b32 s77, s77, 2")
a(f"s_add_u32 s77, s77, {FLG + 0x4000}")
a("s_barrier")
stamp(1)
for tt in (0, 1):
    for l in reads_A(tt): a(l)
    lq.issue(tt, 7)
if PFW1: a(f"buffer_load_dword v{WFD+2}, v{WFD+1}, {S4(W1_)}, s88 offen")
a("s_mov_b32 m0, s87")
a("s_nop 0")
a(f"buffer_load_dwordx4 v{WFD}, {S4(WT_)}, s86 offen lds")
a("s_add_u32 m0, s87, 960")
a("s_nop 0")
a(f"buffer_load_dwordx4 v{WFD}, {S4(WT_)}, s86 offen offset:64 lds")
for t in range(32):
    lq.wait(t)
    sp = t & 3
    nxt = []; tags = []
    if sp < 2:
        nxt = reads_A(t+2); tags = [(t+2, 7)]
    elif sp == 3 and t < 31:
        tick(f"A{t>>2}pre")
        a("s_barrier")
        tick(f"A{t>>2}post")
        nxt = reads_A(t+1) + reads_A(t+2); tags = [(t+1, 7), (t+2, 7)]
    for l in inter(mf(t, "TTN", t == 0), nxt): a(l)
    for tg, n in tags: lq.issue(tg, n)
    if t == 14:
        a("s_waitcnt vmcnt(0)")
        for i in range(4):
            a(f"ds_read_b64_tr_b16 {vr(WFD+2*i,2)}, v{WFA} offset:{512*i}")
        lq.issue("wf", 4)
    if t == 26:
        a("s_waitcnt vmcnt(0)")
        wpublish(77, TMP+2)
    if t == 16:
        lq.wait("wf")
        a(f"buffer_store_dwordx4 {vr(WFD,4)}, v{LN16}, {S4(WS_)}, s84 offen{SC}")
        a(f"buffer_store_dwordx4 {vr(WFD+4,4)}, v{LN16}, {S4(WS_)}, s85 offen{SC}")
        tick("wfdone")
    if t == 4:
        a(f"v_mov_b32 v{TMP}, 0")
        a(f"buffer_load_dword v{TMP+1}, v{TMP}, {S4(DBG_)}, 0 offen{SC}")
    if t == 13:
        a("s_cmp_lg_u32 s3, 0")
        a("s_cbranch_scc1 .Lnn2")
        a(f"s_mov_b32 s74, {SPIN}")
        a.label(".Lnonce_poll")
        a("s_waitcnt vmcnt(0)")
        a(f"v_readfirstlane_b32 s72, v{TMP+1}")
        a("s_cmp_lg_u32 s72, 0")
        a("s_cbranch_scc1 .Lnonce_ok")
        a("s_sleep 1")
        a(f"buffer_load_dword v{TMP+1}, v{TMP}, {S4(DBG_)}, 0 offen{SC}")
        a("s_sub_u32 s74, s74, 1")
        a("s_cmp_lg_u32 s74, 0")
        a("s_cbranch_scc1 .Lnonce_poll")
        a.label(".Lnonce_ok")
        a(f"v_mov_b32 v{TMP}, {NONCE_LDS}")
        a(f"ds_write_b32 v{TMP}, v{TMP+1}")
        a(f"v_mov_b32 v{TMP}, {CNT_LDS}")
        a(f"v_mov_b32 v{TMP+1}, 0")
        a(f"ds_write_b32 v{TMP}, v{TMP+1}")
        a("s_waitcnt lgkmcnt(0)")
        a.label(".Lnn2")
        a("s_waitcnt vmcnt(0)")
    if t == 16:
        a(f"v_mov_b32 v{TMP}, {NONCE_LDS}")
        a(f"ds_read_b32 v{TMP+1}, v{TMP}")
        lq.issue("n", 1)
    if t == 18:
        lq.wait("n")
        a(f"v_readfirstlane_b32 s{S_NONCE}, v{TMP+1}")
assert not lq.q, lq.q
stamp(2)
a(f"s_lshl_b32 s72, s{S_RB}, 2")
a("s_add_u32 s72, s72, s3")
a(f"s_lshl_b32 s73, s{S_J}, 7")
a("s_add_u32 s72, s72, s73")
a("s_lshl_b32 s72, s72, 10")
a(f"v_add_u32 v{TMP}, s72, v{LN16}")
a(f"v_add_u32 v{TMP+1}, 0x10000, v{TMP}")
a(f"v_and_b32 v{TMP+2}, 15, v{L}")
a(f"v_lshrrev_b32 v{TMP+3}, 5, v{L}")
a(f"v_lshl_add_u32 v{TMP+2}, v{TMP+3}, 4, v{TMP+2}")
a(f"v_lshlrev_b32 v{TMP+2}, 4, v{TMP+2}")
a(f"v_bfe_u32 v{TMP+3}, v{L}, 4, 1")
a(f"v_lshl_add_u32 v{TMP+2}, v{TMP+3}, 16, v{TMP+2}")
a(f"v_add_u32 v{TMP+2}, s72, v{TMP+2}")
a(f"s_mov_b32 s73, {CSCALE}")
a(f"s_mov_b32 s74, {KF}")
a(f"s_mov_b32 s75, {VF}")
a("s_nop 3")
for b in (1, 2, 0):
    r = ACC + 16*b
    if b == 0:
        for i in range(16): a(f"v_mul_f32 v{r+i}, s73, v{r+i}")
    for i in range(8): a(f"v_cvt_pk_bf16_f32 v{r+i}, v{r+2*i}, v{r+2*i+1}")
def qkv_stores(fl, so_k, so_v, with_q):
    for b in (1, 2, 0):
        r = ACC + 16*b
        if b == 0 and not with_q: continue
        if b < 2:
            so = "0" if b == 0 else so_k
            a(f"buffer_store_dwordx4 {vr(r,4)}, v{TMP}, {S4(WS_)}, {so} offen{fl}")
            a(f"buffer_store_dwordx4 {vr(r+4,4)}, v{TMP+1}, {S4(WS_)}, {so} offen{fl}")
        else:
            a(f"buffer_store_dwordx4 {vr(r,4)}, v{TMP+2}, {S4(WS_)}, {so_v} offen{fl}")
            a(f"buffer_store_dwordx4 {vr(r+4,4)}, v{TMP+2}, {S4(WS_)}, {so_v} offen offset:512{fl}")
if LOCAL:
    a(f"s_lshr_b32 s72, s{S_RB}, 1")
    a("s_cmp_lg_u32 s72, 3")
    a("s_cbranch_scc1 .Lnohalo")
    a(f"s_mov_b32 s72, {K2F}")
    a(f"s_mov_b32 s73, {V2F}")
    qkv_stores(SC, "s72", "s73", False)
    a.label(".Lnohalo")
    a("s_cmp_eq_u32 s88, 1")
    a("s_cbranch_scc0 .Lqkv_safe")
    qkv_stores("", "s74", "s75", True)
    a("s_branch .Lqkv_done")
    a.label(".Lqkv_safe")
qkv_stores(SC, "s74", "s75", True)
a.label(".Lqkv_done")
a(f"s_cmp_eq_u32 s{S_J}, 15")
a("s_cbranch_scc1 .Lgate")
tick("epiA")
a("s_barrier")
tick("B01")
for tt in (0, 1):
    for l in reads_B(tt): a(l)
    lq.issue(tt, 6)
for t in range(32):
    lq.wait(t)
    if t == PUBA_T:
        a("s_waitcnt vmcnt(0)")
        tick("pubA")
        wpublish(76, TMP, dual=True)
    if t == 14:
        tick("B23pre")
        a("s_barrier")
        tick("B23post")
    nxt = reads_B(t+2) if t < 30 else []
    for l in inter(mf(t, "TTT", t == 0), nxt): a(l)
    if t < 30: lq.issue(t+2, 6)
stamp(3)
a(f"s_lshl_b32 s72, s{S_RB}, 2")
a("s_add_u32 s72, s72, s3")
a("s_mul_i32 s72, s72, 118")
a(f"s_mul_i32 s73, s{S_J}, 6")
a("s_add_u32 s72, s72, s73")
a("s_lshl_b32 s72, s72, 10")
a(f"s_add_u32 s72, s72, {AF}")
a("s_add_u32 s73, s72, 4096")
a("s_nop 5")
for b in range(3):
    r = ACC + 16*b
    for i in range(8): a(f"v_cvt_pk_bf16_f32 v{r+i}, v{r+2*i}, v{r+2*i+1}")
    for i in range(8): a(f"v_pk_max_i16 v{r+i}, v{r+i}, 0")
    so = "s72" if b < 2 else "s73"
    o = (b & 1)*2048
    a(f"buffer_store_dwordx4 {vr(r,4)}, v{LN16}, {S4(WS_)}, {so} offen offset:{o}{SC}")
    a(f"buffer_store_dwordx4 {vr(r+4,4)}, v{LN16}, {S4(WS_)}, {so} offen offset:{o+1024}{SC}")
    if b == 0:
        a(f"s_cmp_eq_u32 s{S_J}, 14")
        a("s_cbranch_scc1 .Lattn")
a("s_branch .Lattn")
a.label(".Lgate")
a(f"s_lshl_b32 s72, s3, 10")
a(f"s_add_u32 s72, s72, {BOUNCE}")
a("s_mov_b32 m0, s72")
a("s_nop 0")
a(f"buffer_load_dwordx4 v{LN16}, {S4(GT_)}, 0 offen lds")
a("s_barrier")
a("s_waitcnt vmcnt(0)")
a("s_mov_b32 s75, s72")
wpublish(76, TMP, dual=True)
a("s_mov_b32 s72, s75")
a("s_barrier")
a(f"v_lshrrev_b32 v{TMP}, 5, v{L}")
a(f"v_lshlrev_b32 v{TMP}, 4, v{TMP}")
a(f"v_add_u32 v{TMP}, s72, v{TMP}")
a(f"s_mov_b32 s73, s{S_ROT}")
for p in range(8):
    a("s_lshl_b32 s74, s73, 7")
    a(f"v_add_u32 v{TMP+1}, s74, v{TMP}")
    gb = ACC + 16 + (p & 1)*16
    for sp in range(4):
        a(f"ds_read_b128 {vr(gb+4*sp,4)}, v{TMP+1} offset:{sp*32}")
    a("s_add_u32 s73, s73, 1")
    a("s_and_b32 s73, s73, 7")
    a("s_waitcnt lgkmcnt(0)")
    for sp in range(4):
        t = 4*p+sp
        a(f"v_mfma_f32_32x32x16_bf16 {vr(ACC,16)}, {vr(gb+4*sp,4)}, {vr(XR+4*t,4)}, {'0' if t == 0 else vr(ACC,16)}")
a("s_nop 15")
z = ACC
a(f"v_cvt_pk_bf16_f32 v{z}, v{z}, v{z}")
a(f"v_lshlrev_b32 v{z}, 16, v{z}")
a(f"v_mul_f32 v{z}, 0xbfb8aa3b, v{z}")
a(f"v_exp_f32 v{z}, v{z}")
a("s_nop 0")
a(f"v_add_f32 v{z}, 1.0, v{z}")
a(f"v_rcp_f32 v{z}, v{z}")
a("s_nop 0")
a(f"v_cvt_pk_bf16_f32 v{z}, v{z}, v{z}")
a(f"v_lshlrev_b32 v{z}, 16, v{z}")
a(f"s_lshl_b32 s72, s{S_RB}, 7")
a("s_lshl_b32 s73, s3, 5")
a("s_add_u32 s72, s72, s73")
a("s_lshl_b32 s72, s72, 2")
a(f"s_add_u32 s72, s72, {GOFF}")
a(f"v_lshlrev_b32 v{TMP}, 2, v{L}")
a("s_mov_b32 exec_hi, 0")
a(f"buffer_store_dword v{z}, v{TMP}, {S4(WS_)}, s72 offen{SC}")
a("s_mov_b64 exec, -1")

a.label(".Lattn")
KK = 0; QQ = 40; VV = 48; SS = 64; CD = 96; CF = 112; NM = 176; PP = 208; OO = 128; MM = 160
VAD = 240; KAD = 241; T0 = 242
a("s_lshl_b32 s72, s3, 11")
a(f"s_add_u32 s72, s72, {STG}")
a(f"v_add_u32 v{KAD}, s72, v{LN16}")
a(f"v_and_b32 v2, 15, v{L}")
a(f"v_lshrrev_b32 v3, 5, v{L}")
a("v_lshl_add_u32 v2, v3, 4, v2")
a("v_lshlrev_b32 v2, 4, v2")
a(f"v_add_u32 v{VAD}, s72, v2")
for i in range(16): a(f"v_mov_b32 v{VV+i}, 0x3f803f80")
a(f"v_and_b32 v2, 31, v{L}")
a("v_lshlrev_b32 v3, 2, v3")
a(f"v_sub_u32 v{T0}, v2, v3")
a(f"v_mov_b32 v{T0+1}, {NINF}")
for r in range(16):
    br = (r & 3) + 8*(r >> 2)
    a(f"v_cmp_le_i32 vcc, {br}, v{T0}")
    a("s_nop 1")
    a(f"v_cndmask_b32 v{CD+r}, v{T0+1}, 0, vcc")
    a(f"v_cndmask_b32 v{CF+r}, 0, v{T0+1}, vcc")
for i in range(4): a(f"v_mov_b32 v{MM+i}, {NINF}")
a("s_lshl_b32 s15, s3, 1")
a("s_sub_u32 s15, 8, s15")
a(f"s_cmp_eq_u32 s{S_QB}, 0")
a("s_cselect_b32 s15, s15, 0")
a(f"s_lshl_b32 s76, s{S_RB}, 2")
a("s_add_u32 s76, s76, s3")
a("s_lshl_b32 s76, s76, 4")
a(f"s_add_u32 s76, s76, s{S_J}")
a("s_lshl_b32 s76, s76, 2")
a(f"s_add_u32 s76, s76, {FLG + 0x2000}")
a("s_waitcnt vmcnt(0)")
wpublish(76, T0)
stamp(5)
a("s_barrier")
stamp(4)
a(f"ds_read_b128 {vr(QQ+4,4)}, v{KAD} offset:{32768+1024}")
a(f"ds_read_b128 {vr(KK+36,4)}, v{KAD} offset:{9*1024}")
a(f"ds_read_b128 {vr(QQ,4)}, v{KAD} offset:32768")
for v in range(8, -1, -1):
    a(f"ds_read_b128 {vr(KK+4*v,4)}, v{KAD} offset:{v*1024}")
units = [(1, 9)]
for v in range(8, 0, -1): units += [(0, v), (1, v)]
units += [(0, 0)]
def edge(task, v):
    if (task, v) in ((1, 9), (0, 8)): return CD
    if (task, v) in ((1, 1), (0, 0)): return CF
    return None
def smf(task, v, c):
    return f"v_mfma_f32_32x32x16_bf16 {vr(SS+16*task,16)}, {vr(KK+4*v,4)}, {vr(QQ+4*task,4)}, {c}"
def vread(v):
    b = VV + 8*(v & 1)
    a("s_mov_b32 exec_lo, 0xffff")
    a("s_mov_b32 exec_hi, 0xffff")
    a(f"ds_read_b128 {vr(b,4)}, v{VAD} offset:{16384+v*1024}")
    a(f"ds_read_b128 {vr(b+4,4)}, v{VAD} offset:{16384+v*1024+512}")
    a("s_mov_b64 exec, -1")
a("s_waitcnt lgkmcnt(8)")
def c1(u):
    e = edge(*u); return vr(e, 16) if e is not None else "0"
a(smf(*units[0], c1(units[0])))
a("s_waitcnt lgkmcnt(0)")
a("s_nop 7")
for i, (task, v) in enumerate(units):
    if i + 1 < len(units): a(smf(*units[i+1], c1(units[i+1])))
    a("s_nop 2")
    b = SS + 16*task
    for k in range(8):
        a(f"v_max3_f32 v{MM+2*task+(k&1)}, v{b+2*k}, v{b+2*k+1}, v{MM+2*task+(k&1)}")
    if task == 1 and v in (8, 6, 4, 2):
        a(f"s_cmp_eq_u32 s15, {v}")
        a("s_cbranch_scc1 .Lp1done")
a.label(".Lp1done")
vread(9)
for task in range(2):
    m = MM + 2*task
    a(f"v_max_f32 v{m}, v{m}, v{m+1}")
    a(f"v_mov_b32 v{m+1}, v{m}")
a("s_nop 1")
for task in range(2):
    m = MM + 2*task
    a(f"v_permlane32_swap_b32 v{m}, v{m+1}")
a("s_nop 1")
for task in range(2):
    m = MM + 2*task
    a(f"v_max_f32 v{m}, v{m}, v{m+1}")
for task in (1, 0):
    for i in range(16): a(f"v_sub_f32 v{NM+16*task+i}, 0, v{MM+2*task}")
tick("p1end")
a("s_nop 1")
a(smf(*units[0], vr(NM+16, 16)))
a("s_nop 11")
first = {0: True, 1: True}
for i, (task, v) in enumerate(units):
    if i + 1 < len(units):
        nt_, nv = units[i+1]
        a(smf(nt_, nv, vr(NM+16*nt_, 16)))
    newv = (task, v) == (1, 9) or task == 0
    b = SS + 16*task; p = PP + 8*task
    e = edge(task, v)
    if e is not None:
        for k in range(16): a(f"v_add_f32 v{b+k}, v{b+k}, v{e+k}")
    for k in range(16): a(f"v_exp_f32 v{b+k}, v{b+k}")
    a("s_nop 0")
    for k in range(8): a(f"v_cvt_pk_bf16_f32 v{p+k}, v{b+2*k}, v{b+2*k+1}")
    if newv:
        a("s_waitcnt lgkmcnt(0)")
    else:
        a("s_nop 0")
    vb = VV + 8*(v & 1)
    o = vr(OO+16*task, 16)
    a(f"v_mfma_f32_32x32x16_bf16 {o}, {vr(vb,4)}, {vr(p,4)}, {'0' if first[task] else o}")
    a(f"v_mfma_f32_32x32x16_bf16 {o}, {vr(vb+4,4)}, {vr(p+4,4)}, {o}")
    first[task] = False
    if newv and v > 0: vread(v-1)
    if task == 1 and v in (8, 6, 4, 2):
        a(f"s_cmp_eq_u32 s15, {v}")
        a("s_cbranch_scc1 .Lp2done")
a.label(".Lp2done")
a(f"s_lshl_b32 s72, s{S_QB}, 3")
a("s_lshl_b32 s73, s3, 1")
a("s_add_u32 s72, s72, s73")
a("s_mul_i32 s72, s72, 118")
a(f"s_add_u32 s72, s72, s{S_HEAD}")
a("s_lshl_b32 s72, s72, 10")
a(f"s_add_u32 s72, s72, {AF + 86*1024}")
a(f"s_add_u32 s73, s72, {118*1024}")
a("s_waitcnt lgkmcnt(0)")
a(f"v_mov_b32 v{T0}, {CNT_LDS}")
a(f"v_mov_b32 v{T0+1}, 1")
a("s_mov_b64 exec, 1")
a(f"ds_add_u32 v{T0}, v{T0+1}")
a("s_mov_b64 exec, -1")
a("s_nop 4")
for task in (1, 0):
    o = OO + 16*task
    a(f"v_rcp_f32 v{MM}, v{o+8}")
    a("s_nop 0")
    for i in range(8): a(f"v_mul_f32 v{o+i}, v{o+i}, v{MM}")
    for i in range(4): a(f"v_cvt_pk_bf16_f32 v{o+i}, v{o+2*i}, v{o+2*i+1}")
    a(f"buffer_store_dwordx4 {vr(o,4)}, v{LN16}, {S4(WS_)}, s{72+task} offen{SC}")
stamp(6)
EW = 0; EH = 64
a(f"s_mul_i32 s72, s{S_CT}, {2*118}")
a("s_lshl_b32 s73, s3, 3")
a("s_add_u32 s72, s72, s73")
a("s_lshl_b32 s72, s72, 10")
a(f"s_add_u32 s72, s72, {WF + 86*1024}")
a(f"v_add_u32 v{T}, s72, v{LN16}")
a(f"v_add_u32 v{T+1}, {118*1024}, v{T}")
a(f"s_mul_i32 s72, s{S_RT}, {2*118*1024}")
a(f"s_add_u32 s72, s72, {AF}")
for rt in range(2):
    a(f"s_add_u32 s{76+4*rt}, s34, s72")
    a(f"s_addc_u32 s{77+4*rt}, s35, 0")
    a(f"s_mov_b32 s{78+4*rt}, {118*1024}")
    a(f"s_mov_b32 s{79+4*rt}, 0x00020000")
    a(f"s_add_u32 s72, s72, {118*1024}")
a(f"s_lshl_b32 s91, s{S_QB}, 2")
a("s_add_u32 s91, s91, s3")
a("s_lshl_b32 s91, s91, 5")
a(f"s_add_u32 s91, s91, s{S_HEAD}")
a("s_lshl_b32 s91, s91, 2")
a(f"s_add_u32 s91, s91, {FLG + 0x3000}")
a(f"v_mov_b32 v{T+2}, 0")
a(f"v_mov_b32 v{T+3}, s{S_NONCE}")
a("s_waitcnt vmcnt(0)")
a("s_mov_b64 exec, 1")
a(f"buffer_store_dword v{T+3}, v{T+2}, {S4(WS_)}, s91 offen{SC}")
a("s_mov_b64 exec, -1")
tick("pubC")
a(f"s_lshl_b32 s91, s{S_CT}, 7")
a("s_lshl_b32 s72, s3, 3")
a("s_add_u32 s91, s91, s72")
a("s_lshl_b32 s91, s91, 2")
a(f"s_add_u32 s91, s91, {FLG + 0x4000 + 86*4}")
a("s_mov_b32 s84, 0xff")
a("s_mov_b32 s85, 0")
a(f"v_lshlrev_b32 v{T+2}, 2, v{L}")
poll_flags(91, 84, T+2, "fwe")
for k in range(8):
    if k == 4:
        a(f"v_add_u32 v{T}, 4096, v{T}")
        a(f"v_add_u32 v{T+1}, 4096, v{T+1}")
    a(f"buffer_load_dwordx4 {vr(EW+8*k,4)}, v{T}, {S4(WS_)}, 0 offen offset:{(k%4)*1024}")
    a(f"buffer_load_dwordx4 {vr(EW+8*k+4,4)}, v{T+1}, {S4(WS_)}, 0 offen offset:{(k%4)*1024}")
a(f"s_lshl_b32 s91, s{S_RT}, 7")
a(f"s_add_u32 s91, s91, {FLG + 0x2000}")
a(f"s_lshl_b32 s92, s{S_RT}, 7")
a(f"s_add_u32 s92, s92, {FLG + 0x3000}")
a("s_lshl_b32 s72, s3, 3")
a("s_lshl_b32 s84, 0xff, s72")
a("s_mov_b32 s85, 0")
a(f"v_lshlrev_b32 v{T+2}, 2, v{L}")
a(f"s_mov_b32 s74, {SPIN}")
a.label(".Lfc_poll")
a(f"buffer_load_dword v{T+3}, v{T+2}, {S4(WS_)}, s92 offen{SC}")
a(f"buffer_load_dword v{T+4}, v{T+2}, {S4(WS_)}, s91 offen{SC}")
a("s_waitcnt vmcnt(0)")
a(f"v_cmp_ne_u32 vcc, s{S_NONCE}, v{T+3}")
a("s_and_b64 s[72:73], vcc, s[84:85]")
a(f"v_cmp_ne_u32 vcc, s{S_NONCE}, v{T+4}")
a("s_and_b32 s73, vcc_lo, 0x80008000")
a("s_or_b32 s72, s72, s73")
a("s_cbranch_scc0 .Lfc_ok")
a("s_sleep 1")
a("s_sub_u32 s74, s74, 1")
a("s_cmp_lg_u32 s74, 0")
a("s_cbranch_scc1 .Lfc_poll")
a.label(".Lfc_ok")
stamp(7)
a("s_lshl_b32 s72, s3, 13")
a(f"s_add_u32 s72, s72, {86*1024}")
a(f"v_add_u32 v{T}, s72, v{LN16}")
for k in range(8):
    if k == 4: a(f"v_add_u32 v{T}, 4096, v{T}")
    a(f"buffer_load_dwordx4 {vr(EH+8*k,4)}, v{T}, s[76:79], 0 offen offset:{(k%4)*1024}")
    a(f"buffer_load_dwordx4 {vr(EH+8*k+4,4)}, v{T}, s[80:83], 0 offen offset:{(k%4)*1024}")
a(f"v_and_b32 v{T+2}, 31, v{L}")
a(f"v_lshlrev_b32 v{T+2}, 2, v{T+2}")
a(f"s_lshl_b32 s72, s{S_RT}, 8")
a(f"s_add_u32 s72, s72, {GOFF}")
a(f"buffer_load_dword v{GV}, v{T+2}, {S4(WS_)}, s72 offen")
a(f"buffer_load_dword v{GV+1}, v{T+2}, {S4(WS_)}, s72 offen offset:128")
for k in range(8):
    a(f"s_waitcnt vmcnt({2*(7-k)+2})")
    for nt in range(2):
        for rt in range(2):
            acc = vr(DACC+(nt*2+rt)*16, 16)
            a(f"v_mfma_f32_32x32x16_bf16 {acc}, {vr(EW+8*k+4*nt,4)}, {vr(EH+8*k+4*rt,4)}, {'0' if k == 0 else acc}")
a("s_waitcnt vmcnt(0)")
a(f"s_lshl_b32 s90, s3, 14")
a(f"s_add_u32 s90, s90, {EAREA}")
a(f"v_mov_b32 v{T}, {CNT_LDS}")
a(f"s_mov_b32 s74, {SPIN}")
a.label(".Lcnt_poll")
a(f"ds_read_b32 v{T+1}, v{T}")
a("s_waitcnt lgkmcnt(0)")
a(f"v_readfirstlane_b32 s72, v{T+1}")
a("s_cmp_eq_u32 s72, 4")
a("s_cbranch_scc1 .Lreduce")
a("s_sub_u32 s74, s74, 1")
a("s_cmp_lg_u32 s74, 0")
a("s_cbranch_scc1 .Lcnt_poll")

a.label(".Lreduce")
stamp(8)
a(f"v_and_b32 v1, 31, v{L}")
a(f"v_lshrrev_b32 v3, 5, v{L}")
a(f"v_and_b32 v6, 15, v{L}")
a("v_lshlrev_b32 v1, 8, v1")
a("v_add_u32 v1, s90, v1")
a("v_xor_b32 v3, v3, v6")
a("s_nop 4")
for nt in range(2):
    for rt in range(2):
        r = DACC + (nt*2+rt)*16
        for i in range(16): a(f"v_mul_f32 v{r+i}, v{r+i}, v{GV+rt}")
for s in range(8):
    a(f"v_xor_b32 v7, {2*s}, v3")
    a(f"v_lshl_add_u32 v{8+s}, v7, 4, v1")
for nt in range(2):
    for rt in range(2):
        for qq in range(4):
            a(f"ds_write_b128 v{8+nt*4+qq}, {vr(DACC+(nt*2+rt)*16+4*qq,4)} offset:{rt*8192}")
a("s_waitcnt lgkmcnt(0)")
a("s_barrier")
stamp(9)
a(f"v_lshrrev_b32 v1, 3, v{L}")
a("s_lshl_b32 s72, s3, 3")
a("v_add_u32 v1, s72, v1")
a(f"v_and_b32 v3, 7, v{L}")
a("v_and_b32 v6, 15, v1")
a("v_lshlrev_b32 v7, 1, v3")
a("v_xor_b32 v7, v7, v6")
a("v_xor_b32 v6, 1, v7")
a("v_lshlrev_b32 v4, 8, v1")
a("v_lshl_add_u32 v7, v7, 4, v4")
a("v_lshl_add_u32 v6, v6, 4, v4")
a(f"v_add_u32 v4, {EAREA}, v7")
a(f"v_add_u32 v5, {EAREA}, v6")
a(f"v_add_u32 v2, {DAREA[2]}, v7")
a(f"v_add_u32 v0, {DAREA[2]}, v6")
for w in range(4):
    a(f"ds_read_b128 {vr(8+w*8,4)}, v4 offset:{w*ESZ}")
    a(f"ds_read_b128 {vr(12+w*8,4)}, v5 offset:{w*ESZ}")
for w in range(4):
    a(f"ds_read_b128 {vr(40+w*8,4)}, v{7 if w < 2 else 2} offset:{(w&1)*24576}")
    a(f"ds_read_b128 {vr(44+w*8,4)}, v{6 if w < 2 else 0} offset:{(w&1)*24576}")
a("s_waitcnt lgkmcnt(0)")
for step in (32, 16, 8):
    for i in range(step):
        a(f"v_add_f32 v{8+i}, v{8+i}, v{8+step+i}")
for i in range(4): a(f"v_cvt_pk_bf16_f32 v{8+i}, v{8+2*i}, v{8+2*i+1}")
a(f"s_lshl_b32 s72, s{S_RT}, 16")
a(f"s_lshl_b32 s73, s{S_CT}, 7")
a("s_add_u32 s72, s72, s73")
a("v_lshlrev_b32 v1, 10, v1")
a("v_lshl_add_u32 v1, v3, 4, v1")
a(f"buffer_store_dwordx4 v[8:11], v1, {S4(OUT_)}, s72 offen")
if PROF:
    a("s_waitcnt vmcnt(0)")
    stamp(10)
    a("s_memtime s[98:99]")
    a("s_waitcnt lgkmcnt(0)")
    a("v_writelane_b32 v255, s98, 13")
    a("s_lshl_b32 s72, s2, 3")
    a("s_add_u32 s72, s72, s3")
    a("s_lshl_b32 s72, s72, 8")
    a(f"s_add_u32 s72, s72, {PROFOFF}")
    a(f"v_lshlrev_b32 v1, 2, v{L}")
    a(f"buffer_store_dword v255, v1, {S4(WS_)}, s72 offen")
    json.dump(ticks, open("ticks.json", "w"))
a.label(".Lend")

KN = "gated_mix__sliding_block__dense_activation_relu__prompt_kernel"
hdr = open("gated_mix__sliding_block__dense_activation_relu__prompt.s.ref").read().split("; Override launch")[0]
out = hdr + "; @launch grid=(256,1,1) block=(512,1,1) lds=163840\n"
out += '.amdgcn_target "amdgcn-amd-amdhsa--gfx950"\n'
out += kernel_wrap(KN, a.text(), 256, 100)
open(sys.argv[1], "w").write(out)
```

```python
import sys, os, json
from asmlib import *

QF, KF, VF = 0x000000, 0x200000, 0x400000
AF = 0x600000
WF = 0xE00000
GOFF = 0x1000000
FLG = 0x1010000
F_A, F_AL, F_B, F_C, F_W = FLG, FLG+0x1000, FLG+0x2000, FLG+0x3000, FLG+0x5000
WSBYTES = 0x1600000
CSCALE = 0x3EB8AA3B
NINF = 0xFF800000
PROF = len(sys.argv) > 2 and sys.argv[2] == "prof"
PROFOFF = 0x1080000
SC = " sc1"
SPIN = 1 << 14
PSLEEP = int(os.environ.get("PSLEEP", "2"))
WFP = int(os.environ.get("WFP", "3"))
CPF = int(os.environ.get("CPF", "1"))
KNAME = "gated_mix__sliding_block__dense_activation_relu__prompt_kernel"
NP1 = int(os.environ.get("NP1", "3"))
NP2 = int(os.environ.get("NP2", "1"))
PFW1 = int(os.environ.get("PFW1", "0"))
LOCAL = 0
PUBA_T = int(os.environ.get("PUBA_T", "8"))
K2F, V2F = 0x1200000, 0x1400000

a = Asm()
def stamp(i):
    if PROF:
        a("s_memrealtime s[98:99]")
        a("s_waitcnt lgkmcnt(0)")
        a(f"v_writelane_b32 v255, s98, {i}")
ticks = {}
def tick(name):
    if PROF:
        if name not in ticks: ticks[name] = 16 + len(ticks)
        assert ticks[name] < 64
        stamp(ticks[name])

SLOT = 28672
R1 = 114688
BH = [R1, R1+12288, R1+24576, 0, 12288, SLOT, SLOT+12288, 2*SLOT]
BOUNCE = R1 + 36864
NONCE_LDS = BOUNCE + 8192
STG = 69632
EAREA = 49152; ESZ = 16384
DAREA = [0, 24576, 114688, 139264]
NSL = 10
CNT_LDS = NONCE_LDS + 4; REL_LDS = NONCE_LDS + 8

S_XCD, S_IDX, S_RB, S_J, S_HEAD, S_QB, S_RT, S_CT, S_ROT, S_NONCE = 4, 5, 6, 7, 8, 9, 10, 11, 12, 13
X_, WQ_, WS_, W1_, WT_, OUT_, DBG_, GT_ = 36, 40, 44, 48, 52, 60, 64, 68
def S4(b): return f"s[{b}:{b+3}]"

class Q:
    def __init__(self, kind, cap): self.q = []; self.kind = kind; self.cap = cap
    def issue(self, tag, n=1): self.q.extend([tag]*n)
    def wait(self, *tags):
        idx = [i for i, t in enumerate(self.q) if t in tags]
        if not idx: return
        n = len(self.q) - 1 - max(idx)
        a(f"s_waitcnt {self.kind}({min(n, self.cap)})")
        self.q = self.q[max(idx)+1:]
    def drain(self): self.q = []

def poll_flags(off_sreg, mask, vtmp, name, pre=False):
    a(f"s_mov_b32 s74, {SPIN}")
    a.label(f".L{name}_poll")
    a(f"buffer_load_dword v{vtmp+1}, v{vtmp}, {S4(WS_)}, s{off_sreg} offen{SC}")
    a("s_waitcnt vmcnt(0)")
    a(f"v_cmp_ne_u32 vcc, s{S_NONCE}, v{vtmp+1}")
    a(f"s_and_b64 s[72:73], vcc, s[{mask}:{mask+1}]")
    a(f"s_cbranch_scc0 .L{name}_ok")
    a(f"s_sleep {PSLEEP}")
    a("s_sub_u32 s74, s74, 1")
    a("s_cmp_lg_u32 s74, 0")
    a(f"s_cbranch_scc1 .L{name}_poll")
    a.label(f".L{name}_ok")

def publish(off_sreg, vtmp, dual=False):
    l = a.newlabel("pub")
    a("s_cmp_lg_u32 s3, 0")
    a(f"s_cbranch_scc1 {l}")
    a("s_mov_b64 exec, 1")
    a(f"v_mov_b32 v{vtmp}, 0")
    a(f"v_mov_b32 v{vtmp+1}, s{S_NONCE}")
    if dual: a(f"buffer_store_dword v{vtmp+1}, v{vtmp}, {S4(WS_)}, s{off_sreg} offen offset:{0x2000 & 0xfff | 0x800}")
    a(f"buffer_store_dword v{vtmp+1}, v{vtmp}, {S4(WS_)}, s{off_sreg} offen{SC}")
    a("s_mov_b64 exec, -1")
    a.label(l)

def wpublish(off_sreg, vtmp, dual=False):
    a("s_mov_b64 exec, 1")
    a(f"v_mov_b32 v{vtmp}, 0")
    a(f"v_mov_b32 v{vtmp+1}, s{S_NONCE}")
    if dual:
        a(f"s_add_u32 s72, s{off_sreg}, 0x1000")
        a(f"buffer_store_dword v{vtmp+1}, v{vtmp}, {S4(WS_)}, s72 offen")
    a(f"buffer_store_dword v{vtmp+1}, v{vtmp}, {S4(WS_)}, s{off_sreg} offen{SC}")
    a("s_mov_b64 exec, -1")

PSLEEP = int(os.environ.get("PSLEEP", "2"))
def lds_release(i, vt):
    a(f"v_mov_b32 v{vt}, {REL_LDS + 4*i}")
    a(f"v_mov_b32 v{vt+1}, 1")
    a(f"ds_write_b32 v{vt}, v{vt+1}")
def lds_add(i, vt):
    a(f"v_mov_b32 v{vt}, {REL_LDS + 4*i}")
    a(f"v_mov_b32 v{vt+1}, 1")
    a("s_mov_b64 exec, 1")
    a(f"ds_add_u32 v{vt}, v{vt+1}")
def lds_wait_cnt(i, n, vt, name):
    a(f"v_mov_b32 v{vt}, {REL_LDS + 4*i}")
    a(f"s_mov_b32 s74, {SPIN*16}")
    a.label(f".L{name}_cw")
    a(f"ds_read_b32 v{vt+1}, v{vt}")
    a("s_waitcnt lgkmcnt(0)")
    a(f"v_readfirstlane_b32 s72, v{vt+1}")
    a(f"s_cmp_eq_u32 s72, {n}")
    a(f"s_cbranch_scc1 .L{name}_cok")
    a("s_sleep 1")
    a("s_sub_u32 s74, s74, 1")
    a("s_cmp_lg_u32 s74, 0")
    a(f"s_cbranch_scc1 .L{name}_cw")
    a.label(f".L{name}_cok")
def lds_wait_rel(i, vt, name):
    a(f"v_mov_b32 v{vt}, {REL_LDS + 4*i}")
    a(f"s_mov_b32 s74, {SPIN*16}")
    a.label(f".L{name}_lw")
    a(f"ds_read_b32 v{vt+1}, v{vt}")
    a("s_waitcnt lgkmcnt(0)")
    a(f"v_readfirstlane_b32 s72, v{vt+1}")
    a("s_cmp_lg_u32 s72, 0")
    a(f"s_cbranch_scc1 .L{name}_lok")
    a("s_sleep 1")
    a("s_sub_u32 s74, s74, 1")
    a("s_cmp_lg_u32 s74, 0")
    a(f"s_cbranch_scc1 .L{name}_lw")
    a.label(f".L{name}_lok")

def inter(m, r):
    out = []; per = -(-len(r) // len(m)) if r else 0; ri = 0
    for mm in m:
        out.append(mm)
        for _ in range(per):
            if ri < len(r): out.append(r[ri]); ri += 1
    return out

a("s_cmp_ge_u32 s2, 256")
a("s_cbranch_scc1 .Lend")
a("s_load_dwordx16 s[16:31], s[0:1], 0")
a("s_load_dwordx4 s[32:35], s[0:1], 64")
if PROF: a("v_mov_b32 v255, 0")
stamp(0)
if PROF:
    a("s_memtime s[98:99]")
    a("s_waitcnt lgkmcnt(0)")
    a("v_writelane_b32 v255, s98, 12")
a("v_lshrrev_b32 v1, 6, v0")
a("v_and_b32 v0, 63, v0")
a("v_readfirstlane_b32 s3, v1")
a(f"s_and_b32 s{S_XCD}, s2, 7")
a(f"s_lshr_b32 s{S_IDX}, s2, 3")
a(f"s_and_b32 s72, s{S_XCD}, 1")
a(f"s_lshr_b32 s73, s{S_XCD}, 1")
a(f"s_and_b32 s74, s{S_IDX}, 7")
a(f"s_lshr_b32 s75, s{S_IDX}, 3")
a(f"s_lshl_b32 s{S_RB}, s72, 3")
a(f"s_add_u32 s{S_RB}, s{S_RB}, s74")
a(f"s_lshl_b32 s{S_J}, s73, 2")
a(f"s_add_u32 s{S_J}, s{S_J}, s75")
a(f"s_lshl_b32 s{S_ROT}, s75, 1")
a(f"s_add_u32 s{S_ROT}, s{S_ROT}, s74")
a(f"s_and_b32 s{S_ROT}, s{S_ROT}, 7")
a(f"s_lshl_b32 s{S_HEAD}, s73, 3")
a(f"s_add_u32 s{S_HEAD}, s{S_HEAD}, s74")
a(f"s_lshl_b32 s{S_QB}, s72, 2")
a(f"s_add_u32 s{S_QB}, s{S_QB}, s75")
a(f"s_lshl_b32 s{S_RT}, s{S_XCD}, 2")
a(f"s_add_u32 s{S_RT}, s{S_RT}, s75")
a(f"s_mov_b32 s{S_CT}, s74")
a(f"s_mov_b32 s{S_NONCE}, 0")
a("s_and_b32 s14, s3, 3")
a(f"s_lshr_b32 s97, s{S_IDX}, 3")
a(f"s_lshl_b32 s93, s{S_RB}, 2")
a("s_add_u32 s93, s93, s14")
a("s_cmp_lt_u32 s3, 4")
a("s_cbranch_scc1 .Lcompute")

VX = 240; VWA = 244; VWB = 245; VWB2 = 246; LN16 = 247; T = 248; L = 254
a(f"v_mov_b32 v{L}, v0")
a("v_lshrrev_b32 v1, 3, v0")
a("v_and_b32 v2, 7, v0")
a("v_lshrrev_b32 v3, 4, v0")
a(f"s_lshl_b32 s72, s{S_RB}, 7")
a("s_lshl_b32 s73, s14, 5")
a("s_add_u32 s72, s72, s73")
for j in range(4):
    a(f"v_add_u32 v4, {4*(j&1)}, v3")
    a("v_xor_b32 v4, v4, v2")
    a("v_lshlrev_b32 v4, 4, v4")
    a(f"v_add_u32 v5, {8*j}, v1")
    a("v_add_u32 v5, s72, v5")
    a(f"v_lshl_add_u32 v{VX+j}, v5, 10, v4")
a("v_lshrrev_b32 v1, 2, v0")
a("s_lshl_b32 s72, s14, 4")
a("v_add_u32 v6, s72, v1")
a("v_and_b32 v2, 3, v0")
a("v_lshlrev_b32 v2, 4, v2")
a(f"s_lshl_b32 s72, s{S_J}, 6")
a(f"v_mul_u32_u24 v{VWA}, 3072, v6")
a(f"v_add3_u32 v{VWA}, v{VWA}, v2, s72")
a(f"s_lshl_b32 s78, s{S_ROT}, 7")
a(f"s_mul_i32 s79, s{S_ROT}, {64*3072}")
a(f"s_mul_i32 s80, s{S_ROT}, {64*2752}")
a("s_lshl_b32 s81, s14, 12")
a("s_lshl_b32 s82, s14, 10")
a("s_waitcnt lgkmcnt(0)")
srd(a, X_, 16, 2048*1024)
srd(a, WQ_, 18, 512*3072)
vq = Q("vmcnt", 63)
def issue_A(p):
    slot = p % 4
    for j in range(4):
        a(f"s_add_u32 m0, s81, {slot*SLOT + j*1024}")
        a("s_nop 0")
        a(f"buffer_load_dwordx4 v{VX+j}, {S4(X_)}, s78 offen lds")
    for b in range(3):
        a(f"s_add_u32 m0, s82, {slot*SLOT + 16384 + b*4096 - b*1024}")
        a("s_nop 0")
        a(f"buffer_load_dwordx4 v{VWA}, {S4(WQ_)}, s79 offen offset:{b*1024} lds")
    a("s_add_u32 s78, s78, 128")
    a(f"s_add_u32 s79, s79, {64*3072}")
    a("s_cmp_eq_u32 s78, 1024")
    a("s_cselect_b32 s78, 0, s78")
    a("s_cselect_b32 s79, 0, s79")
    vq.issue(("A", p), 7)
def issue_Bhalf(h):
    for b in range(3):
        a(f"s_add_u32 m0, s82, {BH[h] + b*4096 - b*64}")
        a("s_nop 0")
        a(f"buffer_load_dwordx4 v{VWB if b == 0 else VWB2}, {S4(W1_)}, s80 offen offset:{b*64} lds")
    a(f"s_add_u32 s80, s80, {64*2752}")
    a(f"s_cmp_eq_u32 s80, {512*2752}")
    a("s_cselect_b32 s80, 0, s80")
    vq.issue(("B", h), 3)
AW1 = int(os.environ.get("AW1", "0"))
SCH = os.environ.get("SCH", "c")
issue_A(0)
issue_A(1)
if SCH == "a": issue_A(2)
srd(a, WS_, 34, WSBYTES)
srd(a, W1_, 24, 512*2752)
srd(a, OUT_, 30, 2048*1024)
a(f"s_mul_i32 s72, s{S_J}, 192")
a(f"v_mul_u32_u24 v{VWB}, 2752, v6")
a(f"v_add3_u32 v{VWB}, v{VWB}, v2, s72")
a(f"v_mov_b32 v{VWB2}, v{VWB}")
a(f"s_cmp_lt_u32 s{S_J}, 14")
a("s_cbranch_scc1 .Lwbok")
a(f"v_mov_b32 v{VWB2}, 0x40000000")
a(f"s_cmp_lt_u32 s{S_J}, 15")
a("s_cbranch_scc1 .Lwbok")
a(f"v_mov_b32 v{VWB}, 0x40000000")
a.label(".Lwbok")
a(f"v_lshlrev_b32 v{LN16}, 4, v0")
srd(a, DBG_, 32, 256)
a(f"s_lshl_b32 s83, s{S_IDX}, 2")
a("s_add_u32 s83, s83, s14")
a("s_cmp_lt_u32 s83, 86")
a(f"s_cselect_b32 s{WT_}, s26, s20")
a(f"s_cselect_b32 s{WT_+1}, s27, s21")
a(f"s_mov_b32 s{WT_+2}, {1376*1024}")
a(f"s_cselect_b32 s{WT_+2}, s{WT_+2}, {512*1024}")
a(f"s_mov_b32 s{WT_+3}, 0x00020000")
a("s_cselect_b32 s84, 0, 86")
a("s_sub_u32 s84, s83, s84")
a("s_lshl_b32 s84, s84, 14")
a(f"s_lshl_b32 s85, s{S_XCD}, 7")
a("s_add_u32 s84, s84, s85")
a("v_lshlrev_b32 v8, 10, v1")
a("v_add_u32 v8, v8, v2")
a("s_lshl_b32 s85, s14, 11")
a(f"s_add_u32 s85, s85, {BOUNCE}")
a("v_lshrrev_b32 v9, 5, v0")
a("v_lshlrev_b32 v9, 8, v9")
a("v_bfe_u32 v4, v0, 2, 2")
a("v_lshl_add_u32 v9, v4, 6, v9")
a("v_bfe_u32 v4, v0, 4, 1")
a("v_lshl_add_u32 v9, v4, 5, v9")
a("v_and_b32 v4, 3, v0")
a("v_lshl_add_u32 v9, v4, 3, v9")
a("v_add_u32 v9, s85, v9")
a("v_mov_b32 v10, 0")
BSCHED = {4: [0, 1, 2], 5: [3, 4], 6: [5, 6], 7: [7]}
if SCH == "b":
    issue_Bhalf(0)
    BSCHED = {3: [1], 4: [2], 5: [3, 4], 6: [5, 6], 7: [7]}
if SCH == "c":
    BSCHED = {0: [0], 4: [1, 2], 5: [3, 4], 6: [5, 6], 7: [7]}
for p in range(8):
    vq.wait(("A", p))
    a("s_barrier")
    if p == 0: stamp(1)
    if p == 0 and SCH != "a": issue_A(2)
    if p + 3 < 8: issue_A(p+3)
    if p == 4:
        a(f"buffer_load_dword v11, v10, {S4(DBG_)}, 0 offen{SC}")
        vq.issue("nonce", 1)
    for h in BSCHED.get(p, []): issue_Bhalf(h)
    if p == WFP:
        a("s_mov_b32 m0, s85")
        a("s_nop 0")
        a(f"buffer_load_dwordx4 v8, {S4(WT_)}, s84 offen lds")
        a("s_add_u32 m0, s85, 960")
        a("s_nop 0")
        a(f"buffer_load_dwordx4 v8, {S4(WT_)}, s84 offen offset:64 lds")
        vq.issue("wfld", 2)
vq.wait("nonce")
a(f"v_readfirstlane_b32 s{S_NONCE}, v11")
a(f"s_cmp_lg_u32 s{S_NONCE}, 0")
a("s_cbranch_scc1 .Lnonce_ok")
a(f"s_mov_b32 s74, {SPIN}")
a.label(".Lnonce_poll")
a("s_sleep 1")
a(f"buffer_load_dword v11, v10, {S4(DBG_)}, 0 offen{SC}")
a("s_waitcnt vmcnt(0)")
a(f"v_readfirstlane_b32 s{S_NONCE}, v11")
a(f"s_cmp_lg_u32 s{S_NONCE}, 0")
a("s_cbranch_scc1 .Lnonce_ok")
a("s_sub_u32 s74, s74, 1")
a("s_cmp_lg_u32 s74, 0")
a("s_cbranch_scc1 .Lnonce_poll")
a.label(".Lnonce_ok")
a(f"v_mov_b32 v4, {NONCE_LDS}")
a("ds_write_b32 v4, v11")
for i_ in range(1, 8): a(f"ds_write_b32 v4, v10 offset:{4*i_}")
a("s_waitcnt lgkmcnt(0)")
stamp(2)
a(f"v_lshlrev_b32 v{T+2}, 2, v{L}")
vq.wait("wfld")
for i in range(4): a(f"ds_read_b64_tr_b16 v[{12+2*i}:{13+2*i}], v9 offset:{512*i}")
a(f"s_mul_i32 s84, s{S_XCD}, {2*118}")
a("s_add_u32 s84, s84, s83")
a("s_lshl_b32 s84, s84, 10")
a(f"s_add_u32 s84, s84, {WF}")
a("s_cmp_lt_u32 s83, 118")
a("s_cselect_b32 s84, s84, 0x40000000")
a(f"s_add_u32 s85, s84, {118*1024}")
a("s_waitcnt lgkmcnt(0)")
a(f"buffer_store_dwordx4 v[12:15], v{LN16}, {S4(WS_)}, s84 offen{SC}")
a(f"buffer_store_dwordx4 v[16:19], v{LN16}, {S4(WS_)}, s85 offen{SC}")
a(f"s_lshl_b32 s90, s{S_XCD}, 7")
a("s_add_u32 s90, s90, s83")
a("s_lshl_b32 s90, s90, 2")
a(f"s_add_u32 s90, s90, {F_W}")
vq.issue("wfst", 2)
vq.wait(("B", 3))
a("s_barrier")
vq.wait(("B", 7))
a("s_barrier")
stamp(3)
a("s_mov_b32 s85, 0")
a("s_waitcnt vmcnt(0)")
wpublish(90, T+3)
a("s_cmp_lg_u32 s3, 4")
a("s_cbranch_scc1 .Lfa_wait")
a(f"s_lshr_b32 s76, s{S_HEAD}, 1")
a("s_lshl_b32 s76, s76, 8")
a(f"s_lshl_b32 s77, s{S_QB}, 5")
a("s_add_u32 s76, s76, s77")
a(f"s_add_u32 s76, s76, {F_A - 32}")
a("s_add_u32 s77, s76, 0x1000")
a("s_mov_b32 s84, 0xffff")
a(f"s_cmp_eq_u32 s{S_QB}, 0")
a("s_cselect_b32 s84, 0xff00, s84")
a(f"s_mov_b32 s74, {SPIN}")
a("s_mov_b64 exec, 0xffff")
a.label(".Lfa_poll")
a(f"buffer_load_dword v{T+3}, v{T+2}, {S4(WS_)}, s77 offen{SC}")
a(f"buffer_load_dword v{T+4}, v{T+2}, {S4(WS_)}, s76 offen{SC}")
a("s_waitcnt vmcnt(0)")
a(f"v_cmp_ne_u32 vcc, s{S_NONCE}, v{T+3}")
a("s_and_b64 s[72:73], vcc, s[84:85]")
a(f"v_cmp_ne_u32 vcc, s{S_NONCE}, v{T+4}")
a("s_and_b64 s[72:73], vcc, s[72:73]")
a("s_cbranch_scc0 .Lfa_ok")
a(f"s_sleep {PSLEEP}")
a("s_sub_u32 s74, s74, 1")
a("s_cmp_lg_u32 s74, 0")
a("s_cbranch_scc1 .Lfa_poll")
a.label(".Lfa_ok")
a("s_mov_b64 exec, -1")
lds_release(0, T+3)
a("s_branch .Lfa_go")
a.label(".Lfa_wait")
lds_wait_rel(0, T+3, "fa")
a.label(".Lfa_go")
stamp(11)
a(f"s_lshl_b32 s72, s{S_HEAD}, 6")
a(f"s_lshl_b32 s73, s{S_QB}, 3")
a("s_add_u32 s72, s72, s73")
a("s_lshl_b32 s72, s72, 10")
a("s_lshl_b32 s73, s14, 11")
a("s_add_u32 s73, s73, s72")
a("s_add_u32 s74, s72, s81")
a(f"s_add_u32 s74, s74, {KF - 8192}")
a(f"s_lshl_b32 s75, s{S_QB}, 2")
a("s_add_u32 s75, s75, s14")
a("s_cmp_lt_u32 s75, 2")
a("s_cselect_b32 s74, 0x40000000, s74")
a(f"s_add_u32 s75, s74, {VF - KF}")
a(f"s_add_u32 m0, s81, {STG}")
a("s_nop 0")
for i in range(4): a(f"buffer_load_dwordx4 v{LN16}, {S4(WS_)}, s74 offen offset:{i*1024} lds")
a("s_lshl_b32 s74, s14, 11")
a(f"s_add_u32 m0, s74, {STG + 32768}")
a("s_nop 0")
for i in range(2): a(f"buffer_load_dwordx4 v{LN16}, {S4(WS_)}, s73 offen offset:{i*1024} lds")
a(f"s_add_u32 m0, s81, {STG + 16384}")
a("s_nop 0")
for i in range(4): a(f"buffer_load_dwordx4 v{LN16}, {S4(WS_)}, s75 offen offset:{i*1024} lds")
vq.drain()
vq.issue("stg", 10)
a("s_mul_i32 s86, s14, 22")
a("s_cmp_eq_u32 s14, 3")
a("s_cselect_b32 s86, 65, s86")
a("s_add_u32 s87, s86, 22")
a("s_cmp_ge_u32 s14, 2")
a("s_cselect_b32 s88, 1, 0")
a("s_sub_u32 s87, s87, s88")
a(f"s_mul_i32 s92, s{S_CT}, 3")
a("s_mul_i32 s72, s97, 5")
a("s_add_u32 s92, s92, s72")
a("s_cmp_ge_u32 s92, 22")
a("s_cselect_b32 s72, 22, 0")
a("s_sub_u32 s92, s92, s72")
a("s_lshl_b32 s92, s92, 10")
a("s_mov_b32 s93, s92")
a(f"s_mul_i32 s72, s{S_CT}, {2*118}")
a("s_add_u32 s72, s72, s86")
a("s_lshl_b32 s72, s72, 10")
a(f"s_add_u32 s72, s72, {WF}")
a(f"v_add_u32 v{T}, s72, v{LN16}")
a(f"v_add_u32 v{T+1}, {118*1024}, v{T}")
a(f"s_mul_i32 s72, s{S_RT}, {2*118*1024}")
a(f"s_add_u32 s72, s72, {AF}")
a("s_lshl_b32 s73, s87, 10")
for rt in range(2):
    a(f"s_add_u32 s{76+4*rt}, s34, s72")
    a(f"s_addc_u32 s{77+4*rt}, s35, 0")
    a(f"s_mov_b32 s{78+4*rt}, s73")
    a(f"s_mov_b32 s{79+4*rt}, 0x00020000")
    a(f"s_add_u32 s72, s72, {118*1024}")
a(f"s_mul_i32 s89, s14, 24576")
a("s_cmp_ge_u32 s14, 2")
a(f"s_cselect_b32 s72, {114688 - 49152}, 0")
a("s_add_u32 s89, s89, s72")
a(f"s_lshl_b32 s91, s{S_CT}, 7")
a("s_add_u32 s91, s91, s86")
a("s_lshl_b32 s91, s91, 2")
a(f"s_add_u32 s91, s91, {F_W}")
a("s_mov_b32 s84, 0x3fffff")
a("s_mov_b32 s85, 0")
a("s_mov_b32 exec_hi, 0")
a(f"buffer_load_dword v{T+3}, v{T+2}, {S4(WS_)}, s91 offen{SC}")
a("s_waitcnt vmcnt(1)")
lds_add(3, T+4)
a("s_mov_b32 exec_lo, -1")
stamp(4)
a("s_waitcnt vmcnt(0)")
a(f"v_cmp_ne_u32 vcc, s{S_NONCE}, v{T+3}")
a("s_and_b64 s[72:73], vcc, s[84:85]")
a("s_cbranch_scc0 .Lfw_ok")
poll_flags(91, 84, T+2, "fw")
a("s_mov_b64 exec, -1")
vq.drain()
tick("fwOK")
W2R = 0; DACC = 160; HB = 224; NPRE = 20
def w2load(k):
    f = W2R + (k % NPRE)*8
    a(f"buffer_load_dwordx4 {vr(f,4)}, v{T}, {S4(WS_)}, s92 offen")
    a(f"buffer_load_dwordx4 {vr(f+4,4)}, v{T+1}, {S4(WS_)}, s92 offen")
    a("s_add_u32 s92, s92, 1024")
    a(f"s_cmp_eq_u32 s92, {22*1024}")
    a("s_cselect_b32 s92, 0, s92")
    vq.issue(("w", k), 2)
for k in range(NPRE): w2load(k)
tick("w2iss")
a(f"s_lshl_b32 s91, s{S_RT}, 7")
a(f"s_add_u32 s91, s91, {F_B}")
a("s_mov_b32 s84, -1")
a("s_cmp_lg_u32 s3, 4")
a("s_cbranch_scc1 .Lfb_wait")
a("s_mov_b32 exec_hi, 0")
poll_flags(91, 84, T+2, "fb")
a("s_mov_b64 exec, -1")
lds_wait_cnt(4, 4, T+3, "bd")
lds_release(1, T+3)
a("s_branch .Lfb_go")
a.label(".Lfb_wait")
lds_wait_rel(1, T+3, "fb")
a.label(".Lfb_go")
stamp(7)
a("s_lshl_b32 s72, s86, 10")
a(f"v_add_u32 v{T+4}, s72, v{LN16}")
a(f"v_add_u32 v{T+5}, s89, v{LN16}")
def hdma(k):
    sl = k % NSL
    for rt in range(2):
        a(f"s_add_u32 m0, s89, {sl*2048 + rt*1024}")
        a("s_nop 0")
        a(f"buffer_load_dwordx4 v{T+4}, s[{76+4*rt}:{79+4*rt}], s93 offen lds")
    a("s_add_u32 s93, s93, 1024")
    a(f"s_cmp_eq_u32 s93, {22*1024}")
    a("s_cselect_b32 s93, 0, s93")
    vq.issue(("h", k), 2)
def hreads(k):
    return [f"ds_read_b128 {vr(HB+(k&1)*8+rt*4,4)}, v{T+5} offset:{(k % NSL)*2048 + rt*1024}" for rt in range(2)]
HW1 = int(os.environ.get("HW1", "0"))
for k in range(NSL):
    hdma(k)
    if k == HW1-1: vq.wait(("h", k))
GV = VX
a(f"v_and_b32 v{T+2}, 31, v{L}")
a(f"v_lshlrev_b32 v{T+2}, 2, v{T+2}")
a(f"s_lshl_b32 s72, s{S_RT}, 8")
a(f"s_add_u32 s72, s72, {GOFF}")
a(f"buffer_load_dword v{GV}, v{T+2}, {S4(WS_)}, s72 offen")
a(f"buffer_load_dword v{GV+1}, v{T+2}, {S4(WS_)}, s72 offen offset:128")
vq.issue("g", 2)
vq.wait(("h", 0))
for l in hreads(0): a(l)
PUBC_AT = int(os.environ.get("PUBC_AT", "0"))
for k in range(22):
    if k < 21: vq.wait(("h", k+1), ("w", k))
    else: vq.wait(("w", k))
    a("s_waitcnt lgkmcnt(0)")
    if k in (0, 1, 4, 8, 12, 16, 20): tick(f"D{k}")
    f = W2R + (k % NPRE)*8
    m = []
    for nt in range(2):
        for rt in range(2):
            acc = vr(DACC+(nt*2+rt)*16, 16)
            m.append(f"v_mfma_f32_32x32x16_bf16 {acc}, {vr(f+4*nt,4)}, {vr(HB+(k&1)*8+4*rt,4)}, {'0' if k == 0 else acc}")
    for l in inter(m, hreads(k+1) if k < 21 else []): a(l)
    if k + NSL < 22: hdma(k + NSL)
    if k + NPRE < 22: w2load(k + NPRE)
a("s_waitcnt vmcnt(0)")
for i in range(2):
    a(f"v_sub_f32 v{GV+i}, 1.0, v{GV+i}")
    a(f"v_cvt_pk_bf16_f32 v{GV+i}, v{GV+i}, v{GV+i}")
    a(f"v_lshlrev_b32 v{GV+i}, 16, v{GV+i}")
a("s_mov_b32 s90, s89")
a("s_branch .Lreduce")

a.label(".Lcompute")
XR = 0; ACC = 128; WFR = 176; XA = 212; XA2 = 216; WA = 232; TMP = 224; WFA = 235; WFD = 236
a(f"v_mov_b32 v{L}, v0")
a(f"v_and_b32 v{TMP}, 31, v{L}")
a(f"v_lshrrev_b32 v{TMP+1}, 5, v{L}")
a(f"v_bfe_u32 v{TMP+2}, v{L}, 1, 3")
a("s_lshl_b32 s72, s3, 12")
for sp in range(4):
    a(f"v_add_u32 v{TMP+3}, {2*sp}, v{TMP+1}")
    a(f"v_xor_b32 v{TMP+3}, v{TMP+3}, v{TMP+2}")
    a(f"v_lshlrev_b32 v{TMP+3}, 4, v{TMP+3}")
    a(f"v_lshl_add_u32 v{TMP+3}, v{TMP}, 7, v{TMP+3}")
    a(f"v_add_u32 v{XA+sp}, s72, v{TMP+3}")
    a(f"v_add_u32 v{XA2+sp}, {2*SLOT}, v{XA+sp}")
a(f"v_lshlrev_b32 v{WA}, 9, v{TMP+1}")
a(f"v_bfe_u32 v{TMP+3}, v{L}, 2, 2")
a(f"v_lshl_add_u32 v{WA}, v{TMP+3}, 6, v{WA}")
a(f"v_bfe_u32 v{TMP+3}, v{L}, 4, 1")
a(f"v_lshl_add_u32 v{WA}, v{TMP+3}, 5, v{WA}")
a(f"v_and_b32 v{TMP+3}, 3, v{L}")
a(f"v_lshl_add_u32 v{WA}, v{TMP+3}, 3, v{WA}")
a(f"v_add_u32 v{WA+1}, 0x10000, v{WA}")
a(f"v_add_u32 v{WA+2}, 0x20000, v{WA}")
a(f"v_lshlrev_b32 v{LN16}, 4, v{L}")
a("s_waitcnt lgkmcnt(0)")
srd(a, WS_, 34, WSBYTES)
srd(a, OUT_, 30, 2048*1024)
srd(a, DBG_, 32, 256)
srd(a, GT_, 28, 1024)
a("s_or_b32 s72, s2, s3")
a("s_cmp_lg_u32 s72, 0")
a("s_cbranch_scc1 .Lnononce")
a("s_memrealtime s[72:73]")
a("s_waitcnt lgkmcnt(0)")
a("s_or_b32 s72, s72, 1")
a(f"v_mov_b32 v{TMP}, 0")
a(f"v_mov_b32 v{TMP+1}, s72")
a("s_mov_b64 exec, 1")
a(f"buffer_store_dword v{TMP+1}, v{TMP}, {S4(DBG_)}, 0 offen{SC}")
a("s_mov_b64 exec, -1")
a("s_mov_b32 s72, 0")
a("s_mov_b32 s73, 0")
a.label(".Lnononce")
if CPF:
    a("s_cmp_lg_u32 s3, 1")
    a("s_cbranch_scc1 .Lnocpf")
    a(f"s_cmp_ge_u32 s{S_IDX}, CODE_KB")
    a("s_cbranch_scc1 .Lnocpf")
    a("s_getpc_b64 s[72:73]")
    a.label(".Lpcref")
    a(f"s_sub_u32 s72, s72, .Lpcref-{KNAME}")
    a("s_subb_u32 s73, s73, 0")
    a(f"s_lshl_b32 s74, s{S_IDX}, 10")
    a(f"v_add_u32 v{TMP}, s74, v{LN16}")
    a(f"global_load_dwordx4 v[236:239], v{TMP}, s[72:73]")
    a.label(".Lnocpf")

if PFW1:
    srd(a, W1_, 24, 512*2752)
    a(f"s_lshl_b32 s72, s{S_ROT}, 6")
    a(f"v_add_u32 v3, s72, v{L}")
    a("v_mul_u32_u24 v3, 2752, v3")
    a(f"s_mul_i32 s72, s{S_J}, 192")
    a("s_lshl_b32 s73, s14, 6")
    a("s_add_u32 s72, s72, s73")
    a(f"s_cmp_lt_u32 s{S_J}, 15")
    a("s_cselect_b32 s72, s72, 0x40000000")
    a(f"buffer_load_dword v{WFD+2}, v3, {S4(W1_)}, s72 offen")

def wread(dst, addr):
    return f"ds_read_b64_tr_b16 {vr(dst,2)}, v{WA + (addr >> 16)} offset:{addr & 0xffff}"
def reads_A(t):
    p, sp = t >> 2, t & 3
    slot = p % 4
    r = [f"ds_read_b128 {vr(XR+4*t,4)}, v{(XA if slot < 2 else XA2)+sp} offset:{(slot & 1)*SLOT}"]
    for b in range(3):
        for rd in range(2):
            r.append(wread(WFR + (t % 3)*12 + b*4 + rd*2, slot*SLOT + 16384 + b*4096 + (4*sp+rd)*256))
    return r
def reads_B(t):
    p, sp = t >> 2, t & 3
    return [wread(WFR + (t % 3)*12 + b*4 + rd*2, BH[p] + b*4096 + (4*sp+rd)*256) for b in range(3) for rd in range(2)]
def mf(t, kinds, first):
    m = []
    for b, kd in enumerate(kinds):
        acc = vr(ACC+16*b, 16); x = vr(XR+4*t, 4); w = vr(WFR+(t % 3)*12+b*4, 4)
        c = "0" if first else acc
        if kd == 'T': m.append(f"v_mfma_f32_32x32x16_bf16 {acc}, {w}, {x}, {c}")
        else:         m.append(f"v_mfma_f32_32x32x16_bf16 {acc}, {x}, {w}, {c}")
    return m
lq = Q("lgkmcnt", 15)
a(f"s_lshl_b32 s76, s{S_J}, 4")
a(f"s_add_u32 s76, s76, s{S_RB}")
a("s_lshl_b32 s76, s76, 2")
a("s_add_u32 s76, s76, s3")
a("s_lshl_b32 s76, s76, 2")
a(f"s_add_u32 s76, s76, {FLG}")
a("s_barrier")
stamp(1)
for tt in (0, 1):
    for l in reads_A(tt): a(l)
    lq.issue(tt, 7)
for t in range(32):
    lq.wait(t)
    sp = t & 3
    nxt = []; tags = []
    if sp < 2:
        nxt = reads_A(t+2); tags = [(t+2, 7)]
    elif sp == 3 and t < 31:
        tick(f"A{t>>2}pre")
        a("s_barrier")
        tick(f"A{t>>2}post")
        nxt = reads_A(t+1) + reads_A(t+2); tags = [(t+1, 7), (t+2, 7)]
    for l in inter(mf(t, "TTN", t == 0), nxt): a(l)
    for tg, n in tags: lq.issue(tg, n)
assert not lq.q, lq.q
stamp(2)
a(f"s_lshl_b32 s72, s{S_RB}, 2")
a("s_add_u32 s72, s72, s3")
a(f"s_lshl_b32 s73, s{S_J}, 7")
a("s_add_u32 s72, s72, s73")
a("s_lshl_b32 s72, s72, 10")
a(f"v_add_u32 v{TMP}, s72, v{LN16}")
a(f"v_add_u32 v{TMP+1}, 0x10000, v{TMP}")
a(f"v_and_b32 v{TMP+2}, 15, v{L}")
a(f"v_lshrrev_b32 v{TMP+3}, 5, v{L}")
a(f"v_lshl_add_u32 v{TMP+2}, v{TMP+3}, 4, v{TMP+2}")
a(f"v_lshlrev_b32 v{TMP+2}, 4, v{TMP+2}")
a(f"v_bfe_u32 v{TMP+3}, v{L}, 4, 1")
a(f"v_lshl_add_u32 v{TMP+2}, v{TMP+3}, 16, v{TMP+2}")
a(f"v_add_u32 v{TMP+2}, s72, v{TMP+2}")
a(f"s_mov_b32 s73, {CSCALE}")
a(f"s_mov_b32 s74, {KF}")
a(f"s_mov_b32 s75, {VF}")
a("s_nop 3")
for b in (1, 2, 0):
    r = ACC + 16*b
    if b == 0:
        for i in range(16): a(f"v_mul_f32 v{r+i}, s73, v{r+i}")
    for i in range(8): a(f"v_cvt_pk_bf16_f32 v{r+i}, v{r+2*i}, v{r+2*i+1}")
def qkv_stores(fl, so_k, so_v, with_q):
    for b in (1, 2, 0):
        r = ACC + 16*b
        if b == 0 and not with_q: continue
        if b < 2:
            so = "0" if b == 0 else so_k
            a(f"buffer_store_dwordx4 {vr(r,4)}, v{TMP}, {S4(WS_)}, {so} offen{fl}")
            a(f"buffer_store_dwordx4 {vr(r+4,4)}, v{TMP+1}, {S4(WS_)}, {so} offen{fl}")
        else:
            a(f"buffer_store_dwordx4 {vr(r,4)}, v{TMP+2}, {S4(WS_)}, {so_v} offen{fl}")
            a(f"buffer_store_dwordx4 {vr(r+4,4)}, v{TMP+2}, {S4(WS_)}, {so_v} offen offset:512{fl}")
if LOCAL:
    a(f"s_lshr_b32 s72, s{S_RB}, 1")
    a("s_cmp_lg_u32 s72, 3")
    a("s_cbranch_scc1 .Lnohalo")
    a(f"s_mov_b32 s72, {K2F}")
    a(f"s_mov_b32 s73, {V2F}")
    qkv_stores(SC, "s72", "s73", False)
    a.label(".Lnohalo")
    a("s_cmp_eq_u32 s88, 1")
    a("s_cbranch_scc0 .Lqkv_safe")
    qkv_stores("", "s74", "s75", True)
    a("s_branch .Lqkv_done")
    a.label(".Lqkv_safe")
qkv_stores(SC, "s74", "s75", True)
a.label(".Lqkv_done")
a(f"s_cmp_eq_u32 s{S_J}, 15")
a("s_cbranch_scc1 .Lgate")
tick("epiA")
a("s_barrier")
tick("B01")
a(f"v_mov_b32 v{TMP+2}, {NONCE_LDS}")
a(f"ds_read_b32 v{TMP+3}, v{TMP+2}")
lq.issue("n", 1)
for tt in (0, 1):
    for l in reads_B(tt): a(l)
    lq.issue(tt, 6)
for t in range(32):
    lq.wait(t)
    if t == 2: a(f"v_readfirstlane_b32 s{S_NONCE}, v{TMP+3}")
    if t == PUBA_T:
        a("s_waitcnt vmcnt(0)")
        tick("pubA")
        wpublish(76, TMP, dual=True)
    if t == 14:
        tick("B23pre")
        a("s_barrier")
        tick("B23post")
    nxt = reads_B(t+2) if t < 30 else []
    for l in inter(mf(t, "TTT", t == 0), nxt): a(l)
    if t < 30: lq.issue(t+2, 6)
stamp(3)
a(f"s_lshl_b32 s72, s{S_RB}, 2")
a("s_add_u32 s72, s72, s3")
a("s_mul_i32 s72, s72, 118")
a(f"s_mul_i32 s73, s{S_J}, 6")
a("s_add_u32 s72, s72, s73")
a("s_lshl_b32 s72, s72, 10")
a(f"s_add_u32 s72, s72, {AF}")
a("s_add_u32 s73, s72, 4096")
a("s_nop 5")
for b in range(3):
    r = ACC + 16*b
    for i in range(8): a(f"v_cvt_pk_bf16_f32 v{r+i}, v{r+2*i}, v{r+2*i+1}")
    for i in range(8): a(f"v_pk_max_i16 v{r+i}, v{r+i}, 0")
    so = "s72" if b < 2 else "s73"
    o = (b & 1)*2048
    a(f"buffer_store_dwordx4 {vr(r,4)}, v{LN16}, {S4(WS_)}, {so} offen offset:{o}{SC}")
    a(f"buffer_store_dwordx4 {vr(r+4,4)}, v{LN16}, {S4(WS_)}, {so} offen offset:{o+1024}{SC}")
    if b == 0:
        a(f"s_cmp_eq_u32 s{S_J}, 14")
        a("s_cbranch_scc1 .Lattn")
a("s_branch .Lattn")
a.label(".Lgate")
a(f"s_lshl_b32 s72, s3, 10")
a(f"s_add_u32 s72, s72, 110592")
a("s_barrier")
a("s_mov_b32 m0, s72")
a("s_nop 0")
a(f"buffer_load_dwordx4 v{LN16}, {S4(GT_)}, 0 offen lds")
a(f"v_mov_b32 v{TMP+2}, {NONCE_LDS}")
a(f"ds_read_b32 v{TMP+3}, v{TMP+2}")
a("s_waitcnt vmcnt(0) lgkmcnt(0)")
a(f"v_readfirstlane_b32 s{S_NONCE}, v{TMP+3}")
a("s_mov_b32 s75, s72")
wpublish(76, TMP, dual=True)
a("s_mov_b32 s72, s75")
a("s_barrier")
a(f"v_lshrrev_b32 v{TMP}, 5, v{L}")
a(f"v_lshlrev_b32 v{TMP}, 4, v{TMP}")
a(f"v_add_u32 v{TMP}, s72, v{TMP}")
a(f"s_mov_b32 s73, s{S_ROT}")
for p in range(8):
    a("s_lshl_b32 s74, s73, 7")
    a(f"v_add_u32 v{TMP+1}, s74, v{TMP}")
    gb = ACC + 16 + (p & 1)*16
    for sp in range(4):
        a(f"ds_read_b128 {vr(gb+4*sp,4)}, v{TMP+1} offset:{sp*32}")
    a("s_add_u32 s73, s73, 1")
    a("s_and_b32 s73, s73, 7")
    a("s_waitcnt lgkmcnt(0)")
    for sp in range(4):
        t = 4*p+sp
        a(f"v_mfma_f32_32x32x16_bf16 {vr(ACC,16)}, {vr(gb+4*sp,4)}, {vr(XR+4*t,4)}, {'0' if t == 0 else vr(ACC,16)}")
a("s_nop 15")
z = ACC
a(f"v_cvt_pk_bf16_f32 v{z}, v{z}, v{z}")
a(f"v_lshlrev_b32 v{z}, 16, v{z}")
a(f"v_mul_f32 v{z}, 0xbfb8aa3b, v{z}")
a(f"v_exp_f32 v{z}, v{z}")
a("s_nop 0")
a(f"v_add_f32 v{z}, 1.0, v{z}")
a(f"v_rcp_f32 v{z}, v{z}")
a("s_nop 0")
a(f"v_cvt_pk_bf16_f32 v{z}, v{z}, v{z}")
a(f"v_lshlrev_b32 v{z}, 16, v{z}")
a(f"s_lshl_b32 s72, s{S_RB}, 7")
a("s_lshl_b32 s73, s3, 5")
a("s_add_u32 s72, s72, s73")
a("s_lshl_b32 s72, s72, 2")
a(f"s_add_u32 s72, s72, {GOFF}")
a(f"v_lshlrev_b32 v{TMP}, 2, v{L}")
a("s_mov_b32 exec_hi, 0")
a(f"buffer_store_dword v{z}, v{TMP}, {S4(WS_)}, s72 offen{SC}")
a("s_mov_b64 exec, -1")

a.label(".Lattn")
KK = 0; QQ = 40; VV = 48; SS = 64; CD = 96; CF = 112; NM = 176; PP = 208; OO = 128; MM = 160
VAD = 240; KAD = 241; T0 = 242
a("s_lshl_b32 s72, s3, 11")
a(f"s_add_u32 s72, s72, {STG}")
a(f"v_add_u32 v{KAD}, s72, v{LN16}")
a(f"v_and_b32 v2, 15, v{L}")
a(f"v_lshrrev_b32 v3, 5, v{L}")
a("v_lshl_add_u32 v2, v3, 4, v2")
a("v_lshlrev_b32 v2, 4, v2")
a(f"v_add_u32 v{VAD}, s72, v2")
for i in range(16): a(f"v_mov_b32 v{VV+i}, 0x3f803f80")
a(f"v_and_b32 v2, 31, v{L}")
a("v_lshlrev_b32 v3, 2, v3")
a(f"v_sub_u32 v{T0}, v2, v3")
a(f"v_mov_b32 v{T0+1}, {NINF}")
for r in range(16):
    br = (r & 3) + 8*(r >> 2)
    a(f"v_cmp_le_i32 vcc, {br}, v{T0}")
    a("s_nop 1")
    a(f"v_cndmask_b32 v{CD+r}, v{T0+1}, 0, vcc")
    a(f"v_cndmask_b32 v{CF+r}, 0, v{T0+1}, vcc")
for i in range(4): a(f"v_mov_b32 v{MM+i}, {NINF}")
a("s_lshl_b32 s15, s3, 1")
a("s_sub_u32 s15, 8, s15")
a(f"s_cmp_eq_u32 s{S_QB}, 0")
a("s_cselect_b32 s15, s15, 0")
a(f"s_lshl_b32 s76, s{S_RB}, 2")
a("s_add_u32 s76, s76, s3")
a("s_lshl_b32 s76, s76, 4")
a(f"s_add_u32 s76, s76, s{S_J}")
a("s_lshl_b32 s76, s76, 2")
a(f"s_add_u32 s76, s76, {F_B}")
lds_add(4, T0)
a("s_mov_b64 exec, -1")
lds_wait_cnt(3, 4, T0, "stg")
stamp(4)
a(f"ds_read_b128 {vr(QQ+4,4)}, v{KAD} offset:{32768+1024}")
a(f"ds_read_b128 {vr(KK+36,4)}, v{KAD} offset:{9*1024}")
a(f"ds_read_b128 {vr(QQ,4)}, v{KAD} offset:32768")
for v in range(8, -1, -1):
    a(f"ds_read_b128 {vr(KK+4*v,4)}, v{KAD} offset:{v*1024}")
units = [(1, 9)]
for v in range(8, 0, -1): units += [(0, v), (1, v)]
units += [(0, 0)]
def edge(task, v):
    if (task, v) in ((1, 9), (0, 8)): return CD
    if (task, v) in ((1, 1), (0, 0)): return CF
    return None
def smf(task, v, c):
    return f"v_mfma_f32_32x32x16_bf16 {vr(SS+16*task,16)}, {vr(KK+4*v,4)}, {vr(QQ+4*task,4)}, {c}"
def vread(v):
    b = VV + 8*(v & 1)
    a("s_mov_b32 exec_lo, 0xffff")
    a("s_mov_b32 exec_hi, 0xffff")
    a(f"ds_read_b128 {vr(b,4)}, v{VAD} offset:{16384+v*1024}")
    a(f"ds_read_b128 {vr(b+4,4)}, v{VAD} offset:{16384+v*1024+512}")
    a("s_mov_b64 exec, -1")
a("s_waitcnt lgkmcnt(8)")
def c1(u):
    e = edge(*u); return vr(e, 16) if e is not None else "0"
a(smf(*units[0], c1(units[0])))
a("s_waitcnt lgkmcnt(0)")
a("s_nop 7")
for i, (task, v) in enumerate(units):
    if i + 1 < len(units): a(smf(*units[i+1], c1(units[i+1])))
    a("s_nop 2")
    b = SS + 16*task
    for k in range(8):
        a(f"v_max3_f32 v{MM+2*task+(k&1)}, v{b+2*k}, v{b+2*k+1}, v{MM+2*task+(k&1)}")
    if task == 1 and v in (8, 6, 4, 2):
        a(f"s_cmp_eq_u32 s15, {v}")
        a("s_cbranch_scc1 .Lp1done")
a.label(".Lp1done")
vread(9)
vread(8)
for task in range(2):
    m = MM + 2*task
    a(f"v_max_f32 v{m}, v{m}, v{m+1}")
    a(f"v_mov_b32 v{m+1}, v{m}")
a("s_nop 1")
for task in range(2):
    m = MM + 2*task
    a(f"v_permlane32_swap_b32 v{m}, v{m+1}")
a("s_nop 1")
for task in range(2):
    m = MM + 2*task
    a(f"v_max_f32 v{m}, v{m}, v{m+1}")
for task in (1, 0):
    for i in range(16): a(f"v_sub_f32 v{NM+16*task+i}, 0, v{MM+2*task}")
tick("p1end")
a("s_waitcnt vmcnt(0)")
wpublish(76, T0)
stamp(5)
a("s_nop 1")
a(smf(*units[0], vr(NM+16, 16)))
a("s_nop 11")
first = {0: True, 1: True}
def pv(task, v):
    vb = VV + 8*(v & 1); p = PP + 8*task; o = vr(OO+16*task, 16)
    r = [f"v_mfma_f32_32x32x16_bf16 {o}, {vr(vb,4)}, {vr(p,4)}, {'0' if first[task] else o}",
         f"v_mfma_f32_32x32x16_bf16 {o}, {vr(vb+4,4)}, {vr(p+4,4)}, {o}"]
    return r
exits = []
pend = None
for i, (task, v) in enumerate(units):
    if i + 1 < len(units):
        nt_, nv = units[i+1]
        a(smf(nt_, nv, vr(NM+16*nt_, 16)))
    b = SS + 16*task; p = PP + 8*task
    e = edge(task, v)
    if e is not None:
        for k in range(16): a(f"v_add_f32 v{b+k}, v{b+k}, v{e+k}")
    for k in range(16):
        a(f"v_exp_f32 v{b+k}, v{b+k}")
        if pend is not None and k == 3:
            pt, pvv = pend
            if (pt, pvv) == (1, 9) or pt == 0: a("s_waitcnt lgkmcnt(0)")
            m = pv(pt, pvv); a(m[0])
        if pend is not None and k == 8:
            a(m[1]); first[pend[0]] = False
            pt, pvv = pend
            if pt == 1 and pvv >= 2: vread(pvv-2)
    a("s_nop 0")
    for k in range(8): a(f"v_cvt_pk_bf16_f32 v{p+k}, v{b+2*k}, v{b+2*k+1}")
    pend = (task, v)
    if task == 1 and v in (8, 6, 4, 2):
        a(f"s_cmp_eq_u32 s15, {v}")
        a(f"s_cbranch_scc1 .Lp2x{v}")
        exits.append((v, pv(task, v)))
a("s_waitcnt lgkmcnt(0)")
for l in pv(*pend): a(l)
a("s_branch .Lp2done")
for v, m in exits:
    a.label(f".Lp2x{v}")
    a("s_nop 0")
    for l in m: a(l)
    a("s_branch .Lp2done")
a.label(".Lp2done")
a(f"s_lshl_b32 s72, s{S_QB}, 3")
a("s_lshl_b32 s73, s3, 1")
a("s_add_u32 s72, s72, s73")
a("s_mul_i32 s72, s72, 118")
a(f"s_add_u32 s72, s72, s{S_HEAD}")
a("s_lshl_b32 s72, s72, 10")
a(f"s_add_u32 s72, s72, {AF + 86*1024}")
a(f"s_add_u32 s73, s72, {118*1024}")
a("s_waitcnt lgkmcnt(0)")
a(f"v_mov_b32 v{T0}, {CNT_LDS}")
a(f"v_mov_b32 v{T0+1}, 1")
a("s_mov_b64 exec, 1")
a(f"ds_add_u32 v{T0}, v{T0+1}")
a("s_mov_b64 exec, -1")
a("s_nop 7")
for task in (1, 0):
    o = OO + 16*task
    a(f"v_rcp_f32 v{MM}, v{o+8}")
    a("s_nop 0")
    for i in range(8): a(f"v_mul_f32 v{o+i}, v{o+i}, v{MM}")
    for i in range(4): a(f"v_cvt_pk_bf16_f32 v{o+i}, v{o+2*i}, v{o+2*i+1}")
    a(f"buffer_store_dwordx4 {vr(o,4)}, v{LN16}, {S4(WS_)}, s{72+task} offen{SC}")
stamp(6)
EW = 0; EH = 64
a(f"s_mul_i32 s72, s{S_CT}, {2*118}")
a("s_lshl_b32 s73, s3, 3")
a("s_add_u32 s72, s72, s73")
a("s_lshl_b32 s72, s72, 10")
a(f"s_add_u32 s72, s72, {WF + 86*1024}")
a(f"v_add_u32 v{T}, s72, v{LN16}")
a(f"v_add_u32 v{T+1}, {118*1024}, v{T}")
a(f"s_mul_i32 s72, s{S_RT}, {2*118*1024}")
a(f"s_add_u32 s72, s72, {AF}")
for rt in range(2):
    a(f"s_add_u32 s{76+4*rt}, s34, s72")
    a(f"s_addc_u32 s{77+4*rt}, s35, 0")
    a(f"s_mov_b32 s{78+4*rt}, {118*1024}")
    a(f"s_mov_b32 s{79+4*rt}, 0x00020000")
    a(f"s_add_u32 s72, s72, {118*1024}")
a(f"s_lshl_b32 s91, s{S_QB}, 2")
a("s_add_u32 s91, s91, s3")
a("s_lshl_b32 s91, s91, 5")
a(f"s_add_u32 s91, s91, s{S_HEAD}")
a("s_lshl_b32 s91, s91, 2")
a(f"s_add_u32 s91, s91, {F_C}")
a(f"v_mov_b32 v{T+2}, 0")
a(f"v_mov_b32 v{T+3}, s{S_NONCE}")
a("s_waitcnt vmcnt(0)")
a("s_mov_b64 exec, 1")
a(f"buffer_store_dword v{T+3}, v{T+2}, {S4(WS_)}, s91 offen{SC}")
a("s_mov_b64 exec, -1")
tick("pubC")
a(f"s_lshl_b32 s91, s{S_CT}, 7")
a("s_lshl_b32 s72, s3, 3")
a("s_add_u32 s91, s91, s72")
a("s_lshl_b32 s91, s91, 2")
a(f"s_add_u32 s91, s91, {F_W + 86*4}")
a("s_mov_b32 s84, 0xff")
a("s_mov_b32 s85, 0")
a(f"v_lshlrev_b32 v{T+2}, 2, v{L}")
poll_flags(91, 84, T+2, "fwe")
for k in range(8):
    if k == 4:
        a(f"v_add_u32 v{T}, 4096, v{T}")
        a(f"v_add_u32 v{T+1}, 4096, v{T+1}")
    a(f"buffer_load_dwordx4 {vr(EW+8*k,4)}, v{T}, {S4(WS_)}, 0 offen offset:{(k%4)*1024}")
    a(f"buffer_load_dwordx4 {vr(EW+8*k+4,4)}, v{T+1}, {S4(WS_)}, 0 offen offset:{(k%4)*1024}")
a(f"s_lshl_b32 s91, s{S_RT}, 7")
a(f"s_add_u32 s91, s91, {F_B}")
a(f"s_lshl_b32 s92, s{S_RT}, 7")
a(f"s_add_u32 s92, s92, {F_C}")
a("s_mov_b32 s84, -1")
a("s_mov_b32 s85, 0")
a(f"v_lshlrev_b32 v{T+2}, 2, v{L}")
a("s_cmp_lg_u32 s3, 0")
a("s_cbranch_scc1 .Lfc_wait")
a("s_mov_b32 exec_hi, 0")
a(f"s_mov_b32 s74, {SPIN}")
a.label(".Lfc_poll")
a(f"buffer_load_dword v{T+3}, v{T+2}, {S4(WS_)}, s92 offen{SC}")
a(f"buffer_load_dword v{T+4}, v{T+2}, {S4(WS_)}, s91 offen{SC}")
a("s_waitcnt vmcnt(0)")
a(f"v_cmp_ne_u32 vcc, s{S_NONCE}, v{T+3}")
a("s_and_b64 s[72:73], vcc, s[84:85]")
a(f"v_cmp_ne_u32 vcc, s{S_NONCE}, v{T+4}")
a("s_and_b32 s73, vcc_lo, 0x80008000")
a("s_or_b32 s72, s72, s73")
a("s_cbranch_scc0 .Lfc_ok")
a(f"s_sleep {PSLEEP}")
a("s_sub_u32 s74, s74, 1")
a("s_cmp_lg_u32 s74, 0")
a("s_cbranch_scc1 .Lfc_poll")
a.label(".Lfc_ok")
a("s_mov_b64 exec, -1")
lds_release(2, T+3)
a("s_branch .Lfc_go")
a.label(".Lfc_wait")
lds_wait_rel(2, T+3, "fc")
a.label(".Lfc_go")
stamp(7)
a("s_lshl_b32 s72, s3, 13")
a(f"s_add_u32 s72, s72, {86*1024}")
a(f"v_add_u32 v{T}, s72, v{LN16}")
for k in range(8):
    if k == 4: a(f"v_add_u32 v{T}, 4096, v{T}")
    a(f"buffer_load_dwordx4 {vr(EH+8*k,4)}, v{T}, s[76:79], 0 offen offset:{(k%4)*1024}")
    a(f"buffer_load_dwordx4 {vr(EH+8*k+4,4)}, v{T}, s[80:83], 0 offen offset:{(k%4)*1024}")
a(f"v_and_b32 v{T+2}, 31, v{L}")
a(f"v_lshlrev_b32 v{T+2}, 2, v{T+2}")
a(f"s_lshl_b32 s72, s{S_RT}, 8")
a(f"s_add_u32 s72, s72, {GOFF}")
a(f"buffer_load_dword v{GV}, v{T+2}, {S4(WS_)}, s72 offen")
a(f"buffer_load_dword v{GV+1}, v{T+2}, {S4(WS_)}, s72 offen offset:128")
for k in range(8):
    a(f"s_waitcnt vmcnt({2*(7-k)+2})")
    for nt in range(2):
        for rt in range(2):
            acc = vr(DACC+(nt*2+rt)*16, 16)
            a(f"v_mfma_f32_32x32x16_bf16 {acc}, {vr(EW+8*k+4*nt,4)}, {vr(EH+8*k+4*rt,4)}, {'0' if k == 0 else acc}")
a("s_waitcnt vmcnt(0)")
a(f"s_lshl_b32 s90, s3, 14")
a(f"s_add_u32 s90, s90, {EAREA}")
a(f"v_mov_b32 v{T}, {CNT_LDS}")
a(f"s_mov_b32 s74, {SPIN}")
a.label(".Lcnt_poll")
a(f"ds_read_b32 v{T+1}, v{T}")
a("s_waitcnt lgkmcnt(0)")
a(f"v_readfirstlane_b32 s72, v{T+1}")
a("s_cmp_eq_u32 s72, 4")
a("s_cbranch_scc1 .Lreduce")
a("s_sub_u32 s74, s74, 1")
a("s_cmp_lg_u32 s74, 0")
a("s_cbranch_scc1 .Lcnt_poll")

a.label(".Lreduce")
stamp(8)
a(f"v_and_b32 v1, 31, v{L}")
a(f"v_lshrrev_b32 v3, 5, v{L}")
a(f"v_and_b32 v6, 15, v{L}")
a("v_lshlrev_b32 v1, 8, v1")
a("v_add_u32 v1, s90, v1")
a("v_xor_b32 v3, v3, v6")
a("s_nop 4")
for nt in range(2):
    for rt in range(2):
        r = DACC + (nt*2+rt)*16
        for i in range(16): a(f"v_mul_f32 v{r+i}, v{r+i}, v{GV+rt}")
for s in range(8):
    a(f"v_xor_b32 v7, {2*s}, v3")
    a(f"v_lshl_add_u32 v{8+s}, v7, 4, v1")
for nt in range(2):
    for rt in range(2):
        for qq in range(4):
            a(f"ds_write_b128 v{8+nt*4+qq}, {vr(DACC+(nt*2+rt)*16+4*qq,4)} offset:{rt*8192}")
a("s_waitcnt lgkmcnt(0)")
a("s_barrier")
stamp(9)
a(f"v_lshrrev_b32 v1, 3, v{L}")
a("s_lshl_b32 s72, s3, 3")
a("v_add_u32 v1, s72, v1")
a(f"v_and_b32 v3, 7, v{L}")
a("v_and_b32 v6, 15, v1")
a("v_lshlrev_b32 v7, 1, v3")
a("v_xor_b32 v7, v7, v6")
a("v_xor_b32 v6, 1, v7")
a("v_lshlrev_b32 v4, 8, v1")
a("v_lshl_add_u32 v7, v7, 4, v4")
a("v_lshl_add_u32 v6, v6, 4, v4")
a(f"v_add_u32 v4, {EAREA}, v7")
a(f"v_add_u32 v5, {EAREA}, v6")
a(f"v_add_u32 v2, {DAREA[2]}, v7")
a(f"v_add_u32 v0, {DAREA[2]}, v6")
for w in range(4):
    a(f"ds_read_b128 {vr(8+w*8,4)}, v4 offset:{w*ESZ}")
    a(f"ds_read_b128 {vr(12+w*8,4)}, v5 offset:{w*ESZ}")
for w in range(4):
    a(f"ds_read_b128 {vr(40+w*8,4)}, v{7 if w < 2 else 2} offset:{(w&1)*24576}")
    a(f"ds_read_b128 {vr(44+w*8,4)}, v{6 if w < 2 else 0} offset:{(w&1)*24576}")
a("s_waitcnt lgkmcnt(0)")
for step in (32, 16, 8):
    for i in range(step):
        a(f"v_add_f32 v{8+i}, v{8+i}, v{8+step+i}")
for i in range(4): a(f"v_cvt_pk_bf16_f32 v{8+i}, v{8+2*i}, v{8+2*i+1}")
a(f"s_lshl_b32 s72, s{S_RT}, 16")
a(f"s_lshl_b32 s73, s{S_CT}, 7")
a("s_add_u32 s72, s72, s73")
a("v_lshlrev_b32 v1, 10, v1")
a("v_lshl_add_u32 v1, v3, 4, v1")
a(f"buffer_store_dwordx4 v[8:11], v1, {S4(OUT_)}, s72 offen")
if PROF:
    a("s_waitcnt vmcnt(0)")
    stamp(10)
    a("s_memtime s[98:99]")
    a("s_waitcnt lgkmcnt(0)")
    a("v_writelane_b32 v255, s98, 13")
    a("s_lshl_b32 s72, s2, 3")
    a("s_add_u32 s72, s72, s3")
    a("s_lshl_b32 s72, s72, 8")
    a(f"s_add_u32 s72, s72, {PROFOFF}")
    a(f"v_lshlrev_b32 v1, 2, v{L}")
    a(f"buffer_store_dword v255, v1, {S4(WS_)}, s72 offen")
    json.dump(ticks, open("ticks.json", "w"))
a.label(".Lend")

KN = "gated_mix__sliding_block__dense_activation_relu__prompt_kernel"
hdr = open("gated_mix__sliding_block__dense_activation_relu__prompt.s.ref").read().split("; Override launch")[0]
out = hdr + "; @launch grid=(256,1,1) block=(512,1,1) lds=163840\n"
out += '.amdgcn_target "amdgcn-amd-amdhsa--gfx950"\n'
body = a.text()
import subprocess, re
tmp = out + kernel_wrap(KN, body.replace("CODE_KB", "20"), 256, 100)
open("_t.s", "w").write(tmp)
subprocess.run(["clang", "-x", "assembler", "-target", "amdgcn-amd-amdhsa", "-mcpu=gfx950", "-c", "_t.s", "-o", "_t.o"], check=True)
h = subprocess.run(["llvm-objdump", "-h", "_t.o"], capture_output=True, text=True).stdout
sz = int(re.search(r"\.text\s+([0-9a-f]+)", h).group(1), 16)
print("code bytes", sz)
out += kernel_wrap(KN, body.replace("CODE_KB", str(min(32, sz // 1024))), 256, 100)
open(sys.argv[1], "w").write(out)
```

```python
import sys, os, json
from asmlib import *

QF, KF, VF = 0x000000, 0x200000, 0x400000
AF = 0x600000
WF = 0xE00000
GOFF = 0x1000000
FLG = 0x1010000
F_A, F_AL, F_B, F_C, F_W = FLG, FLG+0x1000, FLG+0x2000, FLG+0x3000, FLG+0x5000
WSBYTES = 0x1600000
CSCALE = 0x3EB8AA3B
NINF = 0xFF800000
PROF = len(sys.argv) > 2 and sys.argv[2] == "prof"
PROFOFF = 0x1080000
SC = " sc1"
SPIN = 1 << 14
PSLEEP = int(os.environ.get("PSLEEP", "2"))
WFP = int(os.environ.get("WFP", "3"))
CPF = int(os.environ.get("CPF", "1"))
DIAG = int(os.environ.get("DIAG", "0"))
KNAME = "gated_mix__sliding_block__dense_activation_relu__prompt_kernel"
NP1 = int(os.environ.get("NP1", "3"))
NP2 = int(os.environ.get("NP2", "1"))
PFW1 = int(os.environ.get("PFW1", "0"))
LOCAL = 0
PUBA_T = int(os.environ.get("PUBA_T", "8"))
K2F, V2F = 0x1200000, 0x1400000

a = Asm()
def stamp(i):
    if PROF:
        a("s_memrealtime s[98:99]")
        a("s_waitcnt lgkmcnt(0)")
        a(f"v_writelane_b32 v255, s98, {i}")
ticks = {}
def tick(name):
    if PROF:
        if name not in ticks: ticks[name] = 16 + len(ticks)
        assert ticks[name] < 64
        stamp(ticks[name])

SLOT = 28672
R1 = 114688
BH = [R1, R1+12288, R1+24576, 0, 12288, SLOT, SLOT+12288, 2*SLOT]
BOUNCE = R1 + 36864
NONCE_LDS = BOUNCE + 8192
STG = 69632
EAREA = 49152; ESZ = 16384
DAREA = [0, 24576, 114688, 139264]
NSL = 10
CNT_LDS = NONCE_LDS + 4; REL_LDS = NONCE_LDS + 8

S_XCD, S_IDX, S_RB, S_J, S_HEAD, S_QB, S_RT, S_CT, S_ROT, S_NONCE = 4, 5, 6, 7, 8, 9, 10, 11, 12, 13
X_, WQ_, WS_, W1_, WT_, OUT_, DBG_, GT_ = 36, 40, 44, 48, 52, 60, 64, 68
def S4(b): return f"s[{b}:{b+3}]"

class Q:
    def __init__(self, kind, cap): self.q = []; self.kind = kind; self.cap = cap
    def issue(self, tag, n=1): self.q.extend([tag]*n)
    def wait(self, *tags):
        idx = [i for i, t in enumerate(self.q) if t in tags]
        if not idx: return
        n = len(self.q) - 1 - max(idx)
        a(f"s_waitcnt {self.kind}({min(n, self.cap)})")
        self.q = self.q[max(idx)+1:]
    def drain(self): self.q = []

def poll_flags(off_sreg, mask, vtmp, name, pre=False):
    a(f"s_mov_b32 s74, {SPIN}")
    a.label(f".L{name}_poll")
    a(f"buffer_load_dword v{vtmp+1}, v{vtmp}, {S4(WS_)}, s{off_sreg} offen{SC}")
    a("s_waitcnt vmcnt(0)")
    a(f"v_cmp_ne_u32 vcc, s{S_NONCE}, v{vtmp+1}")
    a(f"s_and_b64 s[72:73], vcc, s[{mask}:{mask+1}]")
    a(f"s_cbranch_scc0 .L{name}_ok")
    a(f"s_sleep {PSLEEP}")
    a("s_sub_u32 s74, s74, 1")
    a("s_cmp_lg_u32 s74, 0")
    a(f"s_cbranch_scc1 .L{name}_poll")
    a.label(f".L{name}_ok")

def publish(off_sreg, vtmp, dual=False):
    l = a.newlabel("pub")
    a("s_cmp_lg_u32 s3, 0")
    a(f"s_cbranch_scc1 {l}")
    a("s_mov_b64 exec, 1")
    a(f"v_mov_b32 v{vtmp}, 0")
    a(f"v_mov_b32 v{vtmp+1}, s{S_NONCE}")
    if dual: a(f"buffer_store_dword v{vtmp+1}, v{vtmp}, {S4(WS_)}, s{off_sreg} offen offset:{0x2000 & 0xfff | 0x800}")
    a(f"buffer_store_dword v{vtmp+1}, v{vtmp}, {S4(WS_)}, s{off_sreg} offen{SC}")
    a("s_mov_b64 exec, -1")
    a.label(l)

def wpublish(off_sreg, vtmp, dual=False):
    a("s_mov_b64 exec, 1")
    a(f"v_mov_b32 v{vtmp}, 0")
    a(f"v_mov_b32 v{vtmp+1}, s{S_NONCE}")
    if dual:
        a(f"s_add_u32 s72, s{off_sreg}, 0x1000")
        a(f"buffer_store_dword v{vtmp+1}, v{vtmp}, {S4(WS_)}, s72 offen")
    a(f"buffer_store_dword v{vtmp+1}, v{vtmp}, {S4(WS_)}, s{off_sreg} offen{SC}")
    a("s_mov_b64 exec, -1")

PSLEEP = int(os.environ.get("PSLEEP", "2"))
def lds_release(i, vt):
    a(f"v_mov_b32 v{vt}, {REL_LDS + 4*i}")
    a(f"v_mov_b32 v{vt+1}, 1")
    a(f"ds_write_b32 v{vt}, v{vt+1}")
def lds_add(i, vt):
    a(f"v_mov_b32 v{vt}, {REL_LDS + 4*i}")
    a(f"v_mov_b32 v{vt+1}, 1")
    a("s_mov_b64 exec, 1")
    a(f"ds_add_u32 v{vt}, v{vt+1}")
def lds_wait_cnt(i, n, vt, name):
    a(f"v_mov_b32 v{vt}, {REL_LDS + 4*i}")
    a(f"s_mov_b32 s74, {SPIN*16}")
    a.label(f".L{name}_cw")
    a(f"ds_read_b32 v{vt+1}, v{vt}")
    a("s_waitcnt lgkmcnt(0)")
    a(f"v_readfirstlane_b32 s72, v{vt+1}")
    a(f"s_cmp_eq_u32 s72, {n}")
    a(f"s_cbranch_scc1 .L{name}_cok")
    a("s_sleep 1")
    a("s_sub_u32 s74, s74, 1")
    a("s_cmp_lg_u32 s74, 0")
    a(f"s_cbranch_scc1 .L{name}_cw")
    a.label(f".L{name}_cok")
def lds_wait_rel(i, vt, name):
    a(f"v_mov_b32 v{vt}, {REL_LDS + 4*i}")
    a(f"s_mov_b32 s74, {SPIN*16}")
    a.label(f".L{name}_lw")
    a(f"ds_read_b32 v{vt+1}, v{vt}")
    a("s_waitcnt lgkmcnt(0)")
    a(f"v_readfirstlane_b32 s72, v{vt+1}")
    a("s_cmp_lg_u32 s72, 0")
    a(f"s_cbranch_scc1 .L{name}_lok")
    a("s_sleep 1")
    a("s_sub_u32 s74, s74, 1")
    a("s_cmp_lg_u32 s74, 0")
    a(f"s_cbranch_scc1 .L{name}_lw")
    a.label(f".L{name}_lok")

def inter(m, r):
    out = []; per = -(-len(r) // len(m)) if r else 0; ri = 0
    for mm in m:
        out.append(mm)
        for _ in range(per):
            if ri < len(r): out.append(r[ri]); ri += 1
    return out

a("s_cmp_ge_u32 s2, 256")
a("s_cbranch_scc1 .Lend")
a("s_load_dwordx16 s[16:31], s[0:1], 0")
a("s_load_dwordx4 s[32:35], s[0:1], 64")
if PROF: a("v_mov_b32 v255, 0")
stamp(0)
if PROF:
    a("s_memtime s[98:99]")
    a("s_waitcnt lgkmcnt(0)")
    a("v_writelane_b32 v255, s98, 12")
a("v_lshrrev_b32 v1, 6, v0")
a("v_and_b32 v0, 63, v0")
a("v_readfirstlane_b32 s3, v1")
a(f"s_and_b32 s{S_XCD}, s2, 7")
a(f"s_lshr_b32 s{S_IDX}, s2, 3")
a(f"s_and_b32 s72, s{S_XCD}, 1")
a(f"s_lshr_b32 s73, s{S_XCD}, 1")
a(f"s_and_b32 s74, s{S_IDX}, 7")
a(f"s_lshr_b32 s75, s{S_IDX}, 3")
a(f"s_lshl_b32 s{S_RB}, s72, 3")
a(f"s_add_u32 s{S_RB}, s{S_RB}, s74")
a(f"s_lshl_b32 s{S_J}, s73, 2")
a(f"s_add_u32 s{S_J}, s{S_J}, s75")
a(f"s_lshl_b32 s{S_ROT}, s75, 1")
a(f"s_add_u32 s{S_ROT}, s{S_ROT}, s74")
a(f"s_and_b32 s{S_ROT}, s{S_ROT}, 7")
a(f"s_lshl_b32 s{S_HEAD}, s73, 3")
a(f"s_add_u32 s{S_HEAD}, s{S_HEAD}, s74")
a(f"s_lshl_b32 s{S_QB}, s72, 2")
a(f"s_add_u32 s{S_QB}, s{S_QB}, s75")
a(f"s_lshl_b32 s{S_RT}, s{S_XCD}, 2")
a(f"s_add_u32 s{S_RT}, s{S_RT}, s75")
a(f"s_mov_b32 s{S_CT}, s74")
a(f"s_mov_b32 s{S_NONCE}, 0")
a("s_and_b32 s14, s3, 3")
a(f"s_lshr_b32 s97, s{S_IDX}, 3")
a(f"s_lshl_b32 s93, s{S_RB}, 2")
a("s_add_u32 s93, s93, s14")
a("s_cmp_lt_u32 s3, 4")
a("s_cbranch_scc1 .Lcompute")

VX = 240; VWA = 244; VWB = 245; VWB2 = 246; LN16 = 247; T = 248; L = 254
a(f"v_mov_b32 v{L}, v0")
a("v_lshrrev_b32 v1, 3, v0")
a("v_and_b32 v2, 7, v0")
a("v_lshrrev_b32 v3, 4, v0")
a(f"s_lshl_b32 s72, s{S_RB}, 7")
a("s_lshl_b32 s73, s14, 5")
a("s_add_u32 s72, s72, s73")
for j in range(4):
    a(f"v_add_u32 v4, {4*(j&1)}, v3")
    a("v_xor_b32 v4, v4, v2")
    a("v_lshlrev_b32 v4, 4, v4")
    a(f"v_add_u32 v5, {8*j}, v1")
    a("v_add_u32 v5, s72, v5")
    a(f"v_lshl_add_u32 v{VX+j}, v5, 10, v4")
a("v_lshrrev_b32 v1, 2, v0")
a("s_lshl_b32 s72, s14, 4")
a("v_add_u32 v6, s72, v1")
a("v_and_b32 v2, 3, v0")
a("v_lshlrev_b32 v2, 4, v2")
a(f"s_lshl_b32 s72, s{S_J}, 6")
a(f"v_mul_u32_u24 v{VWA}, 3072, v6")
a(f"v_add3_u32 v{VWA}, v{VWA}, v2, s72")
a(f"s_lshl_b32 s78, s{S_ROT}, 7")
a(f"s_mul_i32 s79, s{S_ROT}, {64*3072}")
a(f"s_mul_i32 s80, s{S_ROT}, {64*2752}")
a("s_lshl_b32 s81, s14, 12")
a("s_lshl_b32 s82, s14, 10")
a("s_waitcnt lgkmcnt(0)")
srd(a, X_, 16, 2048*1024)
srd(a, WQ_, 18, 512*3072)
vq = Q("vmcnt", 63)
def issue_A(p):
    slot = p % 4
    for j in range(4):
        a(f"s_add_u32 m0, s81, {slot*SLOT + j*1024}")
        a("s_nop 0")
        a(f"buffer_load_dwordx4 v{VX+j}, {S4(X_)}, s78 offen lds")
    for b in range(3):
        a(f"s_add_u32 m0, s82, {slot*SLOT + 16384 + b*4096 - b*1024}")
        a("s_nop 0")
        a(f"buffer_load_dwordx4 v{VWA}, {S4(WQ_)}, s79 offen offset:{b*1024} lds")
    a("s_add_u32 s78, s78, 128")
    a(f"s_add_u32 s79, s79, {64*3072}")
    a("s_cmp_eq_u32 s78, 1024")
    a("s_cselect_b32 s78, 0, s78")
    a("s_cselect_b32 s79, 0, s79")
    vq.issue(("A", p), 7)
def issue_Bhalf(h):
    for b in range(3):
        a(f"s_add_u32 m0, s82, {BH[h] + b*4096 - b*64}")
        a("s_nop 0")
        a(f"buffer_load_dwordx4 v{VWB if b == 0 else VWB2}, {S4(W1_)}, s80 offen offset:{b*64} lds")
    a(f"s_add_u32 s80, s80, {64*2752}")
    a(f"s_cmp_eq_u32 s80, {512*2752}")
    a("s_cselect_b32 s80, 0, s80")
    vq.issue(("B", h), 3)
AW1 = int(os.environ.get("AW1", "0"))
SCH = os.environ.get("SCH", "c")
issue_A(0)
issue_A(1)
if SCH == "a": issue_A(2)
srd(a, WS_, 34, WSBYTES)
srd(a, W1_, 24, 512*2752)
srd(a, OUT_, 30, 2048*1024)
a(f"s_mul_i32 s72, s{S_J}, 192")
a(f"v_mul_u32_u24 v{VWB}, 2752, v6")
a(f"v_add3_u32 v{VWB}, v{VWB}, v2, s72")
a(f"v_mov_b32 v{VWB2}, v{VWB}")
a(f"s_cmp_lt_u32 s{S_J}, 14")
a("s_cbranch_scc1 .Lwbok")
a(f"v_mov_b32 v{VWB2}, 0x40000000")
a(f"s_cmp_lt_u32 s{S_J}, 15")
a("s_cbranch_scc1 .Lwbok")
a(f"v_mov_b32 v{VWB}, 0x40000000")
a.label(".Lwbok")
a(f"v_lshlrev_b32 v{LN16}, 4, v0")
srd(a, DBG_, 32, 256)
a(f"s_lshl_b32 s83, s{S_IDX}, 2")
a("s_add_u32 s83, s83, s14")
a("s_cmp_lt_u32 s83, 86")
a(f"s_cselect_b32 s{WT_}, s26, s20")
a(f"s_cselect_b32 s{WT_+1}, s27, s21")
a(f"s_mov_b32 s{WT_+2}, {1376*1024}")
a(f"s_cselect_b32 s{WT_+2}, s{WT_+2}, {512*1024}")
a(f"s_mov_b32 s{WT_+3}, 0x00020000")
a("s_cselect_b32 s84, 0, 86")
a("s_sub_u32 s84, s83, s84")
a("s_lshl_b32 s84, s84, 14")
a(f"s_lshl_b32 s85, s{S_XCD}, 7")
a("s_add_u32 s84, s84, s85")
a("v_lshlrev_b32 v8, 10, v1")
a("v_add_u32 v8, v8, v2")
a("s_lshl_b32 s85, s14, 11")
a(f"s_add_u32 s85, s85, {BOUNCE}")
a("v_lshrrev_b32 v9, 5, v0")
a("v_lshlrev_b32 v9, 8, v9")
a("v_bfe_u32 v4, v0, 2, 2")
a("v_lshl_add_u32 v9, v4, 6, v9")
a("v_bfe_u32 v4, v0, 4, 1")
a("v_lshl_add_u32 v9, v4, 5, v9")
a("v_and_b32 v4, 3, v0")
a("v_lshl_add_u32 v9, v4, 3, v9")
a("v_add_u32 v9, s85, v9")
a("v_mov_b32 v10, 0")
BSCHED = {4: [0, 1, 2], 5: [3, 4], 6: [5, 6], 7: [7]}
if SCH == "b":
    issue_Bhalf(0)
    BSCHED = {3: [1], 4: [2], 5: [3, 4], 6: [5, 6], 7: [7]}
if SCH == "c":
    BSCHED = {0: [0], 4: [1, 2], 5: [3, 4], 6: [5, 6], 7: [7]}
for p in range(8):
    vq.wait(("A", p))
    a("s_barrier")
    if p == 0: stamp(1)
    if p == 0 and SCH != "a": issue_A(2)
    if p + 3 < 8: issue_A(p+3)
    if p == 4:
        a(f"buffer_load_dword v11, v10, {S4(DBG_)}, 0 offen{SC}")
        vq.issue("nonce", 1)
    for h in BSCHED.get(p, []): issue_Bhalf(h)
    if p == WFP:
        a("s_mov_b32 m0, s85")
        a("s_nop 0")
        a(f"buffer_load_dwordx4 v8, {S4(WT_)}, s84 offen lds")
        a("s_add_u32 m0, s85, 960")
        a("s_nop 0")
        a(f"buffer_load_dwordx4 v8, {S4(WT_)}, s84 offen offset:64 lds")
        vq.issue("wfld", 2)
vq.wait("nonce")
a(f"v_readfirstlane_b32 s{S_NONCE}, v11")
a(f"s_cmp_lg_u32 s{S_NONCE}, 0")
a("s_cbranch_scc1 .Lnonce_ok")
a(f"s_mov_b32 s74, {SPIN}")
a.label(".Lnonce_poll")
a("s_sleep 1")
a(f"buffer_load_dword v11, v10, {S4(DBG_)}, 0 offen{SC}")
a("s_waitcnt vmcnt(0)")
a(f"v_readfirstlane_b32 s{S_NONCE}, v11")
a(f"s_cmp_lg_u32 s{S_NONCE}, 0")
a("s_cbranch_scc1 .Lnonce_ok")
a("s_sub_u32 s74, s74, 1")
a("s_cmp_lg_u32 s74, 0")
a("s_cbranch_scc1 .Lnonce_poll")
a.label(".Lnonce_ok")
a(f"v_mov_b32 v4, {NONCE_LDS}")
a("ds_write_b32 v4, v11")
for i_ in range(1, 8): a(f"ds_write_b32 v4, v10 offset:{4*i_}")
a("s_waitcnt lgkmcnt(0)")
stamp(2)
a(f"v_lshlrev_b32 v{T+2}, 2, v{L}")
vq.wait("wfld")
for i in range(4): a(f"ds_read_b64_tr_b16 v[{12+2*i}:{13+2*i}], v9 offset:{512*i}")
a(f"s_mul_i32 s84, s{S_XCD}, {2*118}")
a("s_add_u32 s84, s84, s83")
a("s_lshl_b32 s84, s84, 10")
a(f"s_add_u32 s84, s84, {WF}")
a("s_cmp_lt_u32 s83, 118")
a("s_cselect_b32 s84, s84, 0x40000000")
a(f"s_add_u32 s85, s84, {118*1024}")
a("s_waitcnt lgkmcnt(0)")
a(f"buffer_store_dwordx4 v[12:15], v{LN16}, {S4(WS_)}, s84 offen{SC}")
a(f"buffer_store_dwordx4 v[16:19], v{LN16}, {S4(WS_)}, s85 offen{SC}")
a(f"s_lshl_b32 s90, s{S_XCD}, 7")
a("s_add_u32 s90, s90, s83")
a("s_lshl_b32 s90, s90, 2")
a(f"s_add_u32 s90, s90, {F_W}")
vq.issue("wfst", 2)
vq.wait(("B", 3))
a("s_barrier")
vq.wait(("B", 7))
a("s_barrier")
stamp(3)
a("s_mov_b32 s85, 0")
a("s_waitcnt vmcnt(0)")
wpublish(90, T+3)
a("s_cmp_lg_u32 s3, 4")
a("s_cbranch_scc1 .Lfa_wait")
a(f"s_lshr_b32 s76, s{S_HEAD}, 1")
a("s_lshl_b32 s76, s76, 8")
a(f"s_lshl_b32 s77, s{S_QB}, 5")
a("s_add_u32 s76, s76, s77")
a(f"s_add_u32 s76, s76, {F_A - 32}")
a("s_add_u32 s77, s76, 0x1000")
a("s_mov_b32 s84, 0xffff")
a(f"s_cmp_eq_u32 s{S_QB}, 0")
a("s_cselect_b32 s84, 0xff00, s84")
a(f"s_mov_b32 s74, {SPIN}")
a("s_mov_b64 exec, 0xffff")
a.label(".Lfa_poll")
a(f"buffer_load_dword v{T+3}, v{T+2}, {S4(WS_)}, s77 offen{SC}")
a(f"buffer_load_dword v{T+4}, v{T+2}, {S4(WS_)}, s76 offen{SC}")
a("s_waitcnt vmcnt(0)")
a(f"v_cmp_ne_u32 vcc, s{S_NONCE}, v{T+3}")
a("s_and_b64 s[72:73], vcc, s[84:85]")
a(f"v_cmp_ne_u32 vcc, s{S_NONCE}, v{T+4}")
a("s_and_b64 s[72:73], vcc, s[72:73]")
a("s_cbranch_scc0 .Lfa_ok")
a(f"s_sleep {PSLEEP}")
a("s_sub_u32 s74, s74, 1")
a("s_cmp_lg_u32 s74, 0")
a("s_cbranch_scc1 .Lfa_poll")
a.label(".Lfa_ok")
a("s_mov_b64 exec, -1")
lds_release(0, T+3)
a("s_branch .Lfa_go")
a.label(".Lfa_wait")
lds_wait_rel(0, T+3, "fa")
a.label(".Lfa_go")
stamp(11)
a(f"s_lshl_b32 s72, s{S_HEAD}, 6")
a(f"s_lshl_b32 s73, s{S_QB}, 3")
a("s_add_u32 s72, s72, s73")
a("s_lshl_b32 s72, s72, 10")
a("s_lshl_b32 s73, s14, 11")
a("s_add_u32 s73, s73, s72")
a("s_add_u32 s74, s72, s81")
a(f"s_add_u32 s74, s74, {KF - 8192}")
a(f"s_lshl_b32 s75, s{S_QB}, 2")
a("s_add_u32 s75, s75, s14")
a("s_cmp_lt_u32 s75, 2")
a("s_cselect_b32 s74, 0x40000000, s74")
a(f"s_add_u32 s75, s74, {VF - KF}")
a(f"s_add_u32 m0, s81, {STG}")
a("s_nop 0")
for i in range(4): a(f"buffer_load_dwordx4 v{LN16}, {S4(WS_)}, s74 offen offset:{i*1024} lds")
a("s_lshl_b32 s74, s14, 11")
a(f"s_add_u32 m0, s74, {STG + 32768}")
a("s_nop 0")
for i in range(2): a(f"buffer_load_dwordx4 v{LN16}, {S4(WS_)}, s73 offen offset:{i*1024} lds")
a(f"s_add_u32 m0, s81, {STG + 16384}")
a("s_nop 0")
for i in range(4): a(f"buffer_load_dwordx4 v{LN16}, {S4(WS_)}, s75 offen offset:{i*1024} lds")
vq.drain()
vq.issue("stg", 10)
a("s_mul_i32 s86, s14, 22")
a("s_cmp_eq_u32 s14, 3")
a("s_cselect_b32 s86, 65, s86")
a("s_add_u32 s87, s86, 22")
a("s_cmp_ge_u32 s14, 2")
a("s_cselect_b32 s88, 1, 0")
a("s_sub_u32 s87, s87, s88")
a(f"s_mul_i32 s92, s{S_CT}, 3")
a("s_mul_i32 s72, s97, 5")
a("s_add_u32 s92, s92, s72")
a("s_cmp_ge_u32 s92, 22")
a("s_cselect_b32 s72, 22, 0")
a("s_sub_u32 s92, s92, s72")
a("s_lshl_b32 s92, s92, 10")
a("s_mov_b32 s93, s92")
a(f"s_mul_i32 s72, s{S_CT}, {2*118}")
a("s_add_u32 s72, s72, s86")
a("s_lshl_b32 s72, s72, 10")
a(f"s_add_u32 s72, s72, {WF}")
a(f"v_add_u32 v{T}, s72, v{LN16}")
a(f"v_add_u32 v{T+1}, {118*1024}, v{T}")
a(f"s_mul_i32 s72, s{S_RT}, {2*118*1024}")
a(f"s_add_u32 s72, s72, {AF}")
a("s_lshl_b32 s73, s87, 10")
for rt in range(2):
    a(f"s_add_u32 s{76+4*rt}, s34, s72")
    a(f"s_addc_u32 s{77+4*rt}, s35, 0")
    a(f"s_mov_b32 s{78+4*rt}, s73")
    a(f"s_mov_b32 s{79+4*rt}, 0x00020000")
    a(f"s_add_u32 s72, s72, {118*1024}")
a(f"s_mul_i32 s89, s14, 24576")
a("s_cmp_ge_u32 s14, 2")
a(f"s_cselect_b32 s72, {114688 - 49152}, 0")
a("s_add_u32 s89, s89, s72")
a(f"s_lshl_b32 s91, s{S_CT}, 7")
a("s_add_u32 s91, s91, s86")
a("s_lshl_b32 s91, s91, 2")
a(f"s_add_u32 s91, s91, {F_W}")
a("s_mov_b32 s84, 0x3fffff")
a("s_mov_b32 s85, 0")
a("s_mov_b32 exec_hi, 0")
a(f"buffer_load_dword v{T+3}, v{T+2}, {S4(WS_)}, s91 offen{SC}")
a("s_waitcnt vmcnt(1)")
lds_add(3, T+4)
a("s_mov_b32 exec_lo, -1")
stamp(4)
a("s_waitcnt vmcnt(0)")
a(f"v_cmp_ne_u32 vcc, s{S_NONCE}, v{T+3}")
a("s_and_b64 s[72:73], vcc, s[84:85]")
a("s_cbranch_scc0 .Lfw_ok")
poll_flags(91, 84, T+2, "fw")
a("s_mov_b64 exec, -1")
vq.drain()
tick("fwOK")
W2R = 0; DACC = 160; HB = 224; NPRE = 20
def w2load(k):
    f = W2R + (k % NPRE)*8
    a(f"buffer_load_dwordx4 {vr(f,4)}, v{T}, {S4(WS_)}, s92 offen")
    a(f"buffer_load_dwordx4 {vr(f+4,4)}, v{T+1}, {S4(WS_)}, s92 offen")
    a("s_add_u32 s92, s92, 1024")
    a(f"s_cmp_eq_u32 s92, {22*1024}")
    a("s_cselect_b32 s92, 0, s92")
    vq.issue(("w", k), 2)
for k in range(NPRE): w2load(k)
tick("w2iss")
a(f"s_lshl_b32 s91, s{S_RT}, 7")
a(f"s_add_u32 s91, s91, {F_B}")
a("s_mov_b32 s84, -1")
a("s_cmp_lg_u32 s3, 4")
a("s_cbranch_scc1 .Lfb_wait")
a("s_mov_b32 exec_hi, 0")
poll_flags(91, 84, T+2, "fb")
a("s_mov_b64 exec, -1")
lds_wait_cnt(4, 4, T+3, "bd")
lds_release(1, T+3)
a("s_branch .Lfb_go")
a.label(".Lfb_wait")
lds_wait_rel(1, T+3, "fb")
a.label(".Lfb_go")
stamp(7)
a("s_lshl_b32 s72, s86, 10")
a(f"v_add_u32 v{T+4}, s72, v{LN16}")
a(f"v_add_u32 v{T+5}, s89, v{LN16}")
def hdma(k):
    sl = k % NSL
    for rt in range(2):
        a(f"s_add_u32 m0, s89, {sl*2048 + rt*1024}")
        a("s_nop 0")
        a(f"buffer_load_dwordx4 v{T+4}, s[{76+4*rt}:{79+4*rt}], s93 offen lds")
    a("s_add_u32 s93, s93, 1024")
    a(f"s_cmp_eq_u32 s93, {22*1024}")
    a("s_cselect_b32 s93, 0, s93")
    vq.issue(("h", k), 2)
def hreads(k):
    return [f"ds_read_b128 {vr(HB+(k&1)*8+rt*4,4)}, v{T+5} offset:{(k % NSL)*2048 + rt*1024}" for rt in range(2)]
HW1 = int(os.environ.get("HW1", "0"))
for k in range(NSL):
    hdma(k)
    if k == HW1-1: vq.wait(("h", k))
GV = VX
a(f"v_and_b32 v{T+2}, 31, v{L}")
a(f"v_lshlrev_b32 v{T+2}, 2, v{T+2}")
a(f"s_lshl_b32 s72, s{S_RT}, 8")
a(f"s_add_u32 s72, s72, {GOFF}")
a(f"buffer_load_dword v{GV}, v{T+2}, {S4(WS_)}, s72 offen")
a(f"buffer_load_dword v{GV+1}, v{T+2}, {S4(WS_)}, s72 offen offset:128")
vq.issue("g", 2)
vq.wait(("h", 0))
for l in hreads(0): a(l)
PUBC_AT = int(os.environ.get("PUBC_AT", "0"))
for k in range(22):
    if k < 21: vq.wait(("h", k+1), ("w", k))
    else: vq.wait(("w", k))
    a("s_waitcnt lgkmcnt(0)")
    if k in (0, 1, 4, 8, 12, 16, 20): tick(f"D{k}")
    f = W2R + (k % NPRE)*8
    m = []
    for nt in range(2):
        for rt in range(2):
            acc = vr(DACC+(nt*2+rt)*16, 16)
            m.append(f"v_mfma_f32_32x32x16_bf16 {acc}, {vr(f+4*nt,4)}, {vr(HB+(k&1)*8+4*rt,4)}, {'0' if k == 0 else acc}")
    for l in inter(m, hreads(k+1) if k < 21 else []): a(l)
    if k + NSL < 22: hdma(k + NSL)
    if k + NPRE < 22: w2load(k + NPRE)
a("s_waitcnt vmcnt(0)")
for i in range(2):
    a(f"v_sub_f32 v{GV+i}, 1.0, v{GV+i}")
    a(f"v_cvt_pk_bf16_f32 v{GV+i}, v{GV+i}, v{GV+i}")
    a(f"v_lshlrev_b32 v{GV+i}, 16, v{GV+i}")
a("s_mov_b32 s90, s89")
a("s_branch .Lreduce")

a.label(".Lcompute")
XR = 0; ACC = 128; WFR = 176; XA = 212; XA2 = 216; WA = 232; TMP = 224; WFA = 235; WFD = 236
a(f"v_mov_b32 v{L}, v0")
a(f"v_and_b32 v{TMP}, 31, v{L}")
a(f"v_lshrrev_b32 v{TMP+1}, 5, v{L}")
a(f"v_bfe_u32 v{TMP+2}, v{L}, 1, 3")
a("s_lshl_b32 s72, s3, 12")
for sp in range(4):
    a(f"v_add_u32 v{TMP+3}, {2*sp}, v{TMP+1}")
    a(f"v_xor_b32 v{TMP+3}, v{TMP+3}, v{TMP+2}")
    a(f"v_lshlrev_b32 v{TMP+3}, 4, v{TMP+3}")
    a(f"v_lshl_add_u32 v{TMP+3}, v{TMP}, 7, v{TMP+3}")
    a(f"v_add_u32 v{XA+sp}, s72, v{TMP+3}")
    a(f"v_add_u32 v{XA2+sp}, {2*SLOT}, v{XA+sp}")
a(f"v_lshlrev_b32 v{WA}, 9, v{TMP+1}")
a(f"v_bfe_u32 v{TMP+3}, v{L}, 2, 2")
a(f"v_lshl_add_u32 v{WA}, v{TMP+3}, 6, v{WA}")
a(f"v_bfe_u32 v{TMP+3}, v{L}, 4, 1")
a(f"v_lshl_add_u32 v{WA}, v{TMP+3}, 5, v{WA}")
a(f"v_and_b32 v{TMP+3}, 3, v{L}")
a(f"v_lshl_add_u32 v{WA}, v{TMP+3}, 3, v{WA}")
a(f"v_add_u32 v{WA+1}, 0x10000, v{WA}")
a(f"v_add_u32 v{WA+2}, 0x20000, v{WA}")
a(f"v_lshlrev_b32 v{LN16}, 4, v{L}")
a("s_waitcnt lgkmcnt(0)")
srd(a, WS_, 34, WSBYTES)
srd(a, OUT_, 30, 2048*1024)
srd(a, DBG_, 32, 256)
srd(a, GT_, 28, 1024)
a("s_or_b32 s72, s2, s3")
a("s_cmp_lg_u32 s72, 0")
a("s_cbranch_scc1 .Lnononce")
a("s_memrealtime s[72:73]")
a("s_waitcnt lgkmcnt(0)")
a("s_or_b32 s72, s72, 1")
a(f"v_mov_b32 v{TMP}, 0")
a(f"v_mov_b32 v{TMP+1}, s72")
a("s_mov_b64 exec, 1")
a(f"buffer_store_dword v{TMP+1}, v{TMP}, {S4(DBG_)}, 0 offen{SC}")
a("s_mov_b64 exec, -1")
a("s_mov_b32 s72, 0")
a("s_mov_b32 s73, 0")
a.label(".Lnononce")
if DIAG:
    a("s_cmp_lg_u32 s3, 2")
    a("s_cbranch_scc1 .Lnodiag")
    a("s_memrealtime s[72:73]")
    a("s_waitcnt lgkmcnt(0)")
    a("s_not_b32 s72, s72")
    a(f"v_mov_b32 v{TMP}, 8")
    a(f"v_mov_b32 v{TMP+1}, s72")
    a("s_mov_b64 exec, 1")
    a(f"buffer_atomic_umax v{TMP+1}, v{TMP}, {S4(DBG_)}, 0 offen{SC}")
    a("s_mov_b64 exec, -1")
    a("s_mov_b32 s72, 0")
    a("s_mov_b32 s73, 0")
    a.label(".Lnodiag")
if CPF:
    a("s_cmp_lg_u32 s3, 1")
    a("s_cbranch_scc1 .Lnocpf")
    a(f"s_cmp_ge_u32 s{S_IDX}, CODE_KB")
    a("s_cbranch_scc1 .Lnocpf")
    a("s_getpc_b64 s[72:73]")
    a.label(".Lpcref")
    a(f"s_sub_u32 s72, s72, .Lpcref-{KNAME}")
    a("s_subb_u32 s73, s73, 0")
    a(f"s_lshl_b32 s74, s{S_IDX}, 10")
    a(f"v_add_u32 v{TMP}, s74, v{LN16}")
    a(f"global_load_dwordx4 v[236:239], v{TMP}, s[72:73]")
    a.label(".Lnocpf")

if PFW1:
    srd(a, W1_, 24, 512*2752)
    a(f"s_lshl_b32 s72, s{S_ROT}, 6")
    a(f"v_add_u32 v3, s72, v{L}")
    a("v_mul_u32_u24 v3, 2752, v3")
    a(f"s_mul_i32 s72, s{S_J}, 192")
    a("s_lshl_b32 s73, s14, 6")
    a("s_add_u32 s72, s72, s73")
    a(f"s_cmp_lt_u32 s{S_J}, 15")
    a("s_cselect_b32 s72, s72, 0x40000000")
    a(f"buffer_load_dword v{WFD+2}, v3, {S4(W1_)}, s72 offen")

def wread(dst, addr):
    return f"ds_read_b64_tr_b16 {vr(dst,2)}, v{WA + (addr >> 16)} offset:{addr & 0xffff}"
def reads_A(t):
    p, sp = t >> 2, t & 3
    slot = p % 4
    r = [f"ds_read_b128 {vr(XR+4*t,4)}, v{(XA if slot < 2 else XA2)+sp} offset:{(slot & 1)*SLOT}"]
    for b in range(3):
        for rd in range(2):
            r.append(wread(WFR + (t % 3)*12 + b*4 + rd*2, slot*SLOT + 16384 + b*4096 + (4*sp+rd)*256))
    return r
def reads_B(t):
    p, sp = t >> 2, t & 3
    return [wread(WFR + (t % 3)*12 + b*4 + rd*2, BH[p] + b*4096 + (4*sp+rd)*256) for b in range(3) for rd in range(2)]
def mf(t, kinds, first):
    m = []
    for b, kd in enumerate(kinds):
        acc = vr(ACC+16*b, 16); x = vr(XR+4*t, 4); w = vr(WFR+(t % 3)*12+b*4, 4)
        c = "0" if first else acc
        if kd == 'T': m.append(f"v_mfma_f32_32x32x16_bf16 {acc}, {w}, {x}, {c}")
        else:         m.append(f"v_mfma_f32_32x32x16_bf16 {acc}, {x}, {w}, {c}")
    return m
lq = Q("lgkmcnt", 15)
a(f"s_lshl_b32 s76, s{S_J}, 4")
a(f"s_add_u32 s76, s76, s{S_RB}")
a("s_lshl_b32 s76, s76, 2")
a("s_add_u32 s76, s76, s3")
a("s_lshl_b32 s76, s76, 2")
a(f"s_add_u32 s76, s76, {FLG}")
a("s_barrier")
stamp(1)
for tt in (0, 1):
    for l in reads_A(tt): a(l)
    lq.issue(tt, 7)
for t in range(32):
    lq.wait(t)
    sp = t & 3
    nxt = []; tags = []
    if sp < 2:
        nxt = reads_A(t+2); tags = [(t+2, 7)]
    elif sp == 3 and t < 31:
        tick(f"A{t>>2}pre")
        a("s_barrier")
        tick(f"A{t>>2}post")
        nxt = reads_A(t+1) + reads_A(t+2); tags = [(t+1, 7), (t+2, 7)]
    for l in inter(mf(t, "TTN", t == 0), nxt): a(l)
    for tg, n in tags: lq.issue(tg, n)
assert not lq.q, lq.q
stamp(2)
a(f"s_lshl_b32 s72, s{S_RB}, 2")
a("s_add_u32 s72, s72, s3")
a(f"s_lshl_b32 s73, s{S_J}, 7")
a("s_add_u32 s72, s72, s73")
a("s_lshl_b32 s72, s72, 10")
a(f"v_add_u32 v{TMP}, s72, v{LN16}")
a(f"v_add_u32 v{TMP+1}, 0x10000, v{TMP}")
a(f"v_and_b32 v{TMP+2}, 15, v{L}")
a(f"v_lshrrev_b32 v{TMP+3}, 5, v{L}")
a(f"v_lshl_add_u32 v{TMP+2}, v{TMP+3}, 4, v{TMP+2}")
a(f"v_lshlrev_b32 v{TMP+2}, 4, v{TMP+2}")
a(f"v_bfe_u32 v{TMP+3}, v{L}, 4, 1")
a(f"v_lshl_add_u32 v{TMP+2}, v{TMP+3}, 16, v{TMP+2}")
a(f"v_add_u32 v{TMP+2}, s72, v{TMP+2}")
a(f"s_mov_b32 s73, {CSCALE}")
a(f"s_mov_b32 s74, {KF}")
a(f"s_mov_b32 s75, {VF}")
a("s_nop 3")
for b in (1, 2, 0):
    r = ACC + 16*b
    if b == 0:
        for i in range(16): a(f"v_mul_f32 v{r+i}, s73, v{r+i}")
    for i in range(8): a(f"v_cvt_pk_bf16_f32 v{r+i}, v{r+2*i}, v{r+2*i+1}")
def qkv_stores(fl, so_k, so_v, with_q):
    for b in (1, 2, 0):
        r = ACC + 16*b
        if b == 0 and not with_q: continue
        if b < 2:
            so = "0" if b == 0 else so_k
            a(f"buffer_store_dwordx4 {vr(r,4)}, v{TMP}, {S4(WS_)}, {so} offen{fl}")
            a(f"buffer_store_dwordx4 {vr(r+4,4)}, v{TMP+1}, {S4(WS_)}, {so} offen{fl}")
        else:
            a(f"buffer_store_dwordx4 {vr(r,4)}, v{TMP+2}, {S4(WS_)}, {so_v} offen{fl}")
            a(f"buffer_store_dwordx4 {vr(r+4,4)}, v{TMP+2}, {S4(WS_)}, {so_v} offen offset:512{fl}")
if LOCAL:
    a(f"s_lshr_b32 s72, s{S_RB}, 1")
    a("s_cmp_lg_u32 s72, 3")
    a("s_cbranch_scc1 .Lnohalo")
    a(f"s_mov_b32 s72, {K2F}")
    a(f"s_mov_b32 s73, {V2F}")
    qkv_stores(SC, "s72", "s73", False)
    a.label(".Lnohalo")
    a("s_cmp_eq_u32 s88, 1")
    a("s_cbranch_scc0 .Lqkv_safe")
    qkv_stores("", "s74", "s75", True)
    a("s_branch .Lqkv_done")
    a.label(".Lqkv_safe")
qkv_stores(SC, "s74", "s75", True)
a.label(".Lqkv_done")
a(f"s_cmp_eq_u32 s{S_J}, 15")
a("s_cbranch_scc1 .Lgate")
tick("epiA")
a("s_barrier")
tick("B01")
a(f"v_mov_b32 v{TMP+2}, {NONCE_LDS}")
a(f"ds_read_b32 v{TMP+3}, v{TMP+2}")
lq.issue("n", 1)
for tt in (0, 1):
    for l in reads_B(tt): a(l)
    lq.issue(tt, 6)
for t in range(32):
    lq.wait(t)
    if t == 2: a(f"v_readfirstlane_b32 s{S_NONCE}, v{TMP+3}")
    if t == PUBA_T:
        a("s_waitcnt vmcnt(0)")
        tick("pubA")
        wpublish(76, TMP, dual=True)
    if t == 14:
        tick("B23pre")
        a("s_barrier")
        tick("B23post")
    nxt = reads_B(t+2) if t < 30 else []
    for l in inter(mf(t, "TTT", t == 0), nxt): a(l)
    if t < 30: lq.issue(t+2, 6)
stamp(3)
a(f"s_lshl_b32 s72, s{S_RB}, 2")
a("s_add_u32 s72, s72, s3")
a("s_mul_i32 s72, s72, 118")
a(f"s_mul_i32 s73, s{S_J}, 6")
a("s_add_u32 s72, s72, s73")
a("s_lshl_b32 s72, s72, 10")
a(f"s_add_u32 s72, s72, {AF}")
a("s_add_u32 s73, s72, 4096")
a("s_nop 5")
for b in range(3):
    r = ACC + 16*b
    for i in range(8): a(f"v_cvt_pk_bf16_f32 v{r+i}, v{r+2*i}, v{r+2*i+1}")
    for i in range(8): a(f"v_pk_max_i16 v{r+i}, v{r+i}, 0")
    so = "s72" if b < 2 else "s73"
    o = (b & 1)*2048
    a(f"buffer_store_dwordx4 {vr(r,4)}, v{LN16}, {S4(WS_)}, {so} offen offset:{o}{SC}")
    a(f"buffer_store_dwordx4 {vr(r+4,4)}, v{LN16}, {S4(WS_)}, {so} offen offset:{o+1024}{SC}")
    if b == 0:
        a(f"s_cmp_eq_u32 s{S_J}, 14")
        a("s_cbranch_scc1 .Lattn")
a("s_branch .Lattn")
a.label(".Lgate")
a(f"s_lshl_b32 s72, s3, 10")
a(f"s_add_u32 s72, s72, 110592")
a("s_barrier")
a("s_mov_b32 m0, s72")
a("s_nop 0")
a(f"buffer_load_dwordx4 v{LN16}, {S4(GT_)}, 0 offen lds")
a(f"v_mov_b32 v{TMP+2}, {NONCE_LDS}")
a(f"ds_read_b32 v{TMP+3}, v{TMP+2}")
a("s_waitcnt vmcnt(0) lgkmcnt(0)")
a(f"v_readfirstlane_b32 s{S_NONCE}, v{TMP+3}")
a("s_mov_b32 s75, s72")
wpublish(76, TMP, dual=True)
a("s_mov_b32 s72, s75")
a("s_barrier")
a(f"v_lshrrev_b32 v{TMP}, 5, v{L}")
a(f"v_lshlrev_b32 v{TMP}, 4, v{TMP}")
a(f"v_add_u32 v{TMP}, s72, v{TMP}")
a(f"s_mov_b32 s73, s{S_ROT}")
for p in range(8):
    a("s_lshl_b32 s74, s73, 7")
    a(f"v_add_u32 v{TMP+1}, s74, v{TMP}")
    gb = ACC + 16 + (p & 1)*16
    for sp in range(4):
        a(f"ds_read_b128 {vr(gb+4*sp,4)}, v{TMP+1} offset:{sp*32}")
    a("s_add_u32 s73, s73, 1")
    a("s_and_b32 s73, s73, 7")
    a("s_waitcnt lgkmcnt(0)")
    for sp in range(4):
        t = 4*p+sp
        a(f"v_mfma_f32_32x32x16_bf16 {vr(ACC,16)}, {vr(gb+4*sp,4)}, {vr(XR+4*t,4)}, {'0' if t == 0 else vr(ACC,16)}")
a("s_nop 15")
z = ACC
a(f"v_cvt_pk_bf16_f32 v{z}, v{z}, v{z}")
a(f"v_lshlrev_b32 v{z}, 16, v{z}")
a(f"v_mul_f32 v{z}, 0xbfb8aa3b, v{z}")
a(f"v_exp_f32 v{z}, v{z}")
a("s_nop 0")
a(f"v_add_f32 v{z}, 1.0, v{z}")
a(f"v_rcp_f32 v{z}, v{z}")
a("s_nop 0")
a(f"v_cvt_pk_bf16_f32 v{z}, v{z}, v{z}")
a(f"v_lshlrev_b32 v{z}, 16, v{z}")
a(f"s_lshl_b32 s72, s{S_RB}, 7")
a("s_lshl_b32 s73, s3, 5")
a("s_add_u32 s72, s72, s73")
a("s_lshl_b32 s72, s72, 2")
a(f"s_add_u32 s72, s72, {GOFF}")
a(f"v_lshlrev_b32 v{TMP}, 2, v{L}")
a("s_mov_b32 exec_hi, 0")
a(f"buffer_store_dword v{z}, v{TMP}, {S4(WS_)}, s72 offen{SC}")
a("s_mov_b64 exec, -1")

a.label(".Lattn")
KK = 0; QQ = 40; VV = 48; SS = 64; CD = 96; CF = 112; NM = 176; PP = 208; OO = 128; MM = 160
VAD = 240; KAD = 241; T0 = 242
a("s_lshl_b32 s72, s3, 11")
a(f"s_add_u32 s72, s72, {STG}")
a(f"v_add_u32 v{KAD}, s72, v{LN16}")
a(f"v_and_b32 v2, 15, v{L}")
a(f"v_lshrrev_b32 v3, 5, v{L}")
a("v_lshl_add_u32 v2, v3, 4, v2")
a("v_lshlrev_b32 v2, 4, v2")
a(f"v_add_u32 v{VAD}, s72, v2")
for i in range(16): a(f"v_mov_b32 v{VV+i}, 0x3f803f80")
a(f"v_and_b32 v2, 31, v{L}")
a("v_lshlrev_b32 v3, 2, v3")
a(f"v_sub_u32 v{T0}, v2, v3")
a(f"v_mov_b32 v{T0+1}, {NINF}")
for r in range(16):
    br = (r & 3) + 8*(r >> 2)
    a(f"v_cmp_le_i32 vcc, {br}, v{T0}")
    a("s_nop 1")
    a(f"v_cndmask_b32 v{CD+r}, v{T0+1}, 0, vcc")
    a(f"v_cndmask_b32 v{CF+r}, 0, v{T0+1}, vcc")
for i in range(4): a(f"v_mov_b32 v{MM+i}, {NINF}")
a("s_lshl_b32 s15, s3, 1")
a("s_sub_u32 s15, 8, s15")
a(f"s_cmp_eq_u32 s{S_QB}, 0")
a("s_cselect_b32 s15, s15, 0")
a(f"s_lshl_b32 s76, s{S_RB}, 2")
a("s_add_u32 s76, s76, s3")
a("s_lshl_b32 s76, s76, 4")
a(f"s_add_u32 s76, s76, s{S_J}")
a("s_lshl_b32 s76, s76, 2")
a(f"s_add_u32 s76, s76, {F_B}")
lds_add(4, T0)
a("s_mov_b64 exec, -1")
lds_wait_cnt(3, 4, T0, "stg")
stamp(4)
a(f"ds_read_b128 {vr(QQ+4,4)}, v{KAD} offset:{32768+1024}")
a(f"ds_read_b128 {vr(KK+36,4)}, v{KAD} offset:{9*1024}")
a(f"ds_read_b128 {vr(QQ,4)}, v{KAD} offset:32768")
for v in range(8, -1, -1):
    a(f"ds_read_b128 {vr(KK+4*v,4)}, v{KAD} offset:{v*1024}")
units = [(1, 9)]
for v in range(8, 0, -1): units += [(0, v), (1, v)]
units += [(0, 0)]
def edge(task, v):
    if (task, v) in ((1, 9), (0, 8)): return CD
    if (task, v) in ((1, 1), (0, 0)): return CF
    return None
def smf(task, v, c):
    return f"v_mfma_f32_32x32x16_bf16 {vr(SS+16*task,16)}, {vr(KK+4*v,4)}, {vr(QQ+4*task,4)}, {c}"
def vread(v):
    b = VV + 8*(v & 1)
    a("s_mov_b32 exec_lo, 0xffff")
    a("s_mov_b32 exec_hi, 0xffff")
    a(f"ds_read_b128 {vr(b,4)}, v{VAD} offset:{16384+v*1024}")
    a(f"ds_read_b128 {vr(b+4,4)}, v{VAD} offset:{16384+v*1024+512}")
    a("s_mov_b64 exec, -1")
a("s_waitcnt lgkmcnt(8)")
def c1(u):
    e = edge(*u); return vr(e, 16) if e is not None else "0"
a(smf(*units[0], c1(units[0])))
a("s_waitcnt lgkmcnt(0)")
a("s_nop 7")
for i, (task, v) in enumerate(units):
    if i + 1 < len(units): a(smf(*units[i+1], c1(units[i+1])))
    a("s_nop 2")
    b = SS + 16*task
    for k in range(8):
        a(f"v_max3_f32 v{MM+2*task+(k&1)}, v{b+2*k}, v{b+2*k+1}, v{MM+2*task+(k&1)}")
    if task == 1 and v in (8, 6, 4, 2):
        a(f"s_cmp_eq_u32 s15, {v}")
        a("s_cbranch_scc1 .Lp1done")
a.label(".Lp1done")
vread(9)
vread(8)
for task in range(2):
    m = MM + 2*task
    a(f"v_max_f32 v{m}, v{m}, v{m+1}")
    a(f"v_mov_b32 v{m+1}, v{m}")
a("s_nop 1")
for task in range(2):
    m = MM + 2*task
    a(f"v_permlane32_swap_b32 v{m}, v{m+1}")
a("s_nop 1")
for task in range(2):
    m = MM + 2*task
    a(f"v_max_f32 v{m}, v{m}, v{m+1}")
for task in (1, 0):
    for i in range(16): a(f"v_sub_f32 v{NM+16*task+i}, 0, v{MM+2*task}")
tick("p1end")
a("s_waitcnt vmcnt(0)")
wpublish(76, T0)
stamp(5)
a("s_nop 1")
a(smf(*units[0], vr(NM+16, 16)))
a("s_nop 11")
first = {0: True, 1: True}
def pv(task, v):
    vb = VV + 8*(v & 1); p = PP + 8*task; o = vr(OO+16*task, 16)
    r = [f"v_mfma_f32_32x32x16_bf16 {o}, {vr(vb,4)}, {vr(p,4)}, {'0' if first[task] else o}",
         f"v_mfma_f32_32x32x16_bf16 {o}, {vr(vb+4,4)}, {vr(p+4,4)}, {o}"]
    return r
exits = []
pend = None
for i, (task, v) in enumerate(units):
    if i + 1 < len(units):
        nt_, nv = units[i+1]
        a(smf(nt_, nv, vr(NM+16*nt_, 16)))
    b = SS + 16*task; p = PP + 8*task
    e = edge(task, v)
    if e is not None:
        for k in range(16): a(f"v_add_f32 v{b+k}, v{b+k}, v{e+k}")
    for k in range(16):
        a(f"v_exp_f32 v{b+k}, v{b+k}")
        if pend is not None and k == 3:
            pt, pvv = pend
            if (pt, pvv) == (1, 9) or pt == 0: a("s_waitcnt lgkmcnt(0)")
            m = pv(pt, pvv); a(m[0])
        if pend is not None and k == 8:
            a(m[1]); first[pend[0]] = False
            pt, pvv = pend
            if pt == 1 and pvv >= 2: vread(pvv-2)
    a("s_nop 0")
    for k in range(8): a(f"v_cvt_pk_bf16_f32 v{p+k}, v{b+2*k}, v{b+2*k+1}")
    pend = (task, v)
    if task == 1 and v in (8, 6, 4, 2):
        a(f"s_cmp_eq_u32 s15, {v}")
        a(f"s_cbranch_scc1 .Lp2x{v}")
        exits.append((v, pv(task, v)))
a("s_waitcnt lgkmcnt(0)")
for l in pv(*pend): a(l)
a("s_branch .Lp2done")
for v, m in exits:
    a.label(f".Lp2x{v}")
    a("s_nop 0")
    for l in m: a(l)
    a("s_branch .Lp2done")
a.label(".Lp2done")
a(f"s_lshl_b32 s72, s{S_QB}, 3")
a("s_lshl_b32 s73, s3, 1")
a("s_add_u32 s72, s72, s73")
a("s_mul_i32 s72, s72, 118")
a(f"s_add_u32 s72, s72, s{S_HEAD}")
a("s_lshl_b32 s72, s72, 10")
a(f"s_add_u32 s72, s72, {AF + 86*1024}")
a(f"s_add_u32 s73, s72, {118*1024}")
a("s_waitcnt lgkmcnt(0)")
a(f"v_mov_b32 v{T0}, {CNT_LDS}")
a(f"v_mov_b32 v{T0+1}, 1")
a("s_mov_b64 exec, 1")
a(f"ds_add_u32 v{T0}, v{T0+1}")
a("s_mov_b64 exec, -1")
a("s_nop 7")
for task in (1, 0):
    o = OO + 16*task
    a(f"v_rcp_f32 v{MM}, v{o+8}")
    a("s_nop 0")
    for i in range(8): a(f"v_mul_f32 v{o+i}, v{o+i}, v{MM}")
    for i in range(4): a(f"v_cvt_pk_bf16_f32 v{o+i}, v{o+2*i}, v{o+2*i+1}")
    a(f"buffer_store_dwordx4 {vr(o,4)}, v{LN16}, {S4(WS_)}, s{72+task} offen{SC}")
stamp(6)
EW = 0; EH = 64
a(f"s_mul_i32 s72, s{S_CT}, {2*118}")
a("s_lshl_b32 s73, s3, 3")
a("s_add_u32 s72, s72, s73")
a("s_lshl_b32 s72, s72, 10")
a(f"s_add_u32 s72, s72, {WF + 86*1024}")
a(f"v_add_u32 v{T}, s72, v{LN16}")
a(f"v_add_u32 v{T+1}, {118*1024}, v{T}")
a(f"s_mul_i32 s72, s{S_RT}, {2*118*1024}")
a(f"s_add_u32 s72, s72, {AF}")
for rt in range(2):
    a(f"s_add_u32 s{76+4*rt}, s34, s72")
    a(f"s_addc_u32 s{77+4*rt}, s35, 0")
    a(f"s_mov_b32 s{78+4*rt}, {118*1024}")
    a(f"s_mov_b32 s{79+4*rt}, 0x00020000")
    a(f"s_add_u32 s72, s72, {118*1024}")
a(f"s_lshl_b32 s91, s{S_QB}, 2")
a("s_add_u32 s91, s91, s3")
a("s_lshl_b32 s91, s91, 5")
a(f"s_add_u32 s91, s91, s{S_HEAD}")
a("s_lshl_b32 s91, s91, 2")
a(f"s_add_u32 s91, s91, {F_C}")
a(f"v_mov_b32 v{T+2}, 0")
a(f"v_mov_b32 v{T+3}, s{S_NONCE}")
a("s_waitcnt vmcnt(0)")
a("s_mov_b64 exec, 1")
a(f"buffer_store_dword v{T+3}, v{T+2}, {S4(WS_)}, s91 offen{SC}")
a("s_mov_b64 exec, -1")
tick("pubC")
a(f"s_lshl_b32 s91, s{S_CT}, 7")
a("s_lshl_b32 s72, s3, 3")
a("s_add_u32 s91, s91, s72")
a("s_lshl_b32 s91, s91, 2")
a(f"s_add_u32 s91, s91, {F_W + 86*4}")
a("s_mov_b32 s84, 0xff")
a("s_mov_b32 s85, 0")
a(f"v_lshlrev_b32 v{T+2}, 2, v{L}")
poll_flags(91, 84, T+2, "fwe")
for k in range(8):
    if k == 4:
        a(f"v_add_u32 v{T}, 4096, v{T}")
        a(f"v_add_u32 v{T+1}, 4096, v{T+1}")
    a(f"buffer_load_dwordx4 {vr(EW+8*k,4)}, v{T}, {S4(WS_)}, 0 offen offset:{(k%4)*1024}")
    a(f"buffer_load_dwordx4 {vr(EW+8*k+4,4)}, v{T+1}, {S4(WS_)}, 0 offen offset:{(k%4)*1024}")
a(f"s_lshl_b32 s91, s{S_RT}, 7")
a(f"s_add_u32 s91, s91, {F_B}")
a(f"s_lshl_b32 s92, s{S_RT}, 7")
a(f"s_add_u32 s92, s92, {F_C}")
a("s_mov_b32 s84, -1")
a("s_mov_b32 s85, 0")
a(f"v_lshlrev_b32 v{T+2}, 2, v{L}")
a("s_cmp_lg_u32 s3, 0")
a("s_cbranch_scc1 .Lfc_wait")
a("s_mov_b32 exec_hi, 0")
a(f"s_mov_b32 s74, {SPIN}")
a.label(".Lfc_poll")
a(f"buffer_load_dword v{T+3}, v{T+2}, {S4(WS_)}, s92 offen{SC}")
a(f"buffer_load_dword v{T+4}, v{T+2}, {S4(WS_)}, s91 offen{SC}")
a("s_waitcnt vmcnt(0)")
a(f"v_cmp_ne_u32 vcc, s{S_NONCE}, v{T+3}")
a("s_and_b64 s[72:73], vcc, s[84:85]")
a(f"v_cmp_ne_u32 vcc, s{S_NONCE}, v{T+4}")
a("s_and_b32 s73, vcc_lo, 0x80008000")
a("s_or_b32 s72, s72, s73")
a("s_cbranch_scc0 .Lfc_ok")
a(f"s_sleep {PSLEEP}")
a("s_sub_u32 s74, s74, 1")
a("s_cmp_lg_u32 s74, 0")
a("s_cbranch_scc1 .Lfc_poll")
a.label(".Lfc_ok")
a("s_mov_b64 exec, -1")
lds_release(2, T+3)
a("s_branch .Lfc_go")
a.label(".Lfc_wait")
lds_wait_rel(2, T+3, "fc")
a.label(".Lfc_go")
stamp(7)
a("s_lshl_b32 s72, s3, 13")
a(f"s_add_u32 s72, s72, {86*1024}")
a(f"v_add_u32 v{T}, s72, v{LN16}")
for k in range(8):
    if k == 4: a(f"v_add_u32 v{T}, 4096, v{T}")
    a(f"buffer_load_dwordx4 {vr(EH+8*k,4)}, v{T}, s[76:79], 0 offen offset:{(k%4)*1024}")
    a(f"buffer_load_dwordx4 {vr(EH+8*k+4,4)}, v{T}, s[80:83], 0 offen offset:{(k%4)*1024}")
a(f"v_and_b32 v{T+2}, 31, v{L}")
a(f"v_lshlrev_b32 v{T+2}, 2, v{T+2}")
a(f"s_lshl_b32 s72, s{S_RT}, 8")
a(f"s_add_u32 s72, s72, {GOFF}")
a(f"buffer_load_dword v{GV}, v{T+2}, {S4(WS_)}, s72 offen")
a(f"buffer_load_dword v{GV+1}, v{T+2}, {S4(WS_)}, s72 offen offset:128")
for k in range(8):
    a(f"s_waitcnt vmcnt({2*(7-k)+2})")
    for nt in range(2):
        for rt in range(2):
            acc = vr(DACC+(nt*2+rt)*16, 16)
            a(f"v_mfma_f32_32x32x16_bf16 {acc}, {vr(EW+8*k+4*nt,4)}, {vr(EH+8*k+4*rt,4)}, {'0' if k == 0 else acc}")
a("s_waitcnt vmcnt(0)")
a(f"s_lshl_b32 s90, s3, 14")
a(f"s_add_u32 s90, s90, {EAREA}")
a(f"v_mov_b32 v{T}, {CNT_LDS}")
a(f"s_mov_b32 s74, {SPIN}")
a.label(".Lcnt_poll")
a(f"ds_read_b32 v{T+1}, v{T}")
a("s_waitcnt lgkmcnt(0)")
a(f"v_readfirstlane_b32 s72, v{T+1}")
a("s_cmp_eq_u32 s72, 4")
a("s_cbranch_scc1 .Lreduce")
a("s_sub_u32 s74, s74, 1")
a("s_cmp_lg_u32 s74, 0")
a("s_cbranch_scc1 .Lcnt_poll")

a.label(".Lreduce")
stamp(8)
a(f"v_and_b32 v1, 31, v{L}")
a(f"v_lshrrev_b32 v3, 5, v{L}")
a(f"v_and_b32 v6, 15, v{L}")
a("v_lshlrev_b32 v1, 8, v1")
a("v_add_u32 v1, s90, v1")
a("v_xor_b32 v3, v3, v6")
a("s_nop 4")
for nt in range(2):
    for rt in range(2):
        r = DACC + (nt*2+rt)*16
        for i in range(16): a(f"v_mul_f32 v{r+i}, v{r+i}, v{GV+rt}")
for s in range(8):
    a(f"v_xor_b32 v7, {2*s}, v3")
    a(f"v_lshl_add_u32 v{8+s}, v7, 4, v1")
for nt in range(2):
    for rt in range(2):
        for qq in range(4):
            a(f"ds_write_b128 v{8+nt*4+qq}, {vr(DACC+(nt*2+rt)*16+4*qq,4)} offset:{rt*8192}")
a("s_waitcnt lgkmcnt(0)")
a("s_barrier")
stamp(9)
a(f"v_lshrrev_b32 v1, 3, v{L}")
a("s_lshl_b32 s72, s3, 3")
a("v_add_u32 v1, s72, v1")
a(f"v_and_b32 v3, 7, v{L}")
a("v_and_b32 v6, 15, v1")
a("v_lshlrev_b32 v7, 1, v3")
a("v_xor_b32 v7, v7, v6")
a("v_xor_b32 v6, 1, v7")
a("v_lshlrev_b32 v4, 8, v1")
a("v_lshl_add_u32 v7, v7, 4, v4")
a("v_lshl_add_u32 v6, v6, 4, v4")
a(f"v_add_u32 v4, {EAREA}, v7")
a(f"v_add_u32 v5, {EAREA}, v6")
a(f"v_add_u32 v2, {DAREA[2]}, v7")
a(f"v_add_u32 v0, {DAREA[2]}, v6")
for w in range(4):
    a(f"ds_read_b128 {vr(8+w*8,4)}, v4 offset:{w*ESZ}")
    a(f"ds_read_b128 {vr(12+w*8,4)}, v5 offset:{w*ESZ}")
for w in range(4):
    a(f"ds_read_b128 {vr(40+w*8,4)}, v{7 if w < 2 else 2} offset:{(w&1)*24576}")
    a(f"ds_read_b128 {vr(44+w*8,4)}, v{6 if w < 2 else 0} offset:{(w&1)*24576}")
a("s_waitcnt lgkmcnt(0)")
for step in (32, 16, 8):
    for i in range(step):
        a(f"v_add_f32 v{8+i}, v{8+i}, v{8+step+i}")
for i in range(4): a(f"v_cvt_pk_bf16_f32 v{8+i}, v{8+2*i}, v{8+2*i+1}")
a(f"s_lshl_b32 s72, s{S_RT}, 16")
a(f"s_lshl_b32 s73, s{S_CT}, 7")
a("s_add_u32 s72, s72, s73")
a("v_lshlrev_b32 v1, 10, v1")
a("v_lshl_add_u32 v1, v3, 4, v1")
a(f"buffer_store_dwordx4 v[8:11], v1, {S4(OUT_)}, s72 offen")
if DIAG:
    a("s_cmp_lg_u32 s3, 2")
    a("s_cbranch_scc1 .Lend")
    a("s_waitcnt vmcnt(0)")
    a("s_memrealtime s[72:73]")
    a("s_waitcnt lgkmcnt(0)")
    a("v_mov_b32 v1, 12")
    a("v_mov_b32 v2, s72")
    a("s_mov_b64 exec, 1")
    a(f"buffer_atomic_umax v2, v1, {S4(DBG_)}, 0 offen{SC}")
if PROF:
    a("s_waitcnt vmcnt(0)")
    stamp(10)
    a("s_memtime s[98:99]")
    a("s_waitcnt lgkmcnt(0)")
    a("v_writelane_b32 v255, s98, 13")
    a("s_lshl_b32 s72, s2, 3")
    a("s_add_u32 s72, s72, s3")
    a("s_lshl_b32 s72, s72, 8")
    a(f"s_add_u32 s72, s72, {PROFOFF}")
    a(f"v_lshlrev_b32 v1, 2, v{L}")
    a(f"buffer_store_dword v255, v1, {S4(WS_)}, s72 offen")
    json.dump(ticks, open("ticks.json", "w"))
a.label(".Lend")

KN = "gated_mix__sliding_block__dense_activation_relu__prompt_kernel"
hdr = open("gated_mix__sliding_block__dense_activation_relu__prompt.s.ref").read().split("; Override launch")[0]
out = hdr + "; @launch grid=(256,1,1) block=(512,1,1) lds=163840\n"
out += '.amdgcn_target "amdgcn-amd-amdhsa--gfx950"\n'
body = a.text()
import subprocess, re
tmp = out + kernel_wrap(KN, body.replace("CODE_KB", "20"), 256, 100)
open("_t.s", "w").write(tmp)
subprocess.run(["clang", "-x", "assembler", "-target", "amdgcn-amd-amdhsa", "-mcpu=gfx950", "-c", "_t.s", "-o", "_t.o"], check=True)
h = subprocess.run(["llvm-objdump", "-h", "_t.o"], capture_output=True, text=True).stdout
sz = int(re.search(r"\.text\s+([0-9a-f]+)", h).group(1), 16)
print("code bytes", sz)
out += kernel_wrap(KN, body.replace("CODE_KB", str(min(32, sz // 1024))), 256, 100)
open(sys.argv[1], "w").write(out)
```

```python
import sys, os, json
from asmlib import *

QF, KF, VF = 0x000000, 0x200000, 0x400000
AF = 0x600000
WF = 0xE00000
GOFF = 0x1000000
FLG = 0x1010000
F_A, F_AL, F_B, F_C, F_W = FLG, FLG+0x1000, FLG+0x2000, FLG+0x3000, FLG+0x5000
WSBYTES = 0x1600000
CSCALE = 0x3EB8AA3B
NINF = 0xFF800000
PROF = len(sys.argv) > 2 and sys.argv[2] == "prof"
PROFOFF = 0x1080000
SC = " sc1"
SPIN = 1 << 14
PSLEEP = int(os.environ.get("PSLEEP", "2"))
WFP = int(os.environ.get("WFP", "3"))
CPF = int(os.environ.get("CPF", "1"))
DIAG = int(os.environ.get("DIAG", "0"))
GMASK = int(os.environ.get("GMASK", "3"))
FSLEEP = int(os.environ.get("FSLEEP", "1"))
KNAME = "gated_mix__sliding_block__dense_activation_relu__prompt_kernel"
NP1 = int(os.environ.get("NP1", "3"))
NP2 = int(os.environ.get("NP2", "1"))
PFW1 = int(os.environ.get("PFW1", "0"))
LOCAL = 0
PUBA_T = int(os.environ.get("PUBA_T", "8"))
K2F, V2F = 0x1200000, 0x1400000

a = Asm()
def stamp(i):
    if PROF:
        a("s_memrealtime s[98:99]")
        a("s_waitcnt lgkmcnt(0)")
        a(f"v_writelane_b32 v255, s98, {i}")
ticks = {}
def tick(name):
    if PROF:
        if name not in ticks: ticks[name] = 16 + len(ticks)
        assert ticks[name] < 64
        stamp(ticks[name])

SLOT = 28672
R1 = 114688
BH = [R1, R1+12288, R1+24576, 0, 12288, SLOT, SLOT+12288, 2*SLOT]
BOUNCE = R1 + 36864
NONCE_LDS = BOUNCE + 8192
STG = 69632
EAREA = 49152; ESZ = 16384
DAREA = [0, 24576, 114688, 139264]
NSL = 10
CNT_LDS = NONCE_LDS + 4; REL_LDS = NONCE_LDS + 8

S_XCD, S_IDX, S_RB, S_J, S_HEAD, S_QB, S_RT, S_CT, S_ROT, S_NONCE = 4, 5, 6, 7, 8, 9, 10, 11, 12, 13
X_, WQ_, WS_, W1_, WT_, OUT_, DBG_, GT_ = 36, 40, 44, 48, 52, 60, 64, 68
def S4(b): return f"s[{b}:{b+3}]"

class Q:
    def __init__(self, kind, cap): self.q = []; self.kind = kind; self.cap = cap
    def issue(self, tag, n=1): self.q.extend([tag]*n)
    def wait(self, *tags):
        idx = [i for i, t in enumerate(self.q) if t in tags]
        if not idx: return
        n = len(self.q) - 1 - max(idx)
        a(f"s_waitcnt {self.kind}({min(n, self.cap)})")
        self.q = self.q[max(idx)+1:]
    def drain(self): self.q = []

def poll_flags(off_sreg, mask, vtmp, name, pre=False):
    a(f"s_mov_b32 s74, {SPIN}")
    a.label(f".L{name}_poll")
    a(f"buffer_load_dword v{vtmp+1}, v{vtmp}, {S4(WS_)}, s{off_sreg} offen{SC}")
    a("s_waitcnt vmcnt(0)")
    a(f"v_cmp_ne_u32 vcc, s{S_NONCE}, v{vtmp+1}")
    a(f"s_and_b64 s[72:73], vcc, s[{mask}:{mask+1}]")
    a(f"s_cbranch_scc0 .L{name}_ok")
    a(f"s_sleep {PSLEEP}")
    a("s_sub_u32 s74, s74, 1")
    a("s_cmp_lg_u32 s74, 0")
    a(f"s_cbranch_scc1 .L{name}_poll")
    a.label(f".L{name}_ok")

def publish(off_sreg, vtmp, dual=False):
    l = a.newlabel("pub")
    a("s_cmp_lg_u32 s3, 0")
    a(f"s_cbranch_scc1 {l}")
    a("s_mov_b64 exec, 1")
    a(f"v_mov_b32 v{vtmp}, 0")
    a(f"v_mov_b32 v{vtmp+1}, s{S_NONCE}")
    if dual: a(f"buffer_store_dword v{vtmp+1}, v{vtmp}, {S4(WS_)}, s{off_sreg} offen offset:{0x2000 & 0xfff | 0x800}")
    a(f"buffer_store_dword v{vtmp+1}, v{vtmp}, {S4(WS_)}, s{off_sreg} offen{SC}")
    a("s_mov_b64 exec, -1")
    a.label(l)

def wpublish(off_sreg, vtmp, dual=False):
    a("s_mov_b64 exec, 1")
    a(f"v_mov_b32 v{vtmp}, 0")
    a(f"v_mov_b32 v{vtmp+1}, s{S_NONCE}")
    if dual:
        a(f"s_add_u32 s72, s{off_sreg}, 0x1000")
        a(f"buffer_store_dword v{vtmp+1}, v{vtmp}, {S4(WS_)}, s72 offen")
    a(f"buffer_store_dword v{vtmp+1}, v{vtmp}, {S4(WS_)}, s{off_sreg} offen{SC}")
    a("s_mov_b64 exec, -1")

PSLEEP = int(os.environ.get("PSLEEP", "2"))
def lds_release(i, vt):
    a(f"v_mov_b32 v{vt}, {REL_LDS + 4*i}")
    a(f"v_mov_b32 v{vt+1}, 1")
    a(f"ds_write_b32 v{vt}, v{vt+1}")
def lds_add(i, vt):
    a(f"v_mov_b32 v{vt}, {REL_LDS + 4*i}")
    a(f"v_mov_b32 v{vt+1}, 1")
    a("s_mov_b64 exec, 1")
    a(f"ds_add_u32 v{vt}, v{vt+1}")
def lds_wait_cnt(i, n, vt, name):
    a(f"v_mov_b32 v{vt}, {REL_LDS + 4*i}")
    a(f"s_mov_b32 s74, {SPIN*16}")
    a.label(f".L{name}_cw")
    a(f"ds_read_b32 v{vt+1}, v{vt}")
    a("s_waitcnt lgkmcnt(0)")
    a(f"v_readfirstlane_b32 s72, v{vt+1}")
    a(f"s_cmp_eq_u32 s72, {n}")
    a(f"s_cbranch_scc1 .L{name}_cok")
    a("s_sleep 1")
    a("s_sub_u32 s74, s74, 1")
    a("s_cmp_lg_u32 s74, 0")
    a(f"s_cbranch_scc1 .L{name}_cw")
    a.label(f".L{name}_cok")
def lds_wait_rel(i, vt, name):
    a(f"v_mov_b32 v{vt}, {REL_LDS + 4*i}")
    a(f"s_mov_b32 s74, {SPIN*16}")
    a.label(f".L{name}_lw")
    a(f"ds_read_b32 v{vt+1}, v{vt}")
    a("s_waitcnt lgkmcnt(0)")
    a(f"v_readfirstlane_b32 s72, v{vt+1}")
    a("s_cmp_lg_u32 s72, 0")
    a(f"s_cbranch_scc1 .L{name}_lok")
    a("s_sleep 1")
    a("s_sub_u32 s74, s74, 1")
    a("s_cmp_lg_u32 s74, 0")
    a(f"s_cbranch_scc1 .L{name}_lw")
    a.label(f".L{name}_lok")

def inter(m, r):
    out = []; per = -(-len(r) // len(m)) if r else 0; ri = 0
    for mm in m:
        out.append(mm)
        for _ in range(per):
            if ri < len(r): out.append(r[ri]); ri += 1
    return out

a("s_cmp_ge_u32 s2, 256")
a("s_cbranch_scc1 .Lend")
a("s_load_dwordx16 s[16:31], s[0:1], 0")
a("s_load_dwordx4 s[32:35], s[0:1], 64")
if PROF: a("v_mov_b32 v255, 0")
stamp(0)
if PROF:
    a("s_memtime s[98:99]")
    a("s_waitcnt lgkmcnt(0)")
    a("v_writelane_b32 v255, s98, 12")
a("v_lshrrev_b32 v1, 6, v0")
a("v_and_b32 v0, 63, v0")
a("v_readfirstlane_b32 s3, v1")
a(f"s_and_b32 s{S_XCD}, s2, 7")
a(f"s_lshr_b32 s{S_IDX}, s2, 3")
a(f"s_and_b32 s72, s{S_XCD}, 1")
a(f"s_lshr_b32 s73, s{S_XCD}, 1")
a(f"s_and_b32 s74, s{S_IDX}, 7")
a(f"s_lshr_b32 s75, s{S_IDX}, 3")
a(f"s_lshl_b32 s{S_RB}, s72, 3")
a(f"s_add_u32 s{S_RB}, s{S_RB}, s74")
a(f"s_lshl_b32 s{S_J}, s73, 2")
a(f"s_add_u32 s{S_J}, s{S_J}, s75")
a(f"s_lshl_b32 s{S_ROT}, s75, 1")
a(f"s_add_u32 s{S_ROT}, s{S_ROT}, s74")
a(f"s_and_b32 s{S_ROT}, s{S_ROT}, 7")
a(f"s_lshl_b32 s{S_HEAD}, s73, 3")
a(f"s_add_u32 s{S_HEAD}, s{S_HEAD}, s74")
a(f"s_lshl_b32 s{S_QB}, s72, 2")
a(f"s_add_u32 s{S_QB}, s{S_QB}, s75")
a(f"s_lshl_b32 s{S_RT}, s{S_XCD}, 2")
a(f"s_add_u32 s{S_RT}, s{S_RT}, s75")
a(f"s_mov_b32 s{S_CT}, s74")
a(f"s_mov_b32 s{S_NONCE}, 0")
a("s_and_b32 s14, s3, 3")
a(f"s_lshr_b32 s97, s{S_IDX}, 3")
a(f"s_lshl_b32 s93, s{S_RB}, 2")
a("s_add_u32 s93, s93, s14")
a("s_cmp_lt_u32 s3, 4")
a("s_cbranch_scc1 .Lcompute")

VX = 240; VWA = 244; VWB = 245; VWB2 = 246; LN16 = 247; T = 248; L = 254
a(f"v_mov_b32 v{L}, v0")
a("v_lshrrev_b32 v1, 3, v0")
a("v_and_b32 v2, 7, v0")
a("v_lshrrev_b32 v3, 4, v0")
a(f"s_lshl_b32 s72, s{S_RB}, 7")
a("s_lshl_b32 s73, s14, 5")
a("s_add_u32 s72, s72, s73")
for j in range(4):
    a(f"v_add_u32 v4, {4*(j&1)}, v3")
    a("v_xor_b32 v4, v4, v2")
    a("v_lshlrev_b32 v4, 4, v4")
    a(f"v_add_u32 v5, {8*j}, v1")
    a("v_add_u32 v5, s72, v5")
    a(f"v_lshl_add_u32 v{VX+j}, v5, 10, v4")
a("v_lshrrev_b32 v1, 2, v0")
a("s_lshl_b32 s72, s14, 4")
a("v_add_u32 v6, s72, v1")
a("v_and_b32 v2, 3, v0")
a("v_lshlrev_b32 v2, 4, v2")
a(f"s_lshl_b32 s72, s{S_J}, 6")
a(f"v_mul_u32_u24 v{VWA}, 3072, v6")
a(f"v_add3_u32 v{VWA}, v{VWA}, v2, s72")
a(f"s_lshl_b32 s78, s{S_ROT}, 7")
a(f"s_mul_i32 s79, s{S_ROT}, {64*3072}")
a(f"s_mul_i32 s80, s{S_ROT}, {64*2752}")
a("s_lshl_b32 s81, s14, 12")
a("s_lshl_b32 s82, s14, 10")
a("s_waitcnt lgkmcnt(0)")
srd(a, X_, 16, 2048*1024)
srd(a, WQ_, 18, 512*3072)
vq = Q("vmcnt", 63)
def issue_A(p):
    slot = p % 4
    for j in range(4):
        a(f"s_add_u32 m0, s81, {slot*SLOT + j*1024}")
        a("s_nop 0")
        a(f"buffer_load_dwordx4 v{VX+j}, {S4(X_)}, s78 offen lds")
    for b in range(3):
        a(f"s_add_u32 m0, s82, {slot*SLOT + 16384 + b*4096 - b*1024}")
        a("s_nop 0")
        a(f"buffer_load_dwordx4 v{VWA}, {S4(WQ_)}, s79 offen offset:{b*1024} lds")
    a("s_add_u32 s78, s78, 128")
    a(f"s_add_u32 s79, s79, {64*3072}")
    a("s_cmp_eq_u32 s78, 1024")
    a("s_cselect_b32 s78, 0, s78")
    a("s_cselect_b32 s79, 0, s79")
    vq.issue(("A", p), 7)
def issue_Bhalf(h):
    for b in range(3):
        a(f"s_add_u32 m0, s82, {BH[h] + b*4096 - b*64}")
        a("s_nop 0")
        a(f"buffer_load_dwordx4 v{VWB if b == 0 else VWB2}, {S4(W1_)}, s80 offen offset:{b*64} lds")
    a(f"s_add_u32 s80, s80, {64*2752}")
    a(f"s_cmp_eq_u32 s80, {512*2752}")
    a("s_cselect_b32 s80, 0, s80")
    vq.issue(("B", h), 3)
AW1 = int(os.environ.get("AW1", "0"))
SCH = os.environ.get("SCH", "c")
issue_A(0)
issue_A(1)
if SCH == "a": issue_A(2)
srd(a, WS_, 34, WSBYTES)
srd(a, W1_, 24, 512*2752)
srd(a, OUT_, 30, 2048*1024)
a(f"s_mul_i32 s72, s{S_J}, 192")
a(f"v_mul_u32_u24 v{VWB}, 2752, v6")
a(f"v_add3_u32 v{VWB}, v{VWB}, v2, s72")
a(f"v_mov_b32 v{VWB2}, v{VWB}")
a(f"s_cmp_lt_u32 s{S_J}, 14")
a("s_cbranch_scc1 .Lwbok")
a(f"v_mov_b32 v{VWB2}, 0x40000000")
a(f"s_cmp_lt_u32 s{S_J}, 15")
a("s_cbranch_scc1 .Lwbok")
a(f"v_mov_b32 v{VWB}, 0x40000000")
a.label(".Lwbok")
a(f"v_lshlrev_b32 v{LN16}, 4, v0")
srd(a, DBG_, 32, 256)
a(f"s_lshl_b32 s83, s{S_IDX}, 2")
a("s_add_u32 s83, s83, s14")
a("s_cmp_lt_u32 s83, 86")
a(f"s_cselect_b32 s{WT_}, s26, s20")
a(f"s_cselect_b32 s{WT_+1}, s27, s21")
a(f"s_mov_b32 s{WT_+2}, {1376*1024}")
a(f"s_cselect_b32 s{WT_+2}, s{WT_+2}, {512*1024}")
a(f"s_mov_b32 s{WT_+3}, 0x00020000")
a("s_cselect_b32 s84, 0, 86")
a("s_sub_u32 s84, s83, s84")
a("s_lshl_b32 s84, s84, 14")
a(f"s_lshl_b32 s85, s{S_XCD}, 7")
a("s_add_u32 s84, s84, s85")
a("v_lshlrev_b32 v8, 10, v1")
a("v_add_u32 v8, v8, v2")
a("s_lshl_b32 s85, s14, 11")
a(f"s_add_u32 s85, s85, {BOUNCE}")
a("v_lshrrev_b32 v9, 5, v0")
a("v_lshlrev_b32 v9, 8, v9")
a("v_bfe_u32 v4, v0, 2, 2")
a("v_lshl_add_u32 v9, v4, 6, v9")
a("v_bfe_u32 v4, v0, 4, 1")
a("v_lshl_add_u32 v9, v4, 5, v9")
a("v_and_b32 v4, 3, v0")
a("v_lshl_add_u32 v9, v4, 3, v9")
a("v_add_u32 v9, s85, v9")
a("v_mov_b32 v10, 0")
BSCHED = {4: [0, 1, 2], 5: [3, 4], 6: [5, 6], 7: [7]}
if SCH == "b":
    issue_Bhalf(0)
    BSCHED = {3: [1], 4: [2], 5: [3, 4], 6: [5, 6], 7: [7]}
if SCH == "c":
    BSCHED = {0: [0], 4: [1, 2], 5: [3, 4], 6: [5, 6], 7: [7]}
for p in range(8):
    vq.wait(("A", p))
    a("s_barrier")
    if p == 0: stamp(1)
    if p == 0 and SCH != "a": issue_A(2)
    if p + 3 < 8: issue_A(p+3)
    if p == 4:
        a(f"buffer_load_dword v11, v10, {S4(DBG_)}, 0 offen{SC}")
        vq.issue("nonce", 1)
    for h in BSCHED.get(p, []): issue_Bhalf(h)
    if p == WFP:
        a("s_mov_b32 m0, s85")
        a("s_nop 0")
        a(f"buffer_load_dwordx4 v8, {S4(WT_)}, s84 offen lds")
        a("s_add_u32 m0, s85, 960")
        a("s_nop 0")
        a(f"buffer_load_dwordx4 v8, {S4(WT_)}, s84 offen offset:64 lds")
        vq.issue("wfld", 2)
vq.wait("nonce")
a(f"v_readfirstlane_b32 s{S_NONCE}, v11")
a(f"s_cmp_lg_u32 s{S_NONCE}, 0")
a("s_cbranch_scc1 .Lnonce_ok")
a(f"s_mov_b32 s74, {SPIN}")
a.label(".Lnonce_poll")
a("s_sleep 1")
a(f"buffer_load_dword v11, v10, {S4(DBG_)}, 0 offen{SC}")
a("s_waitcnt vmcnt(0)")
a(f"v_readfirstlane_b32 s{S_NONCE}, v11")
a(f"s_cmp_lg_u32 s{S_NONCE}, 0")
a("s_cbranch_scc1 .Lnonce_ok")
a("s_sub_u32 s74, s74, 1")
a("s_cmp_lg_u32 s74, 0")
a("s_cbranch_scc1 .Lnonce_poll")
a.label(".Lnonce_ok")
a(f"v_mov_b32 v4, {NONCE_LDS}")
a("ds_write_b32 v4, v11")
for i_ in range(1, 8): a(f"ds_write_b32 v4, v10 offset:{4*i_}")
a("s_waitcnt lgkmcnt(0)")
stamp(2)
a(f"v_lshlrev_b32 v{T+2}, 2, v{L}")
vq.wait("wfld")
for i in range(4): a(f"ds_read_b64_tr_b16 v[{12+2*i}:{13+2*i}], v9 offset:{512*i}")
a(f"s_mul_i32 s84, s{S_XCD}, {2*118}")
a("s_add_u32 s84, s84, s83")
a("s_lshl_b32 s84, s84, 10")
a(f"s_add_u32 s84, s84, {WF}")
a("s_cmp_lt_u32 s83, 118")
a("s_cselect_b32 s84, s84, 0x40000000")
a(f"s_add_u32 s85, s84, {118*1024}")
a("s_waitcnt lgkmcnt(0)")
a(f"buffer_store_dwordx4 v[12:15], v{LN16}, {S4(WS_)}, s84 offen{SC}")
a(f"buffer_store_dwordx4 v[16:19], v{LN16}, {S4(WS_)}, s85 offen{SC}")
a(f"s_lshl_b32 s90, s{S_XCD}, 7")
a("s_add_u32 s90, s90, s83")
a("s_lshl_b32 s90, s90, 2")
a(f"s_add_u32 s90, s90, {F_W}")
vq.issue("wfst", 2)
vq.wait(("B", 3))
a("s_barrier")
vq.wait(("B", 7))
a("s_barrier")
stamp(3)
a("s_mov_b32 s85, 0")
a("s_waitcnt vmcnt(0)")
wpublish(90, T+3)
a("s_cmp_lg_u32 s3, 4")
a("s_cbranch_scc1 .Lfa_wait")
a(f"s_lshr_b32 s76, s{S_HEAD}, 1")
a("s_lshl_b32 s76, s76, 8")
a(f"s_lshl_b32 s77, s{S_QB}, 5")
a("s_add_u32 s76, s76, s77")
a(f"s_add_u32 s76, s76, {F_A - 32}")
a("s_add_u32 s77, s76, 0x1000")
a("s_mov_b32 s84, 0xffff")
a(f"s_cmp_eq_u32 s{S_QB}, 0")
a("s_cselect_b32 s84, 0xff00, s84")
a(f"s_mov_b32 s74, {SPIN}")
a("s_mov_b64 exec, 0xffff")
a.label(".Lfa_poll")
a(f"buffer_load_dword v{T+3}, v{T+2}, {S4(WS_)}, s77 offen{SC}")
a("s_waitcnt vmcnt(0)")
a(f"v_cmp_ne_u32 vcc, s{S_NONCE}, v{T+3}")
a("s_and_b64 s[84:85], vcc, s[84:85]")
a("s_cbranch_scc0 .Lfa_ok")
a(f"s_and_b32 s72, s74, {GMASK}")
a("s_cmp_lg_u32 s72, 0")
a("s_cbranch_scc1 .Lfa_skipg")
a(f"buffer_load_dword v{T+4}, v{T+2}, {S4(WS_)}, s76 offen{SC}")
a("s_waitcnt vmcnt(0)")
a(f"v_cmp_ne_u32 vcc, s{S_NONCE}, v{T+4}")
a("s_and_b64 s[84:85], vcc, s[84:85]")
a("s_cbranch_scc0 .Lfa_ok")
a.label(".Lfa_skipg")
a(f"s_sleep {FSLEEP}")
a("s_sub_u32 s74, s74, 1")
a("s_cmp_lg_u32 s74, 0")
a("s_cbranch_scc1 .Lfa_poll")
a.label(".Lfa_ok")
a("s_mov_b64 exec, -1")
lds_release(0, T+3)
a("s_branch .Lfa_go")
a.label(".Lfa_wait")
lds_wait_rel(0, T+3, "fa")
a.label(".Lfa_go")
stamp(11)
a(f"s_lshl_b32 s72, s{S_HEAD}, 6")
a(f"s_lshl_b32 s73, s{S_QB}, 3")
a("s_add_u32 s72, s72, s73")
a("s_lshl_b32 s72, s72, 10")
a("s_lshl_b32 s73, s14, 11")
a("s_add_u32 s73, s73, s72")
a("s_add_u32 s74, s72, s81")
a(f"s_add_u32 s74, s74, {KF - 8192}")
a(f"s_lshl_b32 s75, s{S_QB}, 2")
a("s_add_u32 s75, s75, s14")
a("s_cmp_lt_u32 s75, 2")
a("s_cselect_b32 s74, 0x40000000, s74")
a(f"s_add_u32 s75, s74, {VF - KF}")
a(f"s_add_u32 m0, s81, {STG}")
a("s_nop 0")
for i in range(4): a(f"buffer_load_dwordx4 v{LN16}, {S4(WS_)}, s74 offen offset:{i*1024} lds")
a("s_lshl_b32 s74, s14, 11")
a(f"s_add_u32 m0, s74, {STG + 32768}")
a("s_nop 0")
for i in range(2): a(f"buffer_load_dwordx4 v{LN16}, {S4(WS_)}, s73 offen offset:{i*1024} lds")
a(f"s_add_u32 m0, s81, {STG + 16384}")
a("s_nop 0")
for i in range(4): a(f"buffer_load_dwordx4 v{LN16}, {S4(WS_)}, s75 offen offset:{i*1024} lds")
vq.drain()
vq.issue("stg", 10)
a("s_mul_i32 s86, s14, 22")
a("s_cmp_eq_u32 s14, 3")
a("s_cselect_b32 s86, 65, s86")
a("s_add_u32 s87, s86, 22")
a("s_cmp_ge_u32 s14, 2")
a("s_cselect_b32 s88, 1, 0")
a("s_sub_u32 s87, s87, s88")
a(f"s_mul_i32 s92, s{S_CT}, 3")
a("s_mul_i32 s72, s97, 5")
a("s_add_u32 s92, s92, s72")
a("s_cmp_ge_u32 s92, 22")
a("s_cselect_b32 s72, 22, 0")
a("s_sub_u32 s92, s92, s72")
a("s_lshl_b32 s92, s92, 10")
a("s_mov_b32 s93, s92")
a(f"s_mul_i32 s72, s{S_CT}, {2*118}")
a("s_add_u32 s72, s72, s86")
a("s_lshl_b32 s72, s72, 10")
a(f"s_add_u32 s72, s72, {WF}")
a(f"v_add_u32 v{T}, s72, v{LN16}")
a(f"v_add_u32 v{T+1}, {118*1024}, v{T}")
a(f"s_mul_i32 s72, s{S_RT}, {2*118*1024}")
a(f"s_add_u32 s72, s72, {AF}")
a("s_lshl_b32 s73, s87, 10")
for rt in range(2):
    a(f"s_add_u32 s{76+4*rt}, s34, s72")
    a(f"s_addc_u32 s{77+4*rt}, s35, 0")
    a(f"s_mov_b32 s{78+4*rt}, s73")
    a(f"s_mov_b32 s{79+4*rt}, 0x00020000")
    a(f"s_add_u32 s72, s72, {118*1024}")
a(f"s_mul_i32 s89, s14, 24576")
a("s_cmp_ge_u32 s14, 2")
a(f"s_cselect_b32 s72, {114688 - 49152}, 0")
a("s_add_u32 s89, s89, s72")
a(f"s_lshl_b32 s91, s{S_CT}, 7")
a("s_add_u32 s91, s91, s86")
a("s_lshl_b32 s91, s91, 2")
a(f"s_add_u32 s91, s91, {F_W}")
a("s_mov_b32 s84, 0x3fffff")
a("s_mov_b32 s85, 0")
a("s_mov_b32 exec_hi, 0")
a(f"buffer_load_dword v{T+3}, v{T+2}, {S4(WS_)}, s91 offen{SC}")
a("s_waitcnt vmcnt(1)")
lds_add(3, T+4)
a("s_mov_b32 exec_lo, -1")
stamp(4)
a("s_waitcnt vmcnt(0)")
a(f"v_cmp_ne_u32 vcc, s{S_NONCE}, v{T+3}")
a("s_and_b64 s[72:73], vcc, s[84:85]")
a("s_cbranch_scc0 .Lfw_ok")
poll_flags(91, 84, T+2, "fw")
a("s_mov_b64 exec, -1")
vq.drain()
tick("fwOK")
W2R = 0; DACC = 160; HB = 224; NPRE = 20
def w2load(k):
    f = W2R + (k % NPRE)*8
    a(f"buffer_load_dwordx4 {vr(f,4)}, v{T}, {S4(WS_)}, s92 offen")
    a(f"buffer_load_dwordx4 {vr(f+4,4)}, v{T+1}, {S4(WS_)}, s92 offen")
    a("s_add_u32 s92, s92, 1024")
    a(f"s_cmp_eq_u32 s92, {22*1024}")
    a("s_cselect_b32 s92, 0, s92")
    vq.issue(("w", k), 2)
for k in range(NPRE): w2load(k)
tick("w2iss")
a(f"s_lshl_b32 s91, s{S_RT}, 7")
a(f"s_add_u32 s91, s91, {F_B}")
a("s_mov_b32 s84, -1")
a("s_cmp_lg_u32 s3, 4")
a("s_cbranch_scc1 .Lfb_wait")
a("s_mov_b32 exec_hi, 0")
poll_flags(91, 84, T+2, "fb")
a("s_mov_b64 exec, -1")
lds_wait_cnt(4, 4, T+3, "bd")
lds_release(1, T+3)
a("s_branch .Lfb_go")
a.label(".Lfb_wait")
lds_wait_rel(1, T+3, "fb")
a.label(".Lfb_go")
stamp(7)
a("s_lshl_b32 s72, s86, 10")
a(f"v_add_u32 v{T+4}, s72, v{LN16}")
a(f"v_add_u32 v{T+5}, s89, v{LN16}")
def hdma(k):
    sl = k % NSL
    for rt in range(2):
        a(f"s_add_u32 m0, s89, {sl*2048 + rt*1024}")
        a("s_nop 0")
        a(f"buffer_load_dwordx4 v{T+4}, s[{76+4*rt}:{79+4*rt}], s93 offen lds")
    a("s_add_u32 s93, s93, 1024")
    a(f"s_cmp_eq_u32 s93, {22*1024}")
    a("s_cselect_b32 s93, 0, s93")
    vq.issue(("h", k), 2)
def hreads(k):
    return [f"ds_read_b128 {vr(HB+(k&1)*8+rt*4,4)}, v{T+5} offset:{(k % NSL)*2048 + rt*1024}" for rt in range(2)]
HW1 = int(os.environ.get("HW1", "0"))
for k in range(NSL):
    hdma(k)
    if k == HW1-1: vq.wait(("h", k))
GV = VX
a(f"v_and_b32 v{T+2}, 31, v{L}")
a(f"v_lshlrev_b32 v{T+2}, 2, v{T+2}")
a(f"s_lshl_b32 s72, s{S_RT}, 8")
a(f"s_add_u32 s72, s72, {GOFF}")
a(f"buffer_load_dword v{GV}, v{T+2}, {S4(WS_)}, s72 offen")
a(f"buffer_load_dword v{GV+1}, v{T+2}, {S4(WS_)}, s72 offen offset:128")
vq.issue("g", 2)
vq.wait(("h", 0))
for l in hreads(0): a(l)
PUBC_AT = int(os.environ.get("PUBC_AT", "0"))
for k in range(22):
    if k < 21: vq.wait(("h", k+1), ("w", k))
    else: vq.wait(("w", k))
    a("s_waitcnt lgkmcnt(0)")
    if k in (0, 1, 4, 8, 12, 16, 20): tick(f"D{k}")
    f = W2R + (k % NPRE)*8
    m = []
    for nt in range(2):
        for rt in range(2):
            acc = vr(DACC+(nt*2+rt)*16, 16)
            m.append(f"v_mfma_f32_32x32x16_bf16 {acc}, {vr(f+4*nt,4)}, {vr(HB+(k&1)*8+4*rt,4)}, {'0' if k == 0 else acc}")
    for l in inter(m, hreads(k+1) if k < 21 else []): a(l)
    if k + NSL < 22: hdma(k + NSL)
    if k + NPRE < 22: w2load(k + NPRE)
a("s_waitcnt vmcnt(0)")
for i in range(2):
    a(f"v_sub_f32 v{GV+i}, 1.0, v{GV+i}")
    a(f"v_cvt_pk_bf16_f32 v{GV+i}, v{GV+i}, v{GV+i}")
    a(f"v_lshlrev_b32 v{GV+i}, 16, v{GV+i}")
a("s_mov_b32 s90, s89")
a("s_branch .Lreduce")

a.label(".Lcompute")
XR = 0; ACC = 128; WFR = 176; XA = 212; XA2 = 216; WA = 232; TMP = 224; WFA = 235; WFD = 236
a(f"v_mov_b32 v{L}, v0")
a(f"v_and_b32 v{TMP}, 31, v{L}")
a(f"v_lshrrev_b32 v{TMP+1}, 5, v{L}")
a(f"v_bfe_u32 v{TMP+2}, v{L}, 1, 3")
a("s_lshl_b32 s72, s3, 12")
for sp in range(4):
    a(f"v_add_u32 v{TMP+3}, {2*sp}, v{TMP+1}")
    a(f"v_xor_b32 v{TMP+3}, v{TMP+3}, v{TMP+2}")
    a(f"v_lshlrev_b32 v{TMP+3}, 4, v{TMP+3}")
    a(f"v_lshl_add_u32 v{TMP+3}, v{TMP}, 7, v{TMP+3}")
    a(f"v_add_u32 v{XA+sp}, s72, v{TMP+3}")
    a(f"v_add_u32 v{XA2+sp}, {2*SLOT}, v{XA+sp}")
a(f"v_lshlrev_b32 v{WA}, 9, v{TMP+1}")
a(f"v_bfe_u32 v{TMP+3}, v{L}, 2, 2")
a(f"v_lshl_add_u32 v{WA}, v{TMP+3}, 6, v{WA}")
a(f"v_bfe_u32 v{TMP+3}, v{L}, 4, 1")
a(f"v_lshl_add_u32 v{WA}, v{TMP+3}, 5, v{WA}")
a(f"v_and_b32 v{TMP+3}, 3, v{L}")
a(f"v_lshl_add_u32 v{WA}, v{TMP+3}, 3, v{WA}")
a(f"v_add_u32 v{WA+1}, 0x10000, v{WA}")
a(f"v_add_u32 v{WA+2}, 0x20000, v{WA}")
a(f"v_lshlrev_b32 v{LN16}, 4, v{L}")
a("s_waitcnt lgkmcnt(0)")
srd(a, WS_, 34, WSBYTES)
srd(a, OUT_, 30, 2048*1024)
srd(a, DBG_, 32, 256)
srd(a, GT_, 28, 1024)
a("s_or_b32 s72, s2, s3")
a("s_cmp_lg_u32 s72, 0")
a("s_cbranch_scc1 .Lnononce")
a("s_memrealtime s[72:73]")
a("s_waitcnt lgkmcnt(0)")
a("s_or_b32 s72, s72, 1")
a(f"v_mov_b32 v{TMP}, 0")
a(f"v_mov_b32 v{TMP+1}, s72")
a("s_mov_b64 exec, 1")
a(f"buffer_store_dword v{TMP+1}, v{TMP}, {S4(DBG_)}, 0 offen{SC}")
a("s_mov_b64 exec, -1")
a("s_mov_b32 s72, 0")
a("s_mov_b32 s73, 0")
a.label(".Lnononce")
if DIAG:
    a("s_cmp_lg_u32 s3, 2")
    a("s_cbranch_scc1 .Lnodiag")
    a("s_memrealtime s[72:73]")
    a("s_waitcnt lgkmcnt(0)")
    a("s_not_b32 s72, s72")
    a(f"v_mov_b32 v{TMP}, 8")
    a(f"v_mov_b32 v{TMP+1}, s72")
    a("s_mov_b64 exec, 1")
    a(f"buffer_atomic_umax v{TMP+1}, v{TMP}, {S4(DBG_)}, 0 offen{SC}")
    a("s_mov_b64 exec, -1")
    a("s_mov_b32 s72, 0")
    a("s_mov_b32 s73, 0")
    a.label(".Lnodiag")
if CPF:
    a("s_cmp_lg_u32 s3, 1")
    a("s_cbranch_scc1 .Lnocpf")
    a(f"s_cmp_ge_u32 s{S_IDX}, CODE_KB")
    a("s_cbranch_scc1 .Lnocpf")
    a("s_getpc_b64 s[72:73]")
    a.label(".Lpcref")
    a(f"s_sub_u32 s72, s72, .Lpcref-{KNAME}")
    a("s_subb_u32 s73, s73, 0")
    a(f"s_lshl_b32 s74, s{S_IDX}, 10")
    a(f"v_add_u32 v{TMP}, s74, v{LN16}")
    a(f"global_load_dwordx4 v[236:239], v{TMP}, s[72:73]")
    a.label(".Lnocpf")

if PFW1:
    srd(a, W1_, 24, 512*2752)
    a(f"s_lshl_b32 s72, s{S_ROT}, 6")
    a(f"v_add_u32 v3, s72, v{L}")
    a("v_mul_u32_u24 v3, 2752, v3")
    a(f"s_mul_i32 s72, s{S_J}, 192")
    a("s_lshl_b32 s73, s14, 6")
    a("s_add_u32 s72, s72, s73")
    a(f"s_cmp_lt_u32 s{S_J}, 15")
    a("s_cselect_b32 s72, s72, 0x40000000")
    a(f"buffer_load_dword v{WFD+2}, v3, {S4(W1_)}, s72 offen")

def wread(dst, addr):
    return f"ds_read_b64_tr_b16 {vr(dst,2)}, v{WA + (addr >> 16)} offset:{addr & 0xffff}"
def reads_A(t):
    p, sp = t >> 2, t & 3
    slot = p % 4
    r = [f"ds_read_b128 {vr(XR+4*t,4)}, v{(XA if slot < 2 else XA2)+sp} offset:{(slot & 1)*SLOT}"]
    for b in range(3):
        for rd in range(2):
            r.append(wread(WFR + (t % 3)*12 + b*4 + rd*2, slot*SLOT + 16384 + b*4096 + (4*sp+rd)*256))
    return r
def reads_B(t):
    p, sp = t >> 2, t & 3
    return [wread(WFR + (t % 3)*12 + b*4 + rd*2, BH[p] + b*4096 + (4*sp+rd)*256) for b in range(3) for rd in range(2)]
def mf(t, kinds, first):
    m = []
    for b, kd in enumerate(kinds):
        acc = vr(ACC+16*b, 16); x = vr(XR+4*t, 4); w = vr(WFR+(t % 3)*12+b*4, 4)
        c = "0" if first else acc
        if kd == 'T': m.append(f"v_mfma_f32_32x32x16_bf16 {acc}, {w}, {x}, {c}")
        else:         m.append(f"v_mfma_f32_32x32x16_bf16 {acc}, {x}, {w}, {c}")
    return m
lq = Q("lgkmcnt", 15)
a(f"s_lshl_b32 s76, s{S_J}, 4")
a(f"s_add_u32 s76, s76, s{S_RB}")
a("s_lshl_b32 s76, s76, 2")
a("s_add_u32 s76, s76, s3")
a("s_lshl_b32 s76, s76, 2")
a(f"s_add_u32 s76, s76, {FLG}")
a("s_barrier")
stamp(1)
for tt in (0, 1):
    for l in reads_A(tt): a(l)
    lq.issue(tt, 7)
for t in range(32):
    lq.wait(t)
    sp = t & 3
    nxt = []; tags = []
    if sp < 2:
        nxt = reads_A(t+2); tags = [(t+2, 7)]
    elif sp == 3 and t < 31:
        tick(f"A{t>>2}pre")
        a("s_barrier")
        tick(f"A{t>>2}post")
        nxt = reads_A(t+1) + reads_A(t+2); tags = [(t+1, 7), (t+2, 7)]
    for l in inter(mf(t, "TTN", t == 0), nxt): a(l)
    for tg, n in tags: lq.issue(tg, n)
assert not lq.q, lq.q
stamp(2)
a(f"s_lshl_b32 s72, s{S_RB}, 2")
a("s_add_u32 s72, s72, s3")
a(f"s_lshl_b32 s73, s{S_J}, 7")
a("s_add_u32 s72, s72, s73")
a("s_lshl_b32 s72, s72, 10")
a(f"v_add_u32 v{TMP}, s72, v{LN16}")
a(f"v_add_u32 v{TMP+1}, 0x10000, v{TMP}")
a(f"v_and_b32 v{TMP+2}, 15, v{L}")
a(f"v_lshrrev_b32 v{TMP+3}, 5, v{L}")
a(f"v_lshl_add_u32 v{TMP+2}, v{TMP+3}, 4, v{TMP+2}")
a(f"v_lshlrev_b32 v{TMP+2}, 4, v{TMP+2}")
a(f"v_bfe_u32 v{TMP+3}, v{L}, 4, 1")
a(f"v_lshl_add_u32 v{TMP+2}, v{TMP+3}, 16, v{TMP+2}")
a(f"v_add_u32 v{TMP+2}, s72, v{TMP+2}")
a(f"s_mov_b32 s73, {CSCALE}")
a(f"s_mov_b32 s74, {KF}")
a(f"s_mov_b32 s75, {VF}")
a("s_nop 3")
for b in (1, 2, 0):
    r = ACC + 16*b
    if b == 0:
        for i in range(16): a(f"v_mul_f32 v{r+i}, s73, v{r+i}")
    for i in range(8): a(f"v_cvt_pk_bf16_f32 v{r+i}, v{r+2*i}, v{r+2*i+1}")
def qkv_stores(fl, so_k, so_v, with_q):
    for b in (1, 2, 0):
        r = ACC + 16*b
        if b == 0 and not with_q: continue
        if b < 2:
            so = "0" if b == 0 else so_k
            a(f"buffer_store_dwordx4 {vr(r,4)}, v{TMP}, {S4(WS_)}, {so} offen{fl}")
            a(f"buffer_store_dwordx4 {vr(r+4,4)}, v{TMP+1}, {S4(WS_)}, {so} offen{fl}")
        else:
            a(f"buffer_store_dwordx4 {vr(r,4)}, v{TMP+2}, {S4(WS_)}, {so_v} offen{fl}")
            a(f"buffer_store_dwordx4 {vr(r+4,4)}, v{TMP+2}, {S4(WS_)}, {so_v} offen offset:512{fl}")
if LOCAL:
    a(f"s_lshr_b32 s72, s{S_RB}, 1")
    a("s_cmp_lg_u32 s72, 3")
    a("s_cbranch_scc1 .Lnohalo")
    a(f"s_mov_b32 s72, {K2F}")
    a(f"s_mov_b32 s73, {V2F}")
    qkv_stores(SC, "s72", "s73", False)
    a.label(".Lnohalo")
    a("s_cmp_eq_u32 s88, 1")
    a("s_cbranch_scc0 .Lqkv_safe")
    qkv_stores("", "s74", "s75", True)
    a("s_branch .Lqkv_done")
    a.label(".Lqkv_safe")
qkv_stores(SC, "s74", "s75", True)
a.label(".Lqkv_done")
a(f"s_cmp_eq_u32 s{S_J}, 15")
a("s_cbranch_scc1 .Lgate")
tick("epiA")
a("s_barrier")
tick("B01")
a(f"v_mov_b32 v{TMP+2}, {NONCE_LDS}")
a(f"ds_read_b32 v{TMP+3}, v{TMP+2}")
lq.issue("n", 1)
for tt in (0, 1):
    for l in reads_B(tt): a(l)
    lq.issue(tt, 6)
for t in range(32):
    lq.wait(t)
    if t == 2: a(f"v_readfirstlane_b32 s{S_NONCE}, v{TMP+3}")
    if t == PUBA_T:
        a("s_waitcnt vmcnt(0)")
        tick("pubA")
        wpublish(76, TMP, dual=True)
    if t == 14:
        tick("B23pre")
        a("s_barrier")
        tick("B23post")
    nxt = reads_B(t+2) if t < 30 else []
    for l in inter(mf(t, "TTT", t == 0), nxt): a(l)
    if t < 30: lq.issue(t+2, 6)
stamp(3)
a(f"s_lshl_b32 s72, s{S_RB}, 2")
a("s_add_u32 s72, s72, s3")
a("s_mul_i32 s72, s72, 118")
a(f"s_mul_i32 s73, s{S_J}, 6")
a("s_add_u32 s72, s72, s73")
a("s_lshl_b32 s72, s72, 10")
a(f"s_add_u32 s72, s72, {AF}")
a("s_add_u32 s73, s72, 4096")
a("s_nop 5")
for b in range(3):
    r = ACC + 16*b
    for i in range(8): a(f"v_cvt_pk_bf16_f32 v{r+i}, v{r+2*i}, v{r+2*i+1}")
    for i in range(8): a(f"v_pk_max_i16 v{r+i}, v{r+i}, 0")
    so = "s72" if b < 2 else "s73"
    o = (b & 1)*2048
    a(f"buffer_store_dwordx4 {vr(r,4)}, v{LN16}, {S4(WS_)}, {so} offen offset:{o}{SC}")
    a(f"buffer_store_dwordx4 {vr(r+4,4)}, v{LN16}, {S4(WS_)}, {so} offen offset:{o+1024}{SC}")
    if b == 0:
        a(f"s_cmp_eq_u32 s{S_J}, 14")
        a("s_cbranch_scc1 .Lattn")
a("s_branch .Lattn")
a.label(".Lgate")
a(f"s_lshl_b32 s72, s3, 10")
a(f"s_add_u32 s72, s72, 110592")
a("s_barrier")
a("s_mov_b32 m0, s72")
a("s_nop 0")
a(f"buffer_load_dwordx4 v{LN16}, {S4(GT_)}, 0 offen lds")
a(f"v_mov_b32 v{TMP+2}, {NONCE_LDS}")
a(f"ds_read_b32 v{TMP+3}, v{TMP+2}")
a("s_waitcnt vmcnt(0) lgkmcnt(0)")
a(f"v_readfirstlane_b32 s{S_NONCE}, v{TMP+3}")
a("s_mov_b32 s75, s72")
wpublish(76, TMP, dual=True)
a("s_mov_b32 s72, s75")
a("s_barrier")
a(f"v_lshrrev_b32 v{TMP}, 5, v{L}")
a(f"v_lshlrev_b32 v{TMP}, 4, v{TMP}")
a(f"v_add_u32 v{TMP}, s72, v{TMP}")
a(f"s_mov_b32 s73, s{S_ROT}")
for p in range(8):
    a("s_lshl_b32 s74, s73, 7")
    a(f"v_add_u32 v{TMP+1}, s74, v{TMP}")
    gb = ACC + 16 + (p & 1)*16
    for sp in range(4):
        a(f"ds_read_b128 {vr(gb+4*sp,4)}, v{TMP+1} offset:{sp*32}")
    a("s_add_u32 s73, s73, 1")
    a("s_and_b32 s73, s73, 7")
    a("s_waitcnt lgkmcnt(0)")
    for sp in range(4):
        t = 4*p+sp
        a(f"v_mfma_f32_32x32x16_bf16 {vr(ACC,16)}, {vr(gb+4*sp,4)}, {vr(XR+4*t,4)}, {'0' if t == 0 else vr(ACC,16)}")
a("s_nop 15")
z = ACC
a(f"v_cvt_pk_bf16_f32 v{z}, v{z}, v{z}")
a(f"v_lshlrev_b32 v{z}, 16, v{z}")
a(f"v_mul_f32 v{z}, 0xbfb8aa3b, v{z}")
a(f"v_exp_f32 v{z}, v{z}")
a("s_nop 0")
a(f"v_add_f32 v{z}, 1.0, v{z}")
a(f"v_rcp_f32 v{z}, v{z}")
a("s_nop 0")
a(f"v_cvt_pk_bf16_f32 v{z}, v{z}, v{z}")
a(f"v_lshlrev_b32 v{z}, 16, v{z}")
a(f"s_lshl_b32 s72, s{S_RB}, 7")
a("s_lshl_b32 s73, s3, 5")
a("s_add_u32 s72, s72, s73")
a("s_lshl_b32 s72, s72, 2")
a(f"s_add_u32 s72, s72, {GOFF}")
a(f"v_lshlrev_b32 v{TMP}, 2, v{L}")
a("s_mov_b32 exec_hi, 0")
a(f"buffer_store_dword v{z}, v{TMP}, {S4(WS_)}, s72 offen{SC}")
a("s_mov_b64 exec, -1")

a.label(".Lattn")
KK = 0; QQ = 40; VV = 48; SS = 64; CD = 96; CF = 112; NM = 176; PP = 208; OO = 128; MM = 160
VAD = 240; KAD = 241; T0 = 242
a("s_lshl_b32 s72, s3, 11")
a(f"s_add_u32 s72, s72, {STG}")
a(f"v_add_u32 v{KAD}, s72, v{LN16}")
a(f"v_and_b32 v2, 15, v{L}")
a(f"v_lshrrev_b32 v3, 5, v{L}")
a("v_lshl_add_u32 v2, v3, 4, v2")
a("v_lshlrev_b32 v2, 4, v2")
a(f"v_add_u32 v{VAD}, s72, v2")
for i in range(16): a(f"v_mov_b32 v{VV+i}, 0x3f803f80")
a(f"v_and_b32 v2, 31, v{L}")
a("v_lshlrev_b32 v3, 2, v3")
a(f"v_sub_u32 v{T0}, v2, v3")
a(f"v_mov_b32 v{T0+1}, {NINF}")
for r in range(16):
    br = (r & 3) + 8*(r >> 2)
    a(f"v_cmp_le_i32 vcc, {br}, v{T0}")
    a("s_nop 1")
    a(f"v_cndmask_b32 v{CD+r}, v{T0+1}, 0, vcc")
    a(f"v_cndmask_b32 v{CF+r}, 0, v{T0+1}, vcc")
for i in range(4): a(f"v_mov_b32 v{MM+i}, {NINF}")
a("s_lshl_b32 s15, s3, 1")
a("s_sub_u32 s15, 8, s15")
a(f"s_cmp_eq_u32 s{S_QB}, 0")
a("s_cselect_b32 s15, s15, 0")
a(f"s_lshl_b32 s76, s{S_RB}, 2")
a("s_add_u32 s76, s76, s3")
a("s_lshl_b32 s76, s76, 4")
a(f"s_add_u32 s76, s76, s{S_J}")
a("s_lshl_b32 s76, s76, 2")
a(f"s_add_u32 s76, s76, {F_B}")
lds_add(4, T0)
a("s_mov_b64 exec, -1")
a("s_mov_b32 s77, 0")
a(f"s_mov_b32 s74, {SPIN*16}")
a.label(".Lstg_cw")
a(f"v_mov_b32 v{T0}, {REL_LDS + 12}")
a(f"ds_read_b32 v{T0+1}, v{T0}")
a("s_waitcnt lgkmcnt(0)")
a(f"v_readfirstlane_b32 s72, v{T0+1}")
a("s_cmp_eq_u32 s72, 4")
a("s_cbranch_scc1 .Lstg_cok")
a("s_cmp_lg_u32 s77, 0")
a("s_cbranch_scc1 .Lstg_np")
a("s_getreg_b32 s72, hwreg(HW_REG_IB_STS)")
a("s_and_b32 s72, s72, 0xc0000f")
a("s_cmp_lg_u32 s72, 0")
a("s_cbranch_scc1 .Lstg_np")
a("s_waitcnt vmcnt(0)")
wpublish(76, T0)
stamp(5)
a("s_mov_b32 s77, 1")
a.label(".Lstg_np")
a("s_sleep 1")
a("s_sub_u32 s74, s74, 1")
a("s_cmp_lg_u32 s74, 0")
a("s_cbranch_scc1 .Lstg_cw")
a.label(".Lstg_cok")
stamp(4)
a(f"ds_read_b128 {vr(QQ+4,4)}, v{KAD} offset:{32768+1024}")
a(f"ds_read_b128 {vr(KK+36,4)}, v{KAD} offset:{9*1024}")
a(f"ds_read_b128 {vr(QQ,4)}, v{KAD} offset:32768")
for v in range(8, -1, -1):
    a(f"ds_read_b128 {vr(KK+4*v,4)}, v{KAD} offset:{v*1024}")
units = [(1, 9)]
for v in range(8, 0, -1): units += [(0, v), (1, v)]
units += [(0, 0)]
def edge(task, v):
    if (task, v) in ((1, 9), (0, 8)): return CD
    if (task, v) in ((1, 1), (0, 0)): return CF
    return None
def smf(task, v, c):
    return f"v_mfma_f32_32x32x16_bf16 {vr(SS+16*task,16)}, {vr(KK+4*v,4)}, {vr(QQ+4*task,4)}, {c}"
def vread(v):
    b = VV + 8*(v & 1)
    a("s_mov_b32 exec_lo, 0xffff")
    a("s_mov_b32 exec_hi, 0xffff")
    a(f"ds_read_b128 {vr(b,4)}, v{VAD} offset:{16384+v*1024}")
    a(f"ds_read_b128 {vr(b+4,4)}, v{VAD} offset:{16384+v*1024+512}")
    a("s_mov_b64 exec, -1")
a("s_waitcnt lgkmcnt(8)")
def c1(u):
    e = edge(*u); return vr(e, 16) if e is not None else "0"
a(smf(*units[0], c1(units[0])))
a("s_waitcnt lgkmcnt(0)")
a("s_nop 7")
for i, (task, v) in enumerate(units):
    if i + 1 < len(units): a(smf(*units[i+1], c1(units[i+1])))
    a("s_nop 2")
    b = SS + 16*task
    for k in range(8):
        a(f"v_max3_f32 v{MM+2*task+(k&1)}, v{b+2*k}, v{b+2*k+1}, v{MM+2*task+(k&1)}")
    if task == 1 and v in (8, 6, 4, 2):
        a(f"s_cmp_eq_u32 s15, {v}")
        a("s_cbranch_scc1 .Lp1done")
a.label(".Lp1done")
vread(9)
vread(8)
for task in range(2):
    m = MM + 2*task
    a(f"v_max_f32 v{m}, v{m}, v{m+1}")
    a(f"v_mov_b32 v{m+1}, v{m}")
a("s_nop 1")
for task in range(2):
    m = MM + 2*task
    a(f"v_permlane32_swap_b32 v{m}, v{m+1}")
a("s_nop 1")
for task in range(2):
    m = MM + 2*task
    a(f"v_max_f32 v{m}, v{m}, v{m+1}")
for task in (1, 0):
    for i in range(16): a(f"v_sub_f32 v{NM+16*task+i}, 0, v{MM+2*task}")
tick("p1end")
a("s_cmp_lg_u32 s77, 0")
a("s_cbranch_scc1 .Lfbdone")
a("s_waitcnt vmcnt(0)")
wpublish(76, T0)
stamp(5)
a.label(".Lfbdone")
a("s_nop 1")
a(smf(*units[0], vr(NM+16, 16)))
a("s_nop 11")
first = {0: True, 1: True}
def pv(task, v):
    vb = VV + 8*(v & 1); p = PP + 8*task; o = vr(OO+16*task, 16)
    r = [f"v_mfma_f32_32x32x16_bf16 {o}, {vr(vb,4)}, {vr(p,4)}, {'0' if first[task] else o}",
         f"v_mfma_f32_32x32x16_bf16 {o}, {vr(vb+4,4)}, {vr(p+4,4)}, {o}"]
    return r
exits = []
pend = None
for i, (task, v) in enumerate(units):
    if i + 1 < len(units):
        nt_, nv = units[i+1]
        a(smf(nt_, nv, vr(NM+16*nt_, 16)))
    b = SS + 16*task; p = PP + 8*task
    e = edge(task, v)
    if e is not None:
        for k in range(16): a(f"v_add_f32 v{b+k}, v{b+k}, v{e+k}")
    for k in range(16):
        a(f"v_exp_f32 v{b+k}, v{b+k}")
        if pend is not None and k == 3:
            pt, pvv = pend
            if (pt, pvv) == (1, 9) or pt == 0: a("s_waitcnt lgkmcnt(0)")
            m = pv(pt, pvv); a(m[0])
        if pend is not None and k == 8:
            a(m[1]); first[pend[0]] = False
            pt, pvv = pend
            if pt == 1 and pvv >= 2: vread(pvv-2)
    a("s_nop 0")
    for k in range(8): a(f"v_cvt_pk_bf16_f32 v{p+k}, v{b+2*k}, v{b+2*k+1}")
    pend = (task, v)
    if task == 1 and v in (8, 6, 4, 2):
        a(f"s_cmp_eq_u32 s15, {v}")
        a(f"s_cbranch_scc1 .Lp2x{v}")
        exits.append((v, pv(task, v)))
a("s_waitcnt lgkmcnt(0)")
for l in pv(*pend): a(l)
a("s_branch .Lp2done")
for v, m in exits:
    a.label(f".Lp2x{v}")
    a("s_nop 0")
    for l in m: a(l)
    a("s_branch .Lp2done")
a.label(".Lp2done")
a(f"s_lshl_b32 s72, s{S_QB}, 3")
a("s_lshl_b32 s73, s3, 1")
a("s_add_u32 s72, s72, s73")
a("s_mul_i32 s72, s72, 118")
a(f"s_add_u32 s72, s72, s{S_HEAD}")
a("s_lshl_b32 s72, s72, 10")
a(f"s_add_u32 s72, s72, {AF + 86*1024}")
a(f"s_add_u32 s73, s72, {118*1024}")
a("s_waitcnt lgkmcnt(0)")
a(f"v_mov_b32 v{T0}, {CNT_LDS}")
a(f"v_mov_b32 v{T0+1}, 1")
a("s_mov_b64 exec, 1")
a(f"ds_add_u32 v{T0}, v{T0+1}")
a("s_mov_b64 exec, -1")
a("s_nop 7")
for task in (1, 0):
    o = OO + 16*task
    a(f"v_rcp_f32 v{MM}, v{o+8}")
    a("s_nop 0")
    for i in range(8): a(f"v_mul_f32 v{o+i}, v{o+i}, v{MM}")
    for i in range(4): a(f"v_cvt_pk_bf16_f32 v{o+i}, v{o+2*i}, v{o+2*i+1}")
    a(f"buffer_store_dwordx4 {vr(o,4)}, v{LN16}, {S4(WS_)}, s{72+task} offen{SC}")
stamp(6)
EW = 0; EH = 64
a(f"s_mul_i32 s72, s{S_CT}, {2*118}")
a("s_lshl_b32 s73, s3, 3")
a("s_add_u32 s72, s72, s73")
a("s_lshl_b32 s72, s72, 10")
a(f"s_add_u32 s72, s72, {WF + 86*1024}")
a(f"v_add_u32 v{T}, s72, v{LN16}")
a(f"v_add_u32 v{T+1}, {118*1024}, v{T}")
a(f"s_mul_i32 s72, s{S_RT}, {2*118*1024}")
a(f"s_add_u32 s72, s72, {AF}")
for rt in range(2):
    a(f"s_add_u32 s{76+4*rt}, s34, s72")
    a(f"s_addc_u32 s{77+4*rt}, s35, 0")
    a(f"s_mov_b32 s{78+4*rt}, {118*1024}")
    a(f"s_mov_b32 s{79+4*rt}, 0x00020000")
    a(f"s_add_u32 s72, s72, {118*1024}")
a(f"s_lshl_b32 s91, s{S_QB}, 2")
a("s_add_u32 s91, s91, s3")
a("s_lshl_b32 s91, s91, 5")
a(f"s_add_u32 s91, s91, s{S_HEAD}")
a("s_lshl_b32 s91, s91, 2")
a(f"s_add_u32 s91, s91, {F_C}")
a(f"v_mov_b32 v{T+2}, 0")
a(f"v_mov_b32 v{T+3}, s{S_NONCE}")
a("s_waitcnt vmcnt(0)")
a("s_mov_b64 exec, 1")
a(f"buffer_store_dword v{T+3}, v{T+2}, {S4(WS_)}, s91 offen{SC}")
a("s_mov_b64 exec, -1")
tick("pubC")
a(f"s_lshl_b32 s91, s{S_CT}, 7")
a("s_lshl_b32 s72, s3, 3")
a("s_add_u32 s91, s91, s72")
a("s_lshl_b32 s91, s91, 2")
a(f"s_add_u32 s91, s91, {F_W + 86*4}")
a("s_mov_b32 s84, 0xff")
a("s_mov_b32 s85, 0")
a(f"v_lshlrev_b32 v{T+2}, 2, v{L}")
poll_flags(91, 84, T+2, "fwe")
for k in range(8):
    if k == 4:
        a(f"v_add_u32 v{T}, 4096, v{T}")
        a(f"v_add_u32 v{T+1}, 4096, v{T+1}")
    a(f"buffer_load_dwordx4 {vr(EW+8*k,4)}, v{T}, {S4(WS_)}, 0 offen offset:{(k%4)*1024}")
    a(f"buffer_load_dwordx4 {vr(EW+8*k+4,4)}, v{T+1}, {S4(WS_)}, 0 offen offset:{(k%4)*1024}")
a(f"s_lshl_b32 s91, s{S_RT}, 7")
a(f"s_add_u32 s91, s91, {F_B}")
a(f"s_lshl_b32 s92, s{S_RT}, 7")
a(f"s_add_u32 s92, s92, {F_C}")
a("s_mov_b32 s84, -1")
a("s_mov_b32 s85, 0")
a(f"v_lshlrev_b32 v{T+2}, 2, v{L}")
a("s_cmp_lg_u32 s3, 0")
a("s_cbranch_scc1 .Lfc_wait")
a("s_mov_b32 exec_hi, 0")
a(f"s_mov_b32 s74, {SPIN}")
a.label(".Lfc_poll")
a(f"buffer_load_dword v{T+3}, v{T+2}, {S4(WS_)}, s92 offen{SC}")
a(f"buffer_load_dword v{T+4}, v{T+2}, {S4(WS_)}, s91 offen{SC}")
a("s_waitcnt vmcnt(0)")
a(f"v_cmp_ne_u32 vcc, s{S_NONCE}, v{T+3}")
a("s_and_b64 s[72:73], vcc, s[84:85]")
a(f"v_cmp_ne_u32 vcc, s{S_NONCE}, v{T+4}")
a("s_and_b32 s73, vcc_lo, 0x80008000")
a("s_or_b32 s72, s72, s73")
a("s_cbranch_scc0 .Lfc_ok")
a(f"s_sleep {PSLEEP}")
a("s_sub_u32 s74, s74, 1")
a("s_cmp_lg_u32 s74, 0")
a("s_cbranch_scc1 .Lfc_poll")
a.label(".Lfc_ok")
a("s_mov_b64 exec, -1")
lds_release(2, T+3)
a("s_branch .Lfc_go")
a.label(".Lfc_wait")
lds_wait_rel(2, T+3, "fc")
a.label(".Lfc_go")
stamp(7)
a("s_lshl_b32 s72, s3, 13")
a(f"s_add_u32 s72, s72, {86*1024}")
a(f"v_add_u32 v{T}, s72, v{LN16}")
for k in range(8):
    if k == 4: a(f"v_add_u32 v{T}, 4096, v{T}")
    a(f"buffer_load_dwordx4 {vr(EH+8*k,4)}, v{T}, s[76:79], 0 offen offset:{(k%4)*1024}")
    a(f"buffer_load_dwordx4 {vr(EH+8*k+4,4)}, v{T}, s[80:83], 0 offen offset:{(k%4)*1024}")
a(f"v_and_b32 v{T+2}, 31, v{L}")
a(f"v_lshlrev_b32 v{T+2}, 2, v{T+2}")
a(f"s_lshl_b32 s72, s{S_RT}, 8")
a(f"s_add_u32 s72, s72, {GOFF}")
a(f"buffer_load_dword v{GV}, v{T+2}, {S4(WS_)}, s72 offen")
a(f"buffer_load_dword v{GV+1}, v{T+2}, {S4(WS_)}, s72 offen offset:128")
for k in range(8):
    a(f"s_waitcnt vmcnt({2*(7-k)+2})")
    for nt in range(2):
        for rt in range(2):
            acc = vr(DACC+(nt*2+rt)*16, 16)
            a(f"v_mfma_f32_32x32x16_bf16 {acc}, {vr(EW+8*k+4*nt,4)}, {vr(EH+8*k+4*rt,4)}, {'0' if k == 0 else acc}")
a("s_waitcnt vmcnt(0)")
a(f"s_lshl_b32 s90, s3, 14")
a(f"s_add_u32 s90, s90, {EAREA}")
a(f"v_mov_b32 v{T}, {CNT_LDS}")
a(f"s_mov_b32 s74, {SPIN}")
a.label(".Lcnt_poll")
a(f"ds_read_b32 v{T+1}, v{T}")
a("s_waitcnt lgkmcnt(0)")
a(f"v_readfirstlane_b32 s72, v{T+1}")
a("s_cmp_eq_u32 s72, 4")
a("s_cbranch_scc1 .Lreduce")
a("s_sub_u32 s74, s74, 1")
a("s_cmp_lg_u32 s74, 0")
a("s_cbranch_scc1 .Lcnt_poll")

a.label(".Lreduce")
stamp(8)
a(f"v_and_b32 v1, 31, v{L}")
a(f"v_lshrrev_b32 v3, 5, v{L}")
a(f"v_and_b32 v6, 15, v{L}")
a("v_lshlrev_b32 v1, 8, v1")
a("v_add_u32 v1, s90, v1")
a("v_xor_b32 v3, v3, v6")
a("s_nop 4")
for nt in range(2):
    for rt in range(2):
        r = DACC + (nt*2+rt)*16
        for i in range(16): a(f"v_mul_f32 v{r+i}, v{r+i}, v{GV+rt}")
for s in range(8):
    a(f"v_xor_b32 v7, {2*s}, v3")
    a(f"v_lshl_add_u32 v{8+s}, v7, 4, v1")
for nt in range(2):
    for rt in range(2):
        for qq in range(4):
            a(f"ds_write_b128 v{8+nt*4+qq}, {vr(DACC+(nt*2+rt)*16+4*qq,4)} offset:{rt*8192}")
a("s_waitcnt lgkmcnt(0)")
a("s_barrier")
stamp(9)
a(f"v_lshrrev_b32 v1, 3, v{L}")
a("s_lshl_b32 s72, s3, 3")
a("v_add_u32 v1, s72, v1")
a(f"v_and_b32 v3, 7, v{L}")
a("v_and_b32 v6, 15, v1")
a("v_lshlrev_b32 v7, 1, v3")
a("v_xor_b32 v7, v7, v6")
a("v_xor_b32 v6, 1, v7")
a("v_lshlrev_b32 v4, 8, v1")
a("v_lshl_add_u32 v7, v7, 4, v4")
a("v_lshl_add_u32 v6, v6, 4, v4")
a(f"v_add_u32 v4, {EAREA}, v7")
a(f"v_add_u32 v5, {EAREA}, v6")
a(f"v_add_u32 v2, {DAREA[2]}, v7")
a(f"v_add_u32 v0, {DAREA[2]}, v6")
for w in range(4):
    a(f"ds_read_b128 {vr(8+w*8,4)}, v4 offset:{w*ESZ}")
    a(f"ds_read_b128 {vr(12+w*8,4)}, v5 offset:{w*ESZ}")
for w in range(4):
    a(f"ds_read_b128 {vr(40+w*8,4)}, v{7 if w < 2 else 2} offset:{(w&1)*24576}")
    a(f"ds_read_b128 {vr(44+w*8,4)}, v{6 if w < 2 else 0} offset:{(w&1)*24576}")
a("s_waitcnt lgkmcnt(0)")
for step in (32, 16, 8):
    for i in range(step):
        a(f"v_add_f32 v{8+i}, v{8+i}, v{8+step+i}")
for i in range(4): a(f"v_cvt_pk_bf16_f32 v{8+i}, v{8+2*i}, v{8+2*i+1}")
a(f"s_lshl_b32 s72, s{S_RT}, 16")
a(f"s_lshl_b32 s73, s{S_CT}, 7")
a("s_add_u32 s72, s72, s73")
a("v_lshlrev_b32 v1, 10, v1")
a("v_lshl_add_u32 v1, v3, 4, v1")
a(f"buffer_store_dwordx4 v[8:11], v1, {S4(OUT_)}, s72 offen")
if DIAG:
    a("s_cmp_lg_u32 s3, 2")
    a("s_cbranch_scc1 .Lend")
    a("s_waitcnt vmcnt(0)")
    a("s_memrealtime s[72:73]")
    a("s_waitcnt lgkmcnt(0)")
    a("v_mov_b32 v1, 12")
    a("v_mov_b32 v2, s72")
    a("s_mov_b64 exec, 1")
    a(f"buffer_atomic_umax v2, v1, {S4(DBG_)}, 0 offen{SC}")
if PROF:
    a("s_waitcnt vmcnt(0)")
    stamp(10)
    a("s_memtime s[98:99]")
    a("s_waitcnt lgkmcnt(0)")
    a("v_writelane_b32 v255, s98, 13")
    a("s_lshl_b32 s72, s2, 3")
    a("s_add_u32 s72, s72, s3")
    a("s_lshl_b32 s72, s72, 8")
    a(f"s_add_u32 s72, s72, {PROFOFF}")
    a(f"v_lshlrev_b32 v1, 2, v{L}")
    a(f"buffer_store_dword v255, v1, {S4(WS_)}, s72 offen")
    json.dump(ticks, open("ticks.json", "w"))
a.label(".Lend")

KN = "gated_mix__sliding_block__dense_activation_relu__prompt_kernel"
hdr = open("gated_mix__sliding_block__dense_activation_relu__prompt.s.ref").read().split("; Override launch")[0]
out = hdr + "; @launch grid=(256,1,1) block=(512,1,1) lds=163840\n"
out += '.amdgcn_target "amdgcn-amd-amdhsa--gfx950"\n'
body = a.text()
import subprocess, re
tmp = out + kernel_wrap(KN, body.replace("CODE_KB", "20"), 256, 100)
open("_t.s", "w").write(tmp)
subprocess.run(["clang", "-x", "assembler", "-target", "amdgcn-amd-amdhsa", "-mcpu=gfx950", "-c", "_t.s", "-o", "_t.o"], check=True)
h = subprocess.run(["llvm-objdump", "-h", "_t.o"], capture_output=True, text=True).stdout
sz = int(re.search(r"\.text\s+([0-9a-f]+)", h).group(1), 16)
print("code bytes", sz)
out += kernel_wrap(KN, body.replace("CODE_KB", str(min(32, sz // 1024))), 256, 100)
open(sys.argv[1], "w").write(out)
```

```python
import sys, os, json
from asmlib import *

QF, KF, VF = 0x000000, 0x200000, 0x400000
AF = 0x600000
WF = 0xE00000
GOFF = 0x1000000
FLG = 0x1010000
F_A, F_AL, F_B, F_C, F_W = FLG, FLG+0x1000, FLG+0x2000, FLG+0x3000, FLG+0x5000
WSBYTES = 0x1600000
CSCALE = 0x3EB8AA3B
NINF = 0xFF800000
PROF = len(sys.argv) > 2 and sys.argv[2] == "prof"
PROFOFF = 0x1080000
SC = " sc1"
SPIN = 1 << 14
PSLEEP = int(os.environ.get("PSLEEP", "2"))
WFP = int(os.environ.get("WFP", "3"))
CPF = int(os.environ.get("CPF", "1"))
DIAG = int(os.environ.get("DIAG", "0"))
GMASK = int(os.environ.get("GMASK", "3"))
NONP = int(os.environ.get("NONP", "4"))
B23_T = int(os.environ.get("B23_T", "14"))
W2WAIT = int(os.environ.get("W2WAIT", "0"))
FSLEEP = int(os.environ.get("FSLEEP", "1"))
KNAME = "gated_mix__sliding_block__dense_activation_relu__prompt_kernel"
NP1 = int(os.environ.get("NP1", "3"))
NP2 = int(os.environ.get("NP2", "1"))
PFW1 = int(os.environ.get("PFW1", "0"))
LOCAL = 0
PUBA_T = int(os.environ.get("PUBA_T", "8"))
K2F, V2F = 0x1200000, 0x1400000

a = Asm()
def stamp(i):
    if PROF:
        a("s_memrealtime s[98:99]")
        a("s_waitcnt lgkmcnt(0)")
        a(f"v_writelane_b32 v255, s98, {i}")
ticks = {}
def tick(name):
    if PROF:
        if name not in ticks: ticks[name] = 16 + len(ticks)
        assert ticks[name] < 64
        stamp(ticks[name])

SLOT = 28672
R1 = 114688
BH = [R1, R1+12288, R1+24576, 0, 12288, SLOT, SLOT+12288, 2*SLOT]
BOUNCE = R1 + 36864
NONCE_LDS = BOUNCE + 8192
STG = 69632
EAREA = 49152; ESZ = 16384
DAREA = [0, 24576, 114688, 139264]
NSL = 10
CNT_LDS = NONCE_LDS + 4; REL_LDS = NONCE_LDS + 8

S_XCD, S_IDX, S_RB, S_J, S_HEAD, S_QB, S_RT, S_CT, S_ROT, S_NONCE = 4, 5, 6, 7, 8, 9, 10, 11, 12, 13
X_, WQ_, WS_, W1_, WT_, OUT_, DBG_, GT_ = 36, 40, 44, 48, 52, 60, 64, 68
def S4(b): return f"s[{b}:{b+3}]"

class Q:
    def __init__(self, kind, cap): self.q = []; self.kind = kind; self.cap = cap
    def issue(self, tag, n=1): self.q.extend([tag]*n)
    def wait(self, *tags):
        idx = [i for i, t in enumerate(self.q) if t in tags]
        if not idx: return
        n = len(self.q) - 1 - max(idx)
        a(f"s_waitcnt {self.kind}({min(n, self.cap)})")
        self.q = self.q[max(idx)+1:]
    def drain(self): self.q = []

def poll_flags(off_sreg, mask, vtmp, name, pre=False):
    a(f"s_mov_b32 s74, {SPIN}")
    a.label(f".L{name}_poll")
    a(f"buffer_load_dword v{vtmp+1}, v{vtmp}, {S4(WS_)}, s{off_sreg} offen{SC}")
    a("s_waitcnt vmcnt(0)")
    a(f"v_cmp_ne_u32 vcc, s{S_NONCE}, v{vtmp+1}")
    a(f"s_and_b64 s[72:73], vcc, s[{mask}:{mask+1}]")
    a(f"s_cbranch_scc0 .L{name}_ok")
    a(f"s_sleep {PSLEEP}")
    a("s_sub_u32 s74, s74, 1")
    a("s_cmp_lg_u32 s74, 0")
    a(f"s_cbranch_scc1 .L{name}_poll")
    a.label(f".L{name}_ok")

def publish(off_sreg, vtmp, dual=False):
    l = a.newlabel("pub")
    a("s_cmp_lg_u32 s3, 0")
    a(f"s_cbranch_scc1 {l}")
    a("s_mov_b64 exec, 1")
    a(f"v_mov_b32 v{vtmp}, 0")
    a(f"v_mov_b32 v{vtmp+1}, s{S_NONCE}")
    if dual: a(f"buffer_store_dword v{vtmp+1}, v{vtmp}, {S4(WS_)}, s{off_sreg} offen offset:{0x2000 & 0xfff | 0x800}")
    a(f"buffer_store_dword v{vtmp+1}, v{vtmp}, {S4(WS_)}, s{off_sreg} offen{SC}")
    a("s_mov_b64 exec, -1")
    a.label(l)

def wpublish(off_sreg, vtmp, dual=False):
    a("s_mov_b64 exec, 1")
    a(f"v_mov_b32 v{vtmp}, 0")
    a(f"v_mov_b32 v{vtmp+1}, s{S_NONCE}")
    if dual:
        a(f"s_add_u32 s72, s{off_sreg}, 0x1000")
        a(f"buffer_store_dword v{vtmp+1}, v{vtmp}, {S4(WS_)}, s72 offen")
    a(f"buffer_store_dword v{vtmp+1}, v{vtmp}, {S4(WS_)}, s{off_sreg} offen{SC}")
    a("s_mov_b64 exec, -1")

PSLEEP = int(os.environ.get("PSLEEP", "2"))
def lds_release(i, vt):
    a(f"v_mov_b32 v{vt}, {REL_LDS + 4*i}")
    a(f"v_mov_b32 v{vt+1}, 1")
    a(f"ds_write_b32 v{vt}, v{vt+1}")
def lds_add(i, vt):
    a(f"v_mov_b32 v{vt}, {REL_LDS + 4*i}")
    a(f"v_mov_b32 v{vt+1}, 1")
    a("s_mov_b64 exec, 1")
    a(f"ds_add_u32 v{vt}, v{vt+1}")
def lds_wait_cnt(i, n, vt, name):
    a(f"v_mov_b32 v{vt}, {REL_LDS + 4*i}")
    a(f"s_mov_b32 s74, {SPIN*16}")
    a.label(f".L{name}_cw")
    a(f"ds_read_b32 v{vt+1}, v{vt}")
    a("s_waitcnt lgkmcnt(0)")
    a(f"v_readfirstlane_b32 s72, v{vt+1}")
    a(f"s_cmp_eq_u32 s72, {n}")
    a(f"s_cbranch_scc1 .L{name}_cok")
    a("s_sleep 1")
    a("s_sub_u32 s74, s74, 1")
    a("s_cmp_lg_u32 s74, 0")
    a(f"s_cbranch_scc1 .L{name}_cw")
    a.label(f".L{name}_cok")
def lds_wait_rel(i, vt, name):
    a(f"v_mov_b32 v{vt}, {REL_LDS + 4*i}")
    a(f"s_mov_b32 s74, {SPIN*16}")
    a.label(f".L{name}_lw")
    a(f"ds_read_b32 v{vt+1}, v{vt}")
    a("s_waitcnt lgkmcnt(0)")
    a(f"v_readfirstlane_b32 s72, v{vt+1}")
    a("s_cmp_lg_u32 s72, 0")
    a(f"s_cbranch_scc1 .L{name}_lok")
    a("s_sleep 1")
    a("s_sub_u32 s74, s74, 1")
    a("s_cmp_lg_u32 s74, 0")
    a(f"s_cbranch_scc1 .L{name}_lw")
    a.label(f".L{name}_lok")

def inter(m, r):
    out = []; per = -(-len(r) // len(m)) if r else 0; ri = 0
    for mm in m:
        out.append(mm)
        for _ in range(per):
            if ri < len(r): out.append(r[ri]); ri += 1
    return out

a("s_cmp_ge_u32 s2, 256")
a("s_cbranch_scc1 .Lend")
a("s_load_dwordx16 s[16:31], s[0:1], 0")
a("s_load_dwordx4 s[32:35], s[0:1], 64")
if PROF: a("v_mov_b32 v255, 0")
stamp(0)
if PROF:
    a("s_memtime s[98:99]")
    a("s_waitcnt lgkmcnt(0)")
    a("v_writelane_b32 v255, s98, 12")
a("v_lshrrev_b32 v1, 6, v0")
a("v_and_b32 v0, 63, v0")
a("v_readfirstlane_b32 s3, v1")
a(f"s_and_b32 s{S_XCD}, s2, 7")
a(f"s_lshr_b32 s{S_IDX}, s2, 3")
a(f"s_and_b32 s72, s{S_XCD}, 1")
a(f"s_lshr_b32 s73, s{S_XCD}, 1")
a(f"s_and_b32 s74, s{S_IDX}, 7")
a(f"s_lshr_b32 s75, s{S_IDX}, 3")
a(f"s_lshl_b32 s{S_RB}, s72, 3")
a(f"s_add_u32 s{S_RB}, s{S_RB}, s74")
a(f"s_lshl_b32 s{S_J}, s73, 2")
a(f"s_add_u32 s{S_J}, s{S_J}, s75")
a(f"s_lshl_b32 s{S_ROT}, s75, 1")
a(f"s_add_u32 s{S_ROT}, s{S_ROT}, s74")
a(f"s_and_b32 s{S_ROT}, s{S_ROT}, 7")
a(f"s_lshl_b32 s{S_HEAD}, s73, 3")
a(f"s_add_u32 s{S_HEAD}, s{S_HEAD}, s74")
a(f"s_lshl_b32 s{S_QB}, s72, 2")
a(f"s_add_u32 s{S_QB}, s{S_QB}, s75")
a(f"s_lshl_b32 s{S_RT}, s{S_XCD}, 2")
a(f"s_add_u32 s{S_RT}, s{S_RT}, s75")
a(f"s_mov_b32 s{S_CT}, s74")
a(f"s_mov_b32 s{S_NONCE}, 0")
a("s_and_b32 s14, s3, 3")
a(f"s_lshr_b32 s97, s{S_IDX}, 3")
a(f"s_lshl_b32 s93, s{S_RB}, 2")
a("s_add_u32 s93, s93, s14")
a("s_cmp_lt_u32 s3, 4")
a("s_cbranch_scc1 .Lcompute")

VX = 240; VWA = 244; VWB = 245; VWB2 = 246; LN16 = 247; T = 248; L = 254
a(f"v_mov_b32 v{L}, v0")
a("v_lshrrev_b32 v1, 3, v0")
a("v_and_b32 v2, 7, v0")
a("v_lshrrev_b32 v3, 4, v0")
a(f"s_lshl_b32 s72, s{S_RB}, 7")
a("s_lshl_b32 s73, s14, 5")
a("s_add_u32 s72, s72, s73")
for j in range(4):
    a(f"v_add_u32 v4, {4*(j&1)}, v3")
    a("v_xor_b32 v4, v4, v2")
    a("v_lshlrev_b32 v4, 4, v4")
    a(f"v_add_u32 v5, {8*j}, v1")
    a("v_add_u32 v5, s72, v5")
    a(f"v_lshl_add_u32 v{VX+j}, v5, 10, v4")
a("v_lshrrev_b32 v1, 2, v0")
a("s_lshl_b32 s72, s14, 4")
a("v_add_u32 v6, s72, v1")
a("v_and_b32 v2, 3, v0")
a("v_lshlrev_b32 v2, 4, v2")
a(f"s_lshl_b32 s72, s{S_J}, 6")
a(f"v_mul_u32_u24 v{VWA}, 3072, v6")
a(f"v_add3_u32 v{VWA}, v{VWA}, v2, s72")
a(f"s_lshl_b32 s78, s{S_ROT}, 7")
a(f"s_mul_i32 s79, s{S_ROT}, {64*3072}")
a(f"s_mul_i32 s80, s{S_ROT}, {64*2752}")
a("s_lshl_b32 s81, s14, 12")
a("s_lshl_b32 s82, s14, 10")
a("s_waitcnt lgkmcnt(0)")
srd(a, X_, 16, 2048*1024)
srd(a, WQ_, 18, 512*3072)
vq = Q("vmcnt", 63)
def issue_A(p):
    slot = p % 4
    for j in range(4):
        a(f"s_add_u32 m0, s81, {slot*SLOT + j*1024}")
        a("s_nop 0")
        a(f"buffer_load_dwordx4 v{VX+j}, {S4(X_)}, s78 offen lds")
    for b in range(3):
        a(f"s_add_u32 m0, s82, {slot*SLOT + 16384 + b*4096 - b*1024}")
        a("s_nop 0")
        a(f"buffer_load_dwordx4 v{VWA}, {S4(WQ_)}, s79 offen offset:{b*1024} lds")
    a("s_add_u32 s78, s78, 128")
    a(f"s_add_u32 s79, s79, {64*3072}")
    a("s_cmp_eq_u32 s78, 1024")
    a("s_cselect_b32 s78, 0, s78")
    a("s_cselect_b32 s79, 0, s79")
    vq.issue(("A", p), 7)
def issue_Bhalf(h):
    for b in range(3):
        a(f"s_add_u32 m0, s82, {BH[h] + b*4096 - b*64}")
        a("s_nop 0")
        a(f"buffer_load_dwordx4 v{VWB if b == 0 else VWB2}, {S4(W1_)}, s80 offen offset:{b*64} lds")
    a(f"s_add_u32 s80, s80, {64*2752}")
    a(f"s_cmp_eq_u32 s80, {512*2752}")
    a("s_cselect_b32 s80, 0, s80")
    vq.issue(("B", h), 3)
AW1 = int(os.environ.get("AW1", "0"))
SCH = os.environ.get("SCH", "c")
issue_A(0)
issue_A(1)
if SCH == "a": issue_A(2)
srd(a, WS_, 34, WSBYTES)
srd(a, W1_, 24, 512*2752)
srd(a, OUT_, 30, 2048*1024)
a(f"s_mul_i32 s72, s{S_J}, 192")
a(f"v_mul_u32_u24 v{VWB}, 2752, v6")
a(f"v_add3_u32 v{VWB}, v{VWB}, v2, s72")
a(f"v_mov_b32 v{VWB2}, v{VWB}")
a(f"s_cmp_lt_u32 s{S_J}, 14")
a("s_cbranch_scc1 .Lwbok")
a(f"v_mov_b32 v{VWB2}, 0x40000000")
a(f"s_cmp_lt_u32 s{S_J}, 15")
a("s_cbranch_scc1 .Lwbok")
a(f"v_mov_b32 v{VWB}, 0x40000000")
a.label(".Lwbok")
a(f"v_lshlrev_b32 v{LN16}, 4, v0")
srd(a, DBG_, 32, 256)
a(f"s_lshl_b32 s83, s{S_IDX}, 2")
a("s_add_u32 s83, s83, s14")
a("s_cmp_lt_u32 s83, 86")
a(f"s_cselect_b32 s{WT_}, s26, s20")
a(f"s_cselect_b32 s{WT_+1}, s27, s21")
a(f"s_mov_b32 s{WT_+2}, {1376*1024}")
a(f"s_cselect_b32 s{WT_+2}, s{WT_+2}, {512*1024}")
a(f"s_mov_b32 s{WT_+3}, 0x00020000")
a("s_cselect_b32 s84, 0, 86")
a("s_sub_u32 s84, s83, s84")
a("s_lshl_b32 s84, s84, 14")
a(f"s_lshl_b32 s85, s{S_XCD}, 7")
a("s_add_u32 s84, s84, s85")
a("v_lshlrev_b32 v8, 10, v1")
a("v_add_u32 v8, v8, v2")
a("s_lshl_b32 s85, s14, 11")
a(f"s_add_u32 s85, s85, {BOUNCE}")
a("v_lshrrev_b32 v9, 5, v0")
a("v_lshlrev_b32 v9, 8, v9")
a("v_bfe_u32 v4, v0, 2, 2")
a("v_lshl_add_u32 v9, v4, 6, v9")
a("v_bfe_u32 v4, v0, 4, 1")
a("v_lshl_add_u32 v9, v4, 5, v9")
a("v_and_b32 v4, 3, v0")
a("v_lshl_add_u32 v9, v4, 3, v9")
a("v_add_u32 v9, s85, v9")
a("v_mov_b32 v10, 0")
BSCHED = {4: [0, 1, 2], 5: [3, 4], 6: [5, 6], 7: [7]}
if SCH == "b":
    issue_Bhalf(0)
    BSCHED = {3: [1], 4: [2], 5: [3, 4], 6: [5, 6], 7: [7]}
if SCH == "c":
    BSCHED = {0: [0], 4: [1, 2], 5: [3, 4], 6: [5, 6], 7: [7]}
if SCH == "d":
    BSCHED = {1: [0], 5: [1, 2, 3], 6: [4, 5], 7: [6, 7]}
if SCH == "e":
    BSCHED = {2: [0], 5: [1, 2], 6: [3, 4, 5], 7: [6, 7]}
if SCH == "f":
    BSCHED = {1: [0], 3: [1], 4: [2], 5: [3, 4], 6: [5, 6], 7: [7]}
for p in range(8):
    vq.wait(("A", p))
    a("s_barrier")
    if p == 0: stamp(1)
    if p == 0 and SCH != "a": issue_A(2)
    if p + 3 < 8: issue_A(p+3)
    if p == NONP:
        a(f"buffer_load_dword v11, v10, {S4(DBG_)}, 0 offen{SC}")
        vq.issue("nonce", 1)
    for h in BSCHED.get(p, []): issue_Bhalf(h)
    if p == WFP:
        a("s_mov_b32 m0, s85")
        a("s_nop 0")
        a(f"buffer_load_dwordx4 v8, {S4(WT_)}, s84 offen lds")
        a("s_add_u32 m0, s85, 960")
        a("s_nop 0")
        a(f"buffer_load_dwordx4 v8, {S4(WT_)}, s84 offen offset:64 lds")
        vq.issue("wfld", 2)
vq.wait("nonce")
a(f"v_readfirstlane_b32 s{S_NONCE}, v11")
a(f"s_cmp_lg_u32 s{S_NONCE}, 0")
a("s_cbranch_scc1 .Lnonce_ok")
a(f"s_mov_b32 s74, {SPIN}")
a.label(".Lnonce_poll")
a("s_sleep 1")
a(f"buffer_load_dword v11, v10, {S4(DBG_)}, 0 offen{SC}")
a("s_waitcnt vmcnt(0)")
a(f"v_readfirstlane_b32 s{S_NONCE}, v11")
a(f"s_cmp_lg_u32 s{S_NONCE}, 0")
a("s_cbranch_scc1 .Lnonce_ok")
a("s_sub_u32 s74, s74, 1")
a("s_cmp_lg_u32 s74, 0")
a("s_cbranch_scc1 .Lnonce_poll")
a.label(".Lnonce_ok")
a(f"v_mov_b32 v4, {NONCE_LDS}")
a("ds_write_b32 v4, v11")
for i_ in range(1, 8): a(f"ds_write_b32 v4, v10 offset:{4*i_}")
a("s_waitcnt lgkmcnt(0)")
stamp(2)
a(f"v_lshlrev_b32 v{T+2}, 2, v{L}")
vq.wait("wfld")
for i in range(4): a(f"ds_read_b64_tr_b16 v[{12+2*i}:{13+2*i}], v9 offset:{512*i}")
a(f"s_mul_i32 s84, s{S_XCD}, {2*118}")
a("s_add_u32 s84, s84, s83")
a("s_lshl_b32 s84, s84, 10")
a(f"s_add_u32 s84, s84, {WF}")
a("s_cmp_lt_u32 s83, 118")
a("s_cselect_b32 s84, s84, 0x40000000")
a(f"s_add_u32 s85, s84, {118*1024}")
a("s_waitcnt lgkmcnt(0)")
a(f"buffer_store_dwordx4 v[12:15], v{LN16}, {S4(WS_)}, s84 offen{SC}")
a(f"buffer_store_dwordx4 v[16:19], v{LN16}, {S4(WS_)}, s85 offen{SC}")
a(f"s_lshl_b32 s90, s{S_XCD}, 7")
a("s_add_u32 s90, s90, s83")
a("s_lshl_b32 s90, s90, 2")
a(f"s_add_u32 s90, s90, {F_W}")
vq.issue("wfst", 2)
vq.wait(("B", 3))
a("s_barrier")
vq.wait(("B", 7))
a("s_barrier")
stamp(3)
a("s_mov_b32 s85, 0")
a("s_waitcnt vmcnt(0)")
wpublish(90, T+3)
a("s_cmp_lg_u32 s3, 4")
a("s_cbranch_scc1 .Lfa_wait")
a(f"s_lshr_b32 s76, s{S_HEAD}, 1")
a("s_lshl_b32 s76, s76, 8")
a(f"s_lshl_b32 s77, s{S_QB}, 5")
a("s_add_u32 s76, s76, s77")
a(f"s_add_u32 s76, s76, {F_A - 32}")
a("s_add_u32 s77, s76, 0x1000")
a("s_mov_b32 s84, 0xffff")
a(f"s_cmp_eq_u32 s{S_QB}, 0")
a("s_cselect_b32 s84, 0xff00, s84")
a(f"s_cmp_eq_u32 s{S_QB}, 4")
a(f"s_cselect_b32 s75, 0, {GMASK}")
a(f"s_mov_b32 s74, {SPIN}")
a("s_mov_b64 exec, 0xffff")
a.label(".Lfa_poll")
a(f"buffer_load_dword v{T+3}, v{T+2}, {S4(WS_)}, s77 offen{SC}")
a("s_waitcnt vmcnt(0)")
a(f"v_cmp_ne_u32 vcc, s{S_NONCE}, v{T+3}")
a("s_and_b64 s[84:85], vcc, s[84:85]")
a("s_cbranch_scc0 .Lfa_ok")
a("s_and_b32 s72, s74, s75")
a("s_cmp_lg_u32 s72, 0")
a("s_cbranch_scc1 .Lfa_skipg")
a(f"buffer_load_dword v{T+4}, v{T+2}, {S4(WS_)}, s76 offen{SC}")
a("s_waitcnt vmcnt(0)")
a(f"v_cmp_ne_u32 vcc, s{S_NONCE}, v{T+4}")
a("s_and_b64 s[84:85], vcc, s[84:85]")
a("s_cbranch_scc0 .Lfa_ok")
a.label(".Lfa_skipg")
a(f"s_sleep {FSLEEP}")
a("s_sub_u32 s74, s74, 1")
a("s_cmp_lg_u32 s74, 0")
a("s_cbranch_scc1 .Lfa_poll")
a.label(".Lfa_ok")
a("s_mov_b64 exec, -1")
lds_release(0, T+3)
a("s_branch .Lfa_go")
a.label(".Lfa_wait")
lds_wait_rel(0, T+3, "fa")
a.label(".Lfa_go")
stamp(11)
a(f"s_lshl_b32 s72, s{S_HEAD}, 6")
a(f"s_lshl_b32 s73, s{S_QB}, 3")
a("s_add_u32 s72, s72, s73")
a("s_lshl_b32 s72, s72, 10")
a("s_lshl_b32 s73, s14, 11")
a("s_add_u32 s73, s73, s72")
a("s_add_u32 s74, s72, s81")
a(f"s_add_u32 s74, s74, {KF - 8192}")
a(f"s_lshl_b32 s75, s{S_QB}, 2")
a("s_add_u32 s75, s75, s14")
a("s_cmp_lt_u32 s75, 2")
a("s_cselect_b32 s74, 0x40000000, s74")
a(f"s_add_u32 s75, s74, {VF - KF}")
a(f"s_add_u32 m0, s81, {STG}")
a("s_nop 0")
for i in range(4): a(f"buffer_load_dwordx4 v{LN16}, {S4(WS_)}, s74 offen offset:{i*1024} lds")
a("s_lshl_b32 s74, s14, 11")
a(f"s_add_u32 m0, s74, {STG + 32768}")
a("s_nop 0")
for i in range(2): a(f"buffer_load_dwordx4 v{LN16}, {S4(WS_)}, s73 offen offset:{i*1024} lds")
a(f"s_add_u32 m0, s81, {STG + 16384}")
a("s_nop 0")
for i in range(4): a(f"buffer_load_dwordx4 v{LN16}, {S4(WS_)}, s75 offen offset:{i*1024} lds")
vq.drain()
vq.issue("stg", 10)
a("s_mul_i32 s86, s14, 22")
a("s_cmp_eq_u32 s14, 3")
a("s_cselect_b32 s86, 65, s86")
a("s_add_u32 s87, s86, 22")
a("s_cmp_ge_u32 s14, 2")
a("s_cselect_b32 s88, 1, 0")
a("s_sub_u32 s87, s87, s88")
a(f"s_mul_i32 s92, s{S_CT}, 3")
a("s_mul_i32 s72, s97, 5")
a("s_add_u32 s92, s92, s72")
a("s_cmp_ge_u32 s92, 22")
a("s_cselect_b32 s72, 22, 0")
a("s_sub_u32 s92, s92, s72")
a("s_lshl_b32 s92, s92, 10")
a("s_mov_b32 s93, s92")
a(f"s_mul_i32 s72, s{S_CT}, {2*118}")
a("s_add_u32 s72, s72, s86")
a("s_lshl_b32 s72, s72, 10")
a(f"s_add_u32 s72, s72, {WF}")
a(f"v_add_u32 v{T}, s72, v{LN16}")
a(f"v_add_u32 v{T+1}, {118*1024}, v{T}")
a(f"s_mul_i32 s72, s{S_RT}, {2*118*1024}")
a(f"s_add_u32 s72, s72, {AF}")
a("s_lshl_b32 s73, s87, 10")
for rt in range(2):
    a(f"s_add_u32 s{76+4*rt}, s34, s72")
    a(f"s_addc_u32 s{77+4*rt}, s35, 0")
    a(f"s_mov_b32 s{78+4*rt}, s73")
    a(f"s_mov_b32 s{79+4*rt}, 0x00020000")
    a(f"s_add_u32 s72, s72, {118*1024}")
a(f"s_mul_i32 s89, s14, 24576")
a("s_cmp_ge_u32 s14, 2")
a(f"s_cselect_b32 s72, {114688 - 49152}, 0")
a("s_add_u32 s89, s89, s72")
a(f"s_lshl_b32 s91, s{S_CT}, 7")
a("s_add_u32 s91, s91, s86")
a("s_lshl_b32 s91, s91, 2")
a(f"s_add_u32 s91, s91, {F_W}")
a("s_mov_b32 s84, 0x3fffff")
a("s_mov_b32 s85, 0")
a("s_mov_b32 exec_hi, 0")
a(f"buffer_load_dword v{T+3}, v{T+2}, {S4(WS_)}, s91 offen{SC}")
a("s_waitcnt vmcnt(1)")
lds_add(3, T+4)
a("s_mov_b32 exec_lo, -1")
stamp(4)
a("s_waitcnt vmcnt(0)")
a(f"v_cmp_ne_u32 vcc, s{S_NONCE}, v{T+3}")
a("s_and_b64 s[72:73], vcc, s[84:85]")
a("s_cbranch_scc0 .Lfw_ok")
poll_flags(91, 84, T+2, "fw")
a("s_mov_b64 exec, -1")
vq.drain()
if W2WAIT: lds_wait_cnt(3, 4, T+3, "sw")
tick("fwOK")
W2R = 0; DACC = 160; HB = 224; NPRE = 20
def w2load(k):
    f = W2R + (k % NPRE)*8
    a(f"buffer_load_dwordx4 {vr(f,4)}, v{T}, {S4(WS_)}, s92 offen")
    a(f"buffer_load_dwordx4 {vr(f+4,4)}, v{T+1}, {S4(WS_)}, s92 offen")
    a("s_add_u32 s92, s92, 1024")
    a(f"s_cmp_eq_u32 s92, {22*1024}")
    a("s_cselect_b32 s92, 0, s92")
    vq.issue(("w", k), 2)
for k in range(NPRE): w2load(k)
tick("w2iss")
a(f"s_lshl_b32 s91, s{S_RT}, 7")
a(f"s_add_u32 s91, s91, {F_B}")
a("s_mov_b32 s84, -1")
a("s_cmp_lg_u32 s3, 4")
a("s_cbranch_scc1 .Lfb_wait")
a("s_mov_b32 exec_hi, 0")
poll_flags(91, 84, T+2, "fb")
a("s_mov_b64 exec, -1")
lds_wait_cnt(4, 4, T+3, "bd")
lds_release(1, T+3)
a("s_branch .Lfb_go")
a.label(".Lfb_wait")
lds_wait_rel(1, T+3, "fb")
a.label(".Lfb_go")
stamp(7)
a("s_lshl_b32 s72, s86, 10")
a(f"v_add_u32 v{T+4}, s72, v{LN16}")
a(f"v_add_u32 v{T+5}, s89, v{LN16}")
def hdma(k):
    sl = k % NSL
    for rt in range(2):
        a(f"s_add_u32 m0, s89, {sl*2048 + rt*1024}")
        a("s_nop 0")
        a(f"buffer_load_dwordx4 v{T+4}, s[{76+4*rt}:{79+4*rt}], s93 offen lds")
    a("s_add_u32 s93, s93, 1024")
    a(f"s_cmp_eq_u32 s93, {22*1024}")
    a("s_cselect_b32 s93, 0, s93")
    vq.issue(("h", k), 2)
def hreads(k):
    return [f"ds_read_b128 {vr(HB+(k&1)*8+rt*4,4)}, v{T+5} offset:{(k % NSL)*2048 + rt*1024}" for rt in range(2)]
HW1 = int(os.environ.get("HW1", "0"))
for k in range(NSL):
    hdma(k)
    if k == HW1-1: vq.wait(("h", k))
GV = VX
a(f"v_and_b32 v{T+2}, 31, v{L}")
a(f"v_lshlrev_b32 v{T+2}, 2, v{T+2}")
a(f"s_lshl_b32 s72, s{S_RT}, 8")
a(f"s_add_u32 s72, s72, {GOFF}")
a(f"buffer_load_dword v{GV}, v{T+2}, {S4(WS_)}, s72 offen")
a(f"buffer_load_dword v{GV+1}, v{T+2}, {S4(WS_)}, s72 offen offset:128")
vq.issue("g", 2)
vq.wait(("h", 0))
for l in hreads(0): a(l)
PUBC_AT = int(os.environ.get("PUBC_AT", "0"))
for k in range(22):
    if k < 21: vq.wait(("h", k+1), ("w", k))
    else: vq.wait(("w", k))
    a("s_waitcnt lgkmcnt(0)")
    if k in (0, 1, 4, 8, 12, 16, 20): tick(f"D{k}")
    f = W2R + (k % NPRE)*8
    m = []
    for nt in range(2):
        for rt in range(2):
            acc = vr(DACC+(nt*2+rt)*16, 16)
            m.append(f"v_mfma_f32_32x32x16_bf16 {acc}, {vr(f+4*nt,4)}, {vr(HB+(k&1)*8+4*rt,4)}, {'0' if k == 0 else acc}")
    for l in inter(m, hreads(k+1) if k < 21 else []): a(l)
    if k + NSL < 22: hdma(k + NSL)
    if k + NPRE < 22: w2load(k + NPRE)
a("s_waitcnt vmcnt(0)")
for i in range(2):
    a(f"v_sub_f32 v{GV+i}, 1.0, v{GV+i}")
    a(f"v_cvt_pk_bf16_f32 v{GV+i}, v{GV+i}, v{GV+i}")
    a(f"v_lshlrev_b32 v{GV+i}, 16, v{GV+i}")
a("s_mov_b32 s90, s89")
a("s_branch .Lreduce")

a.label(".Lcompute")
XR = 0; ACC = 128; WFR = 176; XA = 212; XA2 = 216; WA = 232; TMP = 224; WFA = 235; WFD = 236
a(f"v_mov_b32 v{L}, v0")
a(f"v_and_b32 v{TMP}, 31, v{L}")
a(f"v_lshrrev_b32 v{TMP+1}, 5, v{L}")
a(f"v_bfe_u32 v{TMP+2}, v{L}, 1, 3")
a("s_lshl_b32 s72, s3, 12")
for sp in range(4):
    a(f"v_add_u32 v{TMP+3}, {2*sp}, v{TMP+1}")
    a(f"v_xor_b32 v{TMP+3}, v{TMP+3}, v{TMP+2}")
    a(f"v_lshlrev_b32 v{TMP+3}, 4, v{TMP+3}")
    a(f"v_lshl_add_u32 v{TMP+3}, v{TMP}, 7, v{TMP+3}")
    a(f"v_add_u32 v{XA+sp}, s72, v{TMP+3}")
    a(f"v_add_u32 v{XA2+sp}, {2*SLOT}, v{XA+sp}")
a(f"v_lshlrev_b32 v{WA}, 9, v{TMP+1}")
a(f"v_bfe_u32 v{TMP+3}, v{L}, 2, 2")
a(f"v_lshl_add_u32 v{WA}, v{TMP+3}, 6, v{WA}")
a(f"v_bfe_u32 v{TMP+3}, v{L}, 4, 1")
a(f"v_lshl_add_u32 v{WA}, v{TMP+3}, 5, v{WA}")
a(f"v_and_b32 v{TMP+3}, 3, v{L}")
a(f"v_lshl_add_u32 v{WA}, v{TMP+3}, 3, v{WA}")
a(f"v_add_u32 v{WA+1}, 0x10000, v{WA}")
a(f"v_add_u32 v{WA+2}, 0x20000, v{WA}")
a(f"v_lshlrev_b32 v{LN16}, 4, v{L}")
a("s_waitcnt lgkmcnt(0)")
srd(a, WS_, 34, WSBYTES)
srd(a, OUT_, 30, 2048*1024)
srd(a, DBG_, 32, 256)
srd(a, GT_, 28, 1024)
a("s_or_b32 s72, s2, s3")
a("s_cmp_lg_u32 s72, 0")
a("s_cbranch_scc1 .Lnononce")
a("s_memrealtime s[72:73]")
a("s_waitcnt lgkmcnt(0)")
a("s_or_b32 s72, s72, 1")
a(f"v_mov_b32 v{TMP}, 0")
a(f"v_mov_b32 v{TMP+1}, s72")
a("s_mov_b64 exec, 1")
a(f"buffer_store_dword v{TMP+1}, v{TMP}, {S4(DBG_)}, 0 offen{SC}")
a("s_mov_b64 exec, -1")
a("s_mov_b32 s72, 0")
a("s_mov_b32 s73, 0")
a.label(".Lnononce")
if DIAG:
    a("s_cmp_lg_u32 s3, 2")
    a("s_cbranch_scc1 .Lnodiag")
    a("s_memrealtime s[72:73]")
    a("s_waitcnt lgkmcnt(0)")
    a("s_not_b32 s72, s72")
    a(f"v_mov_b32 v{TMP}, 8")
    a(f"v_mov_b32 v{TMP+1}, s72")
    a("s_mov_b64 exec, 1")
    a(f"buffer_atomic_umax v{TMP+1}, v{TMP}, {S4(DBG_)}, 0 offen{SC}")
    a("s_mov_b64 exec, -1")
    a("s_mov_b32 s72, 0")
    a("s_mov_b32 s73, 0")
    a.label(".Lnodiag")
if CPF:
    a("s_cmp_lg_u32 s3, 1")
    a("s_cbranch_scc1 .Lnocpf")
    a(f"s_cmp_ge_u32 s{S_IDX}, CODE_KB")
    a("s_cbranch_scc1 .Lnocpf")
    a("s_getpc_b64 s[72:73]")
    a.label(".Lpcref")
    a(f"s_sub_u32 s72, s72, .Lpcref-{KNAME}")
    a("s_subb_u32 s73, s73, 0")
    a(f"s_lshl_b32 s74, s{S_IDX}, 10")
    a(f"v_add_u32 v{TMP}, s74, v{LN16}")
    a(f"global_load_dwordx4 v[236:239], v{TMP}, s[72:73]")
    a.label(".Lnocpf")

if PFW1:
    srd(a, W1_, 24, 512*2752)
    a(f"s_lshl_b32 s72, s{S_ROT}, 6")
    a(f"v_add_u32 v3, s72, v{L}")
    a("v_mul_u32_u24 v3, 2752, v3")
    a(f"s_mul_i32 s72, s{S_J}, 192")
    a("s_lshl_b32 s73, s14, 6")
    a("s_add_u32 s72, s72, s73")
    a(f"s_cmp_lt_u32 s{S_J}, 15")
    a("s_cselect_b32 s72, s72, 0x40000000")
    a(f"buffer_load_dword v{WFD+2}, v3, {S4(W1_)}, s72 offen")

def wread(dst, addr):
    return f"ds_read_b64_tr_b16 {vr(dst,2)}, v{WA + (addr >> 16)} offset:{addr & 0xffff}"
def reads_A(t):
    p, sp = t >> 2, t & 3
    slot = p % 4
    r = [f"ds_read_b128 {vr(XR+4*t,4)}, v{(XA if slot < 2 else XA2)+sp} offset:{(slot & 1)*SLOT}"]
    for b in range(3):
        for rd in range(2):
            r.append(wread(WFR + (t % 3)*12 + b*4 + rd*2, slot*SLOT + 16384 + b*4096 + (4*sp+rd)*256))
    return r
def reads_B(t):
    p, sp = t >> 2, t & 3
    return [wread(WFR + (t % 3)*12 + b*4 + rd*2, BH[p] + b*4096 + (4*sp+rd)*256) for b in range(3) for rd in range(2)]
def mf(t, kinds, first):
    m = []
    for b, kd in enumerate(kinds):
        acc = vr(ACC+16*b, 16); x = vr(XR+4*t, 4); w = vr(WFR+(t % 3)*12+b*4, 4)
        c = "0" if first else acc
        if kd == 'T': m.append(f"v_mfma_f32_32x32x16_bf16 {acc}, {w}, {x}, {c}")
        else:         m.append(f"v_mfma_f32_32x32x16_bf16 {acc}, {x}, {w}, {c}")
    return m
lq = Q("lgkmcnt", 15)
a(f"s_lshl_b32 s76, s{S_J}, 4")
a(f"s_add_u32 s76, s76, s{S_RB}")
a("s_lshl_b32 s76, s76, 2")
a("s_add_u32 s76, s76, s3")
a("s_lshl_b32 s76, s76, 2")
a(f"s_add_u32 s76, s76, {FLG}")
a("s_barrier")
stamp(1)
for tt in (0, 1):
    for l in reads_A(tt): a(l)
    lq.issue(tt, 7)
for t in range(32):
    lq.wait(t)
    sp = t & 3
    nxt = []; tags = []
    if sp < 2:
        nxt = reads_A(t+2); tags = [(t+2, 7)]
    elif sp == 3 and t < 31:
        tick(f"A{t>>2}pre")
        a("s_barrier")
        tick(f"A{t>>2}post")
        nxt = reads_A(t+1) + reads_A(t+2); tags = [(t+1, 7), (t+2, 7)]
    for l in inter(mf(t, "TTN", t == 0), nxt): a(l)
    for tg, n in tags: lq.issue(tg, n)
assert not lq.q, lq.q
stamp(2)
a(f"s_lshl_b32 s72, s{S_RB}, 2")
a("s_add_u32 s72, s72, s3")
a(f"s_lshl_b32 s73, s{S_J}, 7")
a("s_add_u32 s72, s72, s73")
a("s_lshl_b32 s72, s72, 10")
a(f"v_add_u32 v{TMP}, s72, v{LN16}")
a(f"v_add_u32 v{TMP+1}, 0x10000, v{TMP}")
a(f"v_and_b32 v{TMP+2}, 15, v{L}")
a(f"v_lshrrev_b32 v{TMP+3}, 5, v{L}")
a(f"v_lshl_add_u32 v{TMP+2}, v{TMP+3}, 4, v{TMP+2}")
a(f"v_lshlrev_b32 v{TMP+2}, 4, v{TMP+2}")
a(f"v_bfe_u32 v{TMP+3}, v{L}, 4, 1")
a(f"v_lshl_add_u32 v{TMP+2}, v{TMP+3}, 16, v{TMP+2}")
a(f"v_add_u32 v{TMP+2}, s72, v{TMP+2}")
a(f"s_mov_b32 s73, {CSCALE}")
a(f"s_mov_b32 s74, {KF}")
a(f"s_mov_b32 s75, {VF}")
a("s_nop 3")
for b in (1, 2, 0):
    r = ACC + 16*b
    if b == 0:
        for i in range(16): a(f"v_mul_f32 v{r+i}, s73, v{r+i}")
    for i in range(8): a(f"v_cvt_pk_bf16_f32 v{r+i}, v{r+2*i}, v{r+2*i+1}")
def qkv_stores(fl, so_k, so_v, with_q):
    for b in (1, 2, 0):
        r = ACC + 16*b
        if b == 0 and not with_q: continue
        if b < 2:
            so = "0" if b == 0 else so_k
            a(f"buffer_store_dwordx4 {vr(r,4)}, v{TMP}, {S4(WS_)}, {so} offen{fl}")
            a(f"buffer_store_dwordx4 {vr(r+4,4)}, v{TMP+1}, {S4(WS_)}, {so} offen{fl}")
        else:
            a(f"buffer_store_dwordx4 {vr(r,4)}, v{TMP+2}, {S4(WS_)}, {so_v} offen{fl}")
            a(f"buffer_store_dwordx4 {vr(r+4,4)}, v{TMP+2}, {S4(WS_)}, {so_v} offen offset:512{fl}")
if LOCAL:
    a(f"s_lshr_b32 s72, s{S_RB}, 1")
    a("s_cmp_lg_u32 s72, 3")
    a("s_cbranch_scc1 .Lnohalo")
    a(f"s_mov_b32 s72, {K2F}")
    a(f"s_mov_b32 s73, {V2F}")
    qkv_stores(SC, "s72", "s73", False)
    a.label(".Lnohalo")
    a("s_cmp_eq_u32 s88, 1")
    a("s_cbranch_scc0 .Lqkv_safe")
    qkv_stores("", "s74", "s75", True)
    a("s_branch .Lqkv_done")
    a.label(".Lqkv_safe")
qkv_stores(SC, "s74", "s75", True)
a.label(".Lqkv_done")
a(f"s_cmp_eq_u32 s{S_J}, 15")
a("s_cbranch_scc1 .Lgate")
tick("epiA")
a("s_barrier")
tick("B01")
a(f"v_mov_b32 v{TMP+2}, {NONCE_LDS}")
a(f"ds_read_b32 v{TMP+3}, v{TMP+2}")
lq.issue("n", 1)
for tt in (0, 1):
    for l in reads_B(tt): a(l)
    lq.issue(tt, 6)
for t in range(32):
    lq.wait(t)
    if t == 2: a(f"v_readfirstlane_b32 s{S_NONCE}, v{TMP+3}")
    if t == PUBA_T:
        a("s_waitcnt vmcnt(0)")
        tick("pubA")
        wpublish(76, TMP, dual=True)
    if t == B23_T:
        tick("B23pre")
        a("s_barrier")
        tick("B23post")
    nxt = reads_B(t+2) if t < 30 else []
    for l in inter(mf(t, "TTT", t == 0), nxt): a(l)
    if t < 30: lq.issue(t+2, 6)
stamp(3)
a(f"s_lshl_b32 s72, s{S_RB}, 2")
a("s_add_u32 s72, s72, s3")
a("s_mul_i32 s72, s72, 118")
a(f"s_mul_i32 s73, s{S_J}, 6")
a("s_add_u32 s72, s72, s73")
a("s_lshl_b32 s72, s72, 10")
a(f"s_add_u32 s72, s72, {AF}")
a("s_add_u32 s73, s72, 4096")
a("s_nop 5")
for b in range(3):
    r = ACC + 16*b
    for i in range(8): a(f"v_cvt_pk_bf16_f32 v{r+i}, v{r+2*i}, v{r+2*i+1}")
    for i in range(8): a(f"v_pk_max_i16 v{r+i}, v{r+i}, 0")
    so = "s72" if b < 2 else "s73"
    o = (b & 1)*2048
    a(f"buffer_store_dwordx4 {vr(r,4)}, v{LN16}, {S4(WS_)}, {so} offen offset:{o}{SC}")
    a(f"buffer_store_dwordx4 {vr(r+4,4)}, v{LN16}, {S4(WS_)}, {so} offen offset:{o+1024}{SC}")
    if b == 0:
        a(f"s_cmp_eq_u32 s{S_J}, 14")
        a("s_cbranch_scc1 .Lattn")
a("s_branch .Lattn")
a.label(".Lgate")
a(f"s_lshl_b32 s72, s3, 10")
a(f"s_add_u32 s72, s72, 110592")
a("s_barrier")
a("s_mov_b32 m0, s72")
a("s_nop 0")
a(f"buffer_load_dwordx4 v{LN16}, {S4(GT_)}, 0 offen lds")
a(f"v_mov_b32 v{TMP+2}, {NONCE_LDS}")
a(f"ds_read_b32 v{TMP+3}, v{TMP+2}")
a("s_waitcnt vmcnt(0) lgkmcnt(0)")
a(f"v_readfirstlane_b32 s{S_NONCE}, v{TMP+3}")
a("s_mov_b32 s75, s72")
wpublish(76, TMP, dual=True)
a("s_mov_b32 s72, s75")
a("s_barrier")
a(f"v_lshrrev_b32 v{TMP}, 5, v{L}")
a(f"v_lshlrev_b32 v{TMP}, 4, v{TMP}")
a(f"v_add_u32 v{TMP}, s72, v{TMP}")
a(f"s_mov_b32 s73, s{S_ROT}")
for p in range(8):
    a("s_lshl_b32 s74, s73, 7")
    a(f"v_add_u32 v{TMP+1}, s74, v{TMP}")
    gb = ACC + 16 + (p & 1)*16
    for sp in range(4):
        a(f"ds_read_b128 {vr(gb+4*sp,4)}, v{TMP+1} offset:{sp*32}")
    a("s_add_u32 s73, s73, 1")
    a("s_and_b32 s73, s73, 7")
    a("s_waitcnt lgkmcnt(0)")
    for sp in range(4):
        t = 4*p+sp
        a(f"v_mfma_f32_32x32x16_bf16 {vr(ACC,16)}, {vr(gb+4*sp,4)}, {vr(XR+4*t,4)}, {'0' if t == 0 else vr(ACC,16)}")
a("s_nop 15")
z = ACC
a(f"v_cvt_pk_bf16_f32 v{z}, v{z}, v{z}")
a(f"v_lshlrev_b32 v{z}, 16, v{z}")
a(f"v_mul_f32 v{z}, 0xbfb8aa3b, v{z}")
a(f"v_exp_f32 v{z}, v{z}")
a("s_nop 0")
a(f"v_add_f32 v{z}, 1.0, v{z}")
a(f"v_rcp_f32 v{z}, v{z}")
a("s_nop 0")
a(f"v_cvt_pk_bf16_f32 v{z}, v{z}, v{z}")
a(f"v_lshlrev_b32 v{z}, 16, v{z}")
a(f"s_lshl_b32 s72, s{S_RB}, 7")
a("s_lshl_b32 s73, s3, 5")
a("s_add_u32 s72, s72, s73")
a("s_lshl_b32 s72, s72, 2")
a(f"s_add_u32 s72, s72, {GOFF}")
a(f"v_lshlrev_b32 v{TMP}, 2, v{L}")
a("s_mov_b32 exec_hi, 0")
a(f"buffer_store_dword v{z}, v{TMP}, {S4(WS_)}, s72 offen{SC}")
a("s_mov_b64 exec, -1")

a.label(".Lattn")
KK = 0; QQ = 40; VV = 48; SS = 64; CD = 96; CF = 112; NM = 176; PP = 208; OO = 128; MM = 160
VAD = 240; KAD = 241; T0 = 242
a("s_lshl_b32 s72, s3, 11")
a(f"s_add_u32 s72, s72, {STG}")
a(f"v_add_u32 v{KAD}, s72, v{LN16}")
a(f"v_and_b32 v2, 15, v{L}")
a(f"v_lshrrev_b32 v3, 5, v{L}")
a("v_lshl_add_u32 v2, v3, 4, v2")
a("v_lshlrev_b32 v2, 4, v2")
a(f"v_add_u32 v{VAD}, s72, v2")
for i in range(16): a(f"v_mov_b32 v{VV+i}, 0x3f803f80")
a(f"v_and_b32 v2, 31, v{L}")
a("v_lshlrev_b32 v3, 2, v3")
a(f"v_sub_u32 v{T0}, v2, v3")
a(f"v_mov_b32 v{T0+1}, {NINF}")
for r in range(16):
    br = (r & 3) + 8*(r >> 2)
    a(f"v_cmp_le_i32 vcc, {br}, v{T0}")
    a("s_nop 1")
    a(f"v_cndmask_b32 v{CD+r}, v{T0+1}, 0, vcc")
    a(f"v_cndmask_b32 v{CF+r}, 0, v{T0+1}, vcc")
for i in range(4): a(f"v_mov_b32 v{MM+i}, {NINF}")
a("s_lshl_b32 s15, s3, 1")
a("s_sub_u32 s15, 8, s15")
a(f"s_cmp_eq_u32 s{S_QB}, 0")
a("s_cselect_b32 s15, s15, 0")
a(f"s_lshl_b32 s76, s{S_RB}, 2")
a("s_add_u32 s76, s76, s3")
a("s_lshl_b32 s76, s76, 4")
a(f"s_add_u32 s76, s76, s{S_J}")
a("s_lshl_b32 s76, s76, 2")
a(f"s_add_u32 s76, s76, {F_B}")
lds_add(4, T0)
a("s_mov_b64 exec, -1")
tick("cArr")
a("s_mov_b32 s77, 0")
a(f"s_mov_b32 s74, {SPIN*16}")
a.label(".Lstg_cw")
a(f"v_mov_b32 v{T0}, {REL_LDS + 12}")
a(f"ds_read_b32 v{T0+1}, v{T0}")
a("s_waitcnt lgkmcnt(0)")
a(f"v_readfirstlane_b32 s72, v{T0+1}")
a("s_cmp_eq_u32 s72, 4")
a("s_cbranch_scc1 .Lstg_cok")
a("s_cmp_lg_u32 s77, 0")
a("s_cbranch_scc1 .Lstg_np")
a("s_getreg_b32 s72, hwreg(HW_REG_IB_STS)")
a("s_and_b32 s72, s72, 0xc0000f")
a("s_cmp_lg_u32 s72, 0")
a("s_cbranch_scc1 .Lstg_np")
a("s_waitcnt vmcnt(0)")
wpublish(76, T0)
stamp(5)
a("s_mov_b32 s77, 1")
a.label(".Lstg_np")
a("s_sleep 1")
a("s_sub_u32 s74, s74, 1")
a("s_cmp_lg_u32 s74, 0")
a("s_cbranch_scc1 .Lstg_cw")
a.label(".Lstg_cok")
stamp(4)
a(f"ds_read_b128 {vr(QQ+4,4)}, v{KAD} offset:{32768+1024}")
a(f"ds_read_b128 {vr(KK+36,4)}, v{KAD} offset:{9*1024}")
a(f"ds_read_b128 {vr(QQ,4)}, v{KAD} offset:32768")
for v in range(8, -1, -1):
    a(f"ds_read_b128 {vr(KK+4*v,4)}, v{KAD} offset:{v*1024}")
units = [(1, 9)]
for v in range(8, 0, -1): units += [(0, v), (1, v)]
units += [(0, 0)]
def edge(task, v):
    if (task, v) in ((1, 9), (0, 8)): return CD
    if (task, v) in ((1, 1), (0, 0)): return CF
    return None
def smf(task, v, c):
    return f"v_mfma_f32_32x32x16_bf16 {vr(SS+16*task,16)}, {vr(KK+4*v,4)}, {vr(QQ+4*task,4)}, {c}"
def vread(v):
    b = VV + 8*(v & 1)
    a("s_mov_b32 exec_lo, 0xffff")
    a("s_mov_b32 exec_hi, 0xffff")
    a(f"ds_read_b128 {vr(b,4)}, v{VAD} offset:{16384+v*1024}")
    a(f"ds_read_b128 {vr(b+4,4)}, v{VAD} offset:{16384+v*1024+512}")
    a("s_mov_b64 exec, -1")
a("s_waitcnt lgkmcnt(8)")
def c1(u):
    e = edge(*u); return vr(e, 16) if e is not None else "0"
a(smf(*units[0], c1(units[0])))
a("s_waitcnt lgkmcnt(0)")
a("s_nop 7")
for i, (task, v) in enumerate(units):
    if i + 1 < len(units): a(smf(*units[i+1], c1(units[i+1])))
    a("s_nop 2")
    b = SS + 16*task
    for k in range(8):
        a(f"v_max3_f32 v{MM+2*task+(k&1)}, v{b+2*k}, v{b+2*k+1}, v{MM+2*task+(k&1)}")
    if task == 1 and v in (8, 6, 4, 2):
        a(f"s_cmp_eq_u32 s15, {v}")
        a("s_cbranch_scc1 .Lp1done")
a.label(".Lp1done")
vread(9)
vread(8)
for task in range(2):
    m = MM + 2*task
    a(f"v_max_f32 v{m}, v{m}, v{m+1}")
    a(f"v_mov_b32 v{m+1}, v{m}")
a("s_nop 1")
for task in range(2):
    m = MM + 2*task
    a(f"v_permlane32_swap_b32 v{m}, v{m+1}")
a("s_nop 1")
for task in range(2):
    m = MM + 2*task
    a(f"v_max_f32 v{m}, v{m}, v{m+1}")
for task in (1, 0):
    for i in range(16): a(f"v_sub_f32 v{NM+16*task+i}, 0, v{MM+2*task}")
tick("p1end")
a("s_cmp_lg_u32 s77, 0")
a("s_cbranch_scc1 .Lfbdone")
a("s_waitcnt vmcnt(0)")
wpublish(76, T0)
stamp(5)
a.label(".Lfbdone")
a("s_nop 1")
a(smf(*units[0], vr(NM+16, 16)))
a("s_nop 11")
first = {0: True, 1: True}
def pv(task, v):
    vb = VV + 8*(v & 1); p = PP + 8*task; o = vr(OO+16*task, 16)
    r = [f"v_mfma_f32_32x32x16_bf16 {o}, {vr(vb,4)}, {vr(p,4)}, {'0' if first[task] else o}",
         f"v_mfma_f32_32x32x16_bf16 {o}, {vr(vb+4,4)}, {vr(p+4,4)}, {o}"]
    return r
exits = []
pend = None
for i, (task, v) in enumerate(units):
    if i + 1 < len(units):
        nt_, nv = units[i+1]
        a(smf(nt_, nv, vr(NM+16*nt_, 16)))
    b = SS + 16*task; p = PP + 8*task
    e = edge(task, v)
    if e is not None:
        for k in range(16): a(f"v_add_f32 v{b+k}, v{b+k}, v{e+k}")
    for k in range(16):
        a(f"v_exp_f32 v{b+k}, v{b+k}")
        if pend is not None and k == 3:
            pt, pvv = pend
            if (pt, pvv) == (1, 9) or pt == 0: a("s_waitcnt lgkmcnt(0)")
            m = pv(pt, pvv); a(m[0])
        if pend is not None and k == 8:
            a(m[1]); first[pend[0]] = False
            pt, pvv = pend
            if pt == 1 and pvv >= 2: vread(pvv-2)
    a("s_nop 0")
    for k in range(8): a(f"v_cvt_pk_bf16_f32 v{p+k}, v{b+2*k}, v{b+2*k+1}")
    pend = (task, v)
    if task == 1 and v in (8, 6, 4, 2):
        a(f"s_cmp_eq_u32 s15, {v}")
        a(f"s_cbranch_scc1 .Lp2x{v}")
        exits.append((v, pv(task, v)))
a("s_waitcnt lgkmcnt(0)")
for l in pv(*pend): a(l)
a("s_branch .Lp2done")
for v, m in exits:
    a.label(f".Lp2x{v}")
    a("s_nop 0")
    for l in m: a(l)
    a("s_branch .Lp2done")
a.label(".Lp2done")
a(f"s_lshl_b32 s72, s{S_QB}, 3")
a("s_lshl_b32 s73, s3, 1")
a("s_add_u32 s72, s72, s73")
a("s_mul_i32 s72, s72, 118")
a(f"s_add_u32 s72, s72, s{S_HEAD}")
a("s_lshl_b32 s72, s72, 10")
a(f"s_add_u32 s72, s72, {AF + 86*1024}")
a(f"s_add_u32 s73, s72, {118*1024}")
a("s_waitcnt lgkmcnt(0)")
a(f"v_mov_b32 v{T0}, {CNT_LDS}")
a(f"v_mov_b32 v{T0+1}, 1")
a("s_mov_b64 exec, 1")
a(f"ds_add_u32 v{T0}, v{T0+1}")
a("s_mov_b64 exec, -1")
a("s_nop 7")
for task in (1, 0):
    o = OO + 16*task
    a(f"v_rcp_f32 v{MM}, v{o+8}")
    a("s_nop 0")
    for i in range(8): a(f"v_mul_f32 v{o+i}, v{o+i}, v{MM}")
    for i in range(4): a(f"v_cvt_pk_bf16_f32 v{o+i}, v{o+2*i}, v{o+2*i+1}")
    a(f"buffer_store_dwordx4 {vr(o,4)}, v{LN16}, {S4(WS_)}, s{72+task} offen{SC}")
stamp(6)
EW = 0; EH = 64
a(f"s_mul_i32 s72, s{S_CT}, {2*118}")
a("s_lshl_b32 s73, s3, 3")
a("s_add_u32 s72, s72, s73")
a("s_lshl_b32 s72, s72, 10")
a(f"s_add_u32 s72, s72, {WF + 86*1024}")
a(f"v_add_u32 v{T}, s72, v{LN16}")
a(f"v_add_u32 v{T+1}, {118*1024}, v{T}")
a(f"s_mul_i32 s72, s{S_RT}, {2*118*1024}")
a(f"s_add_u32 s72, s72, {AF}")
for rt in range(2):
    a(f"s_add_u32 s{76+4*rt}, s34, s72")
    a(f"s_addc_u32 s{77+4*rt}, s35, 0")
    a(f"s_mov_b32 s{78+4*rt}, {118*1024}")
    a(f"s_mov_b32 s{79+4*rt}, 0x00020000")
    a(f"s_add_u32 s72, s72, {118*1024}")
a(f"s_lshl_b32 s91, s{S_QB}, 2")
a("s_add_u32 s91, s91, s3")
a("s_lshl_b32 s91, s91, 5")
a(f"s_add_u32 s91, s91, s{S_HEAD}")
a("s_lshl_b32 s91, s91, 2")
a(f"s_add_u32 s91, s91, {F_C}")
a(f"v_mov_b32 v{T+2}, 0")
a(f"v_mov_b32 v{T+3}, s{S_NONCE}")
a("s_waitcnt vmcnt(0)")
a("s_mov_b64 exec, 1")
a(f"buffer_store_dword v{T+3}, v{T+2}, {S4(WS_)}, s91 offen{SC}")
a("s_mov_b64 exec, -1")
tick("pubC")
a(f"s_lshl_b32 s91, s{S_CT}, 7")
a("s_lshl_b32 s72, s3, 3")
a("s_add_u32 s91, s91, s72")
a("s_lshl_b32 s91, s91, 2")
a(f"s_add_u32 s91, s91, {F_W + 86*4}")
a("s_mov_b32 s84, 0xff")
a("s_mov_b32 s85, 0")
a(f"v_lshlrev_b32 v{T+2}, 2, v{L}")
poll_flags(91, 84, T+2, "fwe")
for k in range(8):
    if k == 4:
        a(f"v_add_u32 v{T}, 4096, v{T}")
        a(f"v_add_u32 v{T+1}, 4096, v{T+1}")
    a(f"buffer_load_dwordx4 {vr(EW+8*k,4)}, v{T}, {S4(WS_)}, 0 offen offset:{(k%4)*1024}")
    a(f"buffer_load_dwordx4 {vr(EW+8*k+4,4)}, v{T+1}, {S4(WS_)}, 0 offen offset:{(k%4)*1024}")
a(f"s_lshl_b32 s91, s{S_RT}, 7")
a(f"s_add_u32 s91, s91, {F_B}")
a(f"s_lshl_b32 s92, s{S_RT}, 7")
a(f"s_add_u32 s92, s92, {F_C}")
a("s_mov_b32 s84, -1")
a("s_mov_b32 s85, 0")
a(f"v_lshlrev_b32 v{T+2}, 2, v{L}")
a("s_cmp_lg_u32 s3, 0")
a("s_cbranch_scc1 .Lfc_wait")
a("s_mov_b32 exec_hi, 0")
a(f"s_mov_b32 s74, {SPIN}")
a.label(".Lfc_poll")
a(f"buffer_load_dword v{T+3}, v{T+2}, {S4(WS_)}, s92 offen{SC}")
a(f"buffer_load_dword v{T+4}, v{T+2}, {S4(WS_)}, s91 offen{SC}")
a("s_waitcnt vmcnt(0)")
a(f"v_cmp_ne_u32 vcc, s{S_NONCE}, v{T+3}")
a("s_and_b64 s[72:73], vcc, s[84:85]")
a(f"v_cmp_ne_u32 vcc, s{S_NONCE}, v{T+4}")
a("s_and_b32 s73, vcc_lo, 0x80008000")
a("s_or_b32 s72, s72, s73")
a("s_cbranch_scc0 .Lfc_ok")
a(f"s_sleep {PSLEEP}")
a("s_sub_u32 s74, s74, 1")
a("s_cmp_lg_u32 s74, 0")
a("s_cbranch_scc1 .Lfc_poll")
a.label(".Lfc_ok")
a("s_mov_b64 exec, -1")
lds_release(2, T+3)
a("s_branch .Lfc_go")
a.label(".Lfc_wait")
lds_wait_rel(2, T+3, "fc")
a.label(".Lfc_go")
stamp(7)
a("s_lshl_b32 s72, s3, 13")
a(f"s_add_u32 s72, s72, {86*1024}")
a(f"v_add_u32 v{T}, s72, v{LN16}")
for k in range(8):
    if k == 4: a(f"v_add_u32 v{T}, 4096, v{T}")
    a(f"buffer_load_dwordx4 {vr(EH+8*k,4)}, v{T}, s[76:79], 0 offen offset:{(k%4)*1024}")
    a(f"buffer_load_dwordx4 {vr(EH+8*k+4,4)}, v{T}, s[80:83], 0 offen offset:{(k%4)*1024}")
a(f"v_and_b32 v{T+2}, 31, v{L}")
a(f"v_lshlrev_b32 v{T+2}, 2, v{T+2}")
a(f"s_lshl_b32 s72, s{S_RT}, 8")
a(f"s_add_u32 s72, s72, {GOFF}")
a(f"buffer_load_dword v{GV}, v{T+2}, {S4(WS_)}, s72 offen")
a(f"buffer_load_dword v{GV+1}, v{T+2}, {S4(WS_)}, s72 offen offset:128")
for k in range(8):
    a(f"s_waitcnt vmcnt({2*(7-k)+2})")
    for nt in range(2):
        for rt in range(2):
            acc = vr(DACC+(nt*2+rt)*16, 16)
            a(f"v_mfma_f32_32x32x16_bf16 {acc}, {vr(EW+8*k+4*nt,4)}, {vr(EH+8*k+4*rt,4)}, {'0' if k == 0 else acc}")
a("s_waitcnt vmcnt(0)")
a(f"s_lshl_b32 s90, s3, 14")
a(f"s_add_u32 s90, s90, {EAREA}")
a(f"v_mov_b32 v{T}, {CNT_LDS}")
a(f"s_mov_b32 s74, {SPIN}")
a.label(".Lcnt_poll")
a(f"ds_read_b32 v{T+1}, v{T}")
a("s_waitcnt lgkmcnt(0)")
a(f"v_readfirstlane_b32 s72, v{T+1}")
a("s_cmp_eq_u32 s72, 4")
a("s_cbranch_scc1 .Lreduce")
a("s_sub_u32 s74, s74, 1")
a("s_cmp_lg_u32 s74, 0")
a("s_cbranch_scc1 .Lcnt_poll")

a.label(".Lreduce")
stamp(8)
a(f"v_and_b32 v1, 31, v{L}")
a(f"v_lshrrev_b32 v3, 5, v{L}")
a(f"v_and_b32 v6, 15, v{L}")
a("v_lshlrev_b32 v1, 8, v1")
a("v_add_u32 v1, s90, v1")
a("v_xor_b32 v3, v3, v6")
a("s_nop 4")
for nt in range(2):
    for rt in range(2):
        r = DACC + (nt*2+rt)*16
        for i in range(16): a(f"v_mul_f32 v{r+i}, v{r+i}, v{GV+rt}")
for s in range(8):
    a(f"v_xor_b32 v7, {2*s}, v3")
    a(f"v_lshl_add_u32 v{8+s}, v7, 4, v1")
for nt in range(2):
    for rt in range(2):
        for qq in range(4):
            a(f"ds_write_b128 v{8+nt*4+qq}, {vr(DACC+(nt*2+rt)*16+4*qq,4)} offset:{rt*8192}")
a("s_waitcnt lgkmcnt(0)")
a("s_barrier")
stamp(9)
a(f"v_lshrrev_b32 v1, 3, v{L}")
a("s_lshl_b32 s72, s3, 3")
a("v_add_u32 v1, s72, v1")
a(f"v_and_b32 v3, 7, v{L}")
a("v_and_b32 v6, 15, v1")
a("v_lshlrev_b32 v7, 1, v3")
a("v_xor_b32 v7, v7, v6")
a("v_xor_b32 v6, 1, v7")
a("v_lshlrev_b32 v4, 8, v1")
a("v_lshl_add_u32 v7, v7, 4, v4")
a("v_lshl_add_u32 v6, v6, 4, v4")
a(f"v_add_u32 v4, {EAREA}, v7")
a(f"v_add_u32 v5, {EAREA}, v6")
a(f"v_add_u32 v2, {DAREA[2]}, v7")
a(f"v_add_u32 v0, {DAREA[2]}, v6")
for w in range(4):
    a(f"ds_read_b128 {vr(8+w*8,4)}, v4 offset:{w*ESZ}")
    a(f"ds_read_b128 {vr(12+w*8,4)}, v5 offset:{w*ESZ}")
for w in range(4):
    a(f"ds_read_b128 {vr(40+w*8,4)}, v{7 if w < 2 else 2} offset:{(w&1)*24576}")
    a(f"ds_read_b128 {vr(44+w*8,4)}, v{6 if w < 2 else 0} offset:{(w&1)*24576}")
a("s_waitcnt lgkmcnt(0)")
for step in (32, 16, 8):
    for i in range(step):
        a(f"v_add_f32 v{8+i}, v{8+i}, v{8+step+i}")
for i in range(4): a(f"v_cvt_pk_bf16_f32 v{8+i}, v{8+2*i}, v{8+2*i+1}")
a(f"s_lshl_b32 s72, s{S_RT}, 16")
a(f"s_lshl_b32 s73, s{S_CT}, 7")
a("s_add_u32 s72, s72, s73")
a("v_lshlrev_b32 v1, 10, v1")
a("v_lshl_add_u32 v1, v3, 4, v1")
a(f"buffer_store_dwordx4 v[8:11], v1, {S4(OUT_)}, s72 offen")
if DIAG:
    a("s_cmp_lg_u32 s3, 2")
    a("s_cbranch_scc1 .Lend")
    a("s_waitcnt vmcnt(0)")
    a("s_memrealtime s[72:73]")
    a("s_waitcnt lgkmcnt(0)")
    a("v_mov_b32 v1, 12")
    a("v_mov_b32 v2, s72")
    a("s_mov_b64 exec, 1")
    a(f"buffer_atomic_umax v2, v1, {S4(DBG_)}, 0 offen{SC}")
if PROF:
    a("s_waitcnt vmcnt(0)")
    stamp(10)
    a("s_memtime s[98:99]")
    a("s_waitcnt lgkmcnt(0)")
    a("v_writelane_b32 v255, s98, 13")
    a("s_lshl_b32 s72, s2, 3")
    a("s_add_u32 s72, s72, s3")
    a("s_lshl_b32 s72, s72, 8")
    a(f"s_add_u32 s72, s72, {PROFOFF}")
    a(f"v_lshlrev_b32 v1, 2, v{L}")
    a(f"buffer_store_dword v255, v1, {S4(WS_)}, s72 offen")
    json.dump(ticks, open("ticks.json", "w"))
a.label(".Lend")

KN = "gated_mix__sliding_block__dense_activation_relu__prompt_kernel"
hdr = open("gated_mix__sliding_block__dense_activation_relu__prompt.s.ref").read().split("; Override launch")[0]
out = hdr + "; @launch grid=(256,1,1) block=(512,1,1) lds=163840\n"
out += '.amdgcn_target "amdgcn-amd-amdhsa--gfx950"\n'
body = a.text()
import subprocess, re
tmp = out + kernel_wrap(KN, body.replace("CODE_KB", "20"), 256, 100)
open("_t.s", "w").write(tmp)
subprocess.run(["clang", "-x", "assembler", "-target", "amdgcn-amd-amdhsa", "-mcpu=gfx950", "-c", "_t.s", "-o", "_t.o"], check=True)
h = subprocess.run(["llvm-objdump", "-h", "_t.o"], capture_output=True, text=True).stdout
sz = int(re.search(r"\.text\s+([0-9a-f]+)", h).group(1), 16)
print("code bytes", sz)
out += kernel_wrap(KN, body.replace("CODE_KB", str(min(32, sz // 1024))), 256, 100)
open(sys.argv[1], "w").write(out)
```

```python
import sys, os, json
from asmlib import *

QF, KF, VF = 0x000000, 0x200000, 0x400000
AF = 0x600000
WF = 0xE00000
GOFF = 0x1000000
FLG = 0x1010000
F_A, F_AL, F_B, F_C, F_W = FLG, FLG+0x1000, FLG+0x2000, FLG+0x3000, FLG+0x5000
WSBYTES = 0x1600000
CSCALE = 0x3EB8AA3B
NINF = 0xFF800000
PROF = len(sys.argv) > 2 and sys.argv[2] == "prof"
PROFOFF = 0x1080000
SC = " sc1"
SPIN = 1 << 14
PSLEEP = int(os.environ.get("PSLEEP", "2"))
WFP = int(os.environ.get("WFP", "1"))
NB1 = int(os.environ.get("NB1", "8"))
CPF = int(os.environ.get("CPF", "1"))
DIAG = int(os.environ.get("DIAG", "0"))
GMASK = int(os.environ.get("GMASK", "3"))
FAST = int(os.environ.get("FAST", "1"))
FORCE_EXACT = int(os.environ.get("FORCE_EXACT", "0"))
PRIO = int(os.environ.get("PRIO", "0"))
NONP = int(os.environ.get("NONP", "4"))
B23_T = int(os.environ.get("B23_T", "14"))
W2WAIT = int(os.environ.get("W2WAIT", "0"))
FSLEEP = int(os.environ.get("FSLEEP", "1"))
KNAME = "gated_mix__sliding_block__dense_activation_relu__prompt_kernel"
NP1 = int(os.environ.get("NP1", "3"))
NP2 = int(os.environ.get("NP2", "1"))
PFW1 = int(os.environ.get("PFW1", "0"))
LOCAL = 0
PUBA_T = int(os.environ.get("PUBA_T", "8"))
K2F, V2F = 0x1200000, 0x1400000

a = Asm()
def stamp(i):
    if PROF:
        a("s_memrealtime s[98:99]")
        a("s_waitcnt lgkmcnt(0)")
        a(f"v_writelane_b32 v255, s98, {i}")
ticks = {}
def tick(name):
    if PROF:
        if name not in ticks: ticks[name] = 16 + len(ticks)
        assert ticks[name] < 64
        stamp(ticks[name])

SLOT = 28672
R1 = 114688
BH = [R1, R1+12288, R1+24576, 0, 12288, SLOT, SLOT+12288, 2*SLOT]
BOUNCE = R1 + 36864
NONCE_LDS = BOUNCE + 8192
STG = 69632
EAREA = 49152; ESZ = 16384
DAREA = [0, 24576, 114688, 139264]
NSL = 10
CNT_LDS = NONCE_LDS + 4; REL_LDS = NONCE_LDS + 8

S_XCD, S_IDX, S_RB, S_J, S_HEAD, S_QB, S_RT, S_CT, S_ROT, S_NONCE = 4, 5, 6, 7, 8, 9, 10, 11, 12, 13
X_, WQ_, WS_, W1_, WT_, OUT_, DBG_, GT_ = 36, 40, 44, 48, 52, 60, 64, 68
def S4(b): return f"s[{b}:{b+3}]"

class Q:
    def __init__(self, kind, cap): self.q = []; self.kind = kind; self.cap = cap
    def issue(self, tag, n=1): self.q.extend([tag]*n)
    def wait(self, *tags):
        idx = [i for i, t in enumerate(self.q) if t in tags]
        if not idx: return
        n = len(self.q) - 1 - max(idx)
        a(f"s_waitcnt {self.kind}({min(n, self.cap)})")
        self.q = self.q[max(idx)+1:]
    def drain(self): self.q = []

def poll_flags(off_sreg, mask, vtmp, name, pre=False):
    a(f"s_mov_b32 s74, {SPIN}")
    a.label(f".L{name}_poll")
    a(f"buffer_load_dword v{vtmp+1}, v{vtmp}, {S4(WS_)}, s{off_sreg} offen{SC}")
    a("s_waitcnt vmcnt(0)")
    a(f"v_cmp_ne_u32 vcc, s{S_NONCE}, v{vtmp+1}")
    a(f"s_and_b64 s[72:73], vcc, s[{mask}:{mask+1}]")
    a(f"s_cbranch_scc0 .L{name}_ok")
    a(f"s_sleep {PSLEEP}")
    a("s_sub_u32 s74, s74, 1")
    a("s_cmp_lg_u32 s74, 0")
    a(f"s_cbranch_scc1 .L{name}_poll")
    a.label(f".L{name}_ok")

def publish(off_sreg, vtmp, dual=False):
    l = a.newlabel("pub")
    a("s_cmp_lg_u32 s3, 0")
    a(f"s_cbranch_scc1 {l}")
    a("s_mov_b64 exec, 1")
    a(f"v_mov_b32 v{vtmp}, 0")
    a(f"v_mov_b32 v{vtmp+1}, s{S_NONCE}")
    if dual: a(f"buffer_store_dword v{vtmp+1}, v{vtmp}, {S4(WS_)}, s{off_sreg} offen offset:{0x2000 & 0xfff | 0x800}")
    a(f"buffer_store_dword v{vtmp+1}, v{vtmp}, {S4(WS_)}, s{off_sreg} offen{SC}")
    a("s_mov_b64 exec, -1")
    a.label(l)

def wpublish(off_sreg, vtmp, dual=False):
    a("s_mov_b64 exec, 1")
    a(f"v_mov_b32 v{vtmp}, 0")
    a(f"v_mov_b32 v{vtmp+1}, s{S_NONCE}")
    if dual:
        a(f"s_add_u32 s72, s{off_sreg}, 0x1000")
        a(f"buffer_store_dword v{vtmp+1}, v{vtmp}, {S4(WS_)}, s72 offen")
    a(f"buffer_store_dword v{vtmp+1}, v{vtmp}, {S4(WS_)}, s{off_sreg} offen{SC}")
    a("s_mov_b64 exec, -1")

PSLEEP = int(os.environ.get("PSLEEP", "2"))
def lds_release(i, vt):
    a(f"v_mov_b32 v{vt}, {REL_LDS + 4*i}")
    a(f"v_mov_b32 v{vt+1}, 1")
    a(f"ds_write_b32 v{vt}, v{vt+1}")
def lds_add(i, vt):
    a(f"v_mov_b32 v{vt}, {REL_LDS + 4*i}")
    a(f"v_mov_b32 v{vt+1}, 1")
    a("s_mov_b64 exec, 1")
    a(f"ds_add_u32 v{vt}, v{vt+1}")
def lds_wait_cnt(i, n, vt, name):
    a(f"v_mov_b32 v{vt}, {REL_LDS + 4*i}")
    a(f"s_mov_b32 s74, {SPIN*16}")
    a.label(f".L{name}_cw")
    a(f"ds_read_b32 v{vt+1}, v{vt}")
    a("s_waitcnt lgkmcnt(0)")
    a(f"v_readfirstlane_b32 s72, v{vt+1}")
    a(f"s_cmp_eq_u32 s72, {n}")
    a(f"s_cbranch_scc1 .L{name}_cok")
    a("s_sleep 1")
    a("s_sub_u32 s74, s74, 1")
    a("s_cmp_lg_u32 s74, 0")
    a(f"s_cbranch_scc1 .L{name}_cw")
    a.label(f".L{name}_cok")
def lds_wait_rel(i, vt, name):
    a(f"v_mov_b32 v{vt}, {REL_LDS + 4*i}")
    a(f"s_mov_b32 s74, {SPIN*16}")
    a.label(f".L{name}_lw")
    a(f"ds_read_b32 v{vt+1}, v{vt}")
    a("s_waitcnt lgkmcnt(0)")
    a(f"v_readfirstlane_b32 s72, v{vt+1}")
    a("s_cmp_lg_u32 s72, 0")
    a(f"s_cbranch_scc1 .L{name}_lok")
    a("s_sleep 1")
    a("s_sub_u32 s74, s74, 1")
    a("s_cmp_lg_u32 s74, 0")
    a(f"s_cbranch_scc1 .L{name}_lw")
    a.label(f".L{name}_lok")

def inter(m, r):
    out = []; per = -(-len(r) // len(m)) if r else 0; ri = 0
    for mm in m:
        out.append(mm)
        for _ in range(per):
            if ri < len(r): out.append(r[ri]); ri += 1
    return out

a("s_cmp_ge_u32 s2, 256")
a("s_cbranch_scc1 .Lend")
a("s_load_dwordx16 s[16:31], s[0:1], 0")
a("s_load_dwordx4 s[32:35], s[0:1], 64")
if PROF: a("v_mov_b32 v255, 0")
stamp(0)
if PROF:
    a("s_memtime s[98:99]")
    a("s_waitcnt lgkmcnt(0)")
    a("v_writelane_b32 v255, s98, 12")
a("v_lshrrev_b32 v1, 6, v0")
a("v_and_b32 v0, 63, v0")
a("v_readfirstlane_b32 s3, v1")
a(f"s_and_b32 s{S_XCD}, s2, 7")
a(f"s_lshr_b32 s{S_IDX}, s2, 3")
a(f"s_and_b32 s72, s{S_XCD}, 1")
a(f"s_lshr_b32 s73, s{S_XCD}, 1")
a(f"s_and_b32 s74, s{S_IDX}, 7")
a(f"s_lshr_b32 s75, s{S_IDX}, 3")
a(f"s_lshl_b32 s{S_RB}, s72, 3")
a(f"s_add_u32 s{S_RB}, s{S_RB}, s74")
a(f"s_lshl_b32 s{S_J}, s73, 2")
a(f"s_add_u32 s{S_J}, s{S_J}, s75")
a(f"s_lshl_b32 s{S_ROT}, s75, 1")
a(f"s_add_u32 s{S_ROT}, s{S_ROT}, s74")
a(f"s_and_b32 s{S_ROT}, s{S_ROT}, 7")
a(f"s_lshl_b32 s{S_HEAD}, s73, 3")
a(f"s_add_u32 s{S_HEAD}, s{S_HEAD}, s74")
a(f"s_lshl_b32 s{S_QB}, s72, 2")
a(f"s_add_u32 s{S_QB}, s{S_QB}, s75")
a(f"s_lshl_b32 s{S_RT}, s{S_XCD}, 2")
a(f"s_add_u32 s{S_RT}, s{S_RT}, s75")
a(f"s_mov_b32 s{S_CT}, s74")
a(f"s_mov_b32 s{S_NONCE}, 0")
a("s_and_b32 s14, s3, 3")
a(f"s_lshr_b32 s97, s{S_IDX}, 3")
a(f"s_lshl_b32 s93, s{S_RB}, 2")
a("s_add_u32 s93, s93, s14")
a("s_cmp_lt_u32 s3, 4")
a("s_cbranch_scc1 .Lcompute")

if PRIO == 3: a("s_setprio 3")
VX = 240; VWA = 244; VWB = 245; VWB2 = 246; LN16 = 247; T = 248; L = 254
a(f"v_mov_b32 v{L}, v0")
a("v_lshrrev_b32 v1, 3, v0")
a("v_and_b32 v2, 7, v0")
a("v_lshrrev_b32 v3, 4, v0")
a(f"s_lshl_b32 s72, s{S_RB}, 7")
a("s_lshl_b32 s73, s14, 5")
a("s_add_u32 s72, s72, s73")
for j in range(4):
    a(f"v_add_u32 v4, {4*(j&1)}, v3")
    a("v_xor_b32 v4, v4, v2")
    a("v_lshlrev_b32 v4, 4, v4")
    a(f"v_add_u32 v5, {8*j}, v1")
    a("v_add_u32 v5, s72, v5")
    a(f"v_lshl_add_u32 v{VX+j}, v5, 10, v4")
a("v_lshrrev_b32 v1, 2, v0")
a("s_lshl_b32 s72, s14, 4")
a("v_add_u32 v6, s72, v1")
a("v_and_b32 v2, 3, v0")
a("v_lshlrev_b32 v2, 4, v2")
a(f"s_lshl_b32 s72, s{S_J}, 6")
a(f"v_mul_u32_u24 v{VWA}, 3072, v6")
a(f"v_add3_u32 v{VWA}, v{VWA}, v2, s72")
a(f"s_lshl_b32 s78, s{S_ROT}, 7")
a(f"s_mul_i32 s79, s{S_ROT}, {64*3072}")
a(f"s_mul_i32 s80, s{S_ROT}, {64*2752}")
a("s_lshl_b32 s81, s14, 12")
a("s_lshl_b32 s82, s14, 10")
a("s_waitcnt lgkmcnt(0)")
srd(a, X_, 16, 2048*1024)
srd(a, WQ_, 18, 512*3072)
vq = Q("vmcnt", 63)
def issue_A(p):
    slot = p % 4
    for j in range(4):
        a(f"s_add_u32 m0, s81, {slot*SLOT + j*1024}")
        a("s_nop 0")
        a(f"buffer_load_dwordx4 v{VX+j}, {S4(X_)}, s78 offen lds")
    for b in range(3):
        a(f"s_add_u32 m0, s82, {slot*SLOT + 16384 + b*4096 - b*1024}")
        a("s_nop 0")
        a(f"buffer_load_dwordx4 v{VWA}, {S4(WQ_)}, s79 offen offset:{b*1024} lds")
    a("s_add_u32 s78, s78, 128")
    a(f"s_add_u32 s79, s79, {64*3072}")
    a("s_cmp_eq_u32 s78, 1024")
    a("s_cselect_b32 s78, 0, s78")
    a("s_cselect_b32 s79, 0, s79")
    vq.issue(("A", p), 7)
def issue_Bhalf(h):
    for b in range(3):
        a(f"s_add_u32 m0, s82, {BH[h] + b*4096 - b*64}")
        a("s_nop 0")
        a(f"buffer_load_dwordx4 v{VWB if b == 0 else VWB2}, {S4(W1_)}, s80 offen offset:{b*64} lds")
    a(f"s_add_u32 s80, s80, {64*2752}")
    a(f"s_cmp_eq_u32 s80, {512*2752}")
    a("s_cselect_b32 s80, 0, s80")
    vq.issue(("B", h), 3)
AW1 = int(os.environ.get("AW1", "0"))
SCH = os.environ.get("SCH", "c")
issue_A(0)
issue_A(1)
if SCH == "a": issue_A(2)
srd(a, WS_, 34, WSBYTES)
srd(a, W1_, 24, 512*2752)
srd(a, OUT_, 30, 2048*1024)
a(f"s_mul_i32 s72, s{S_J}, 192")
a(f"v_mul_u32_u24 v{VWB}, 2752, v6")
a(f"v_add3_u32 v{VWB}, v{VWB}, v2, s72")
a(f"v_mov_b32 v{VWB2}, v{VWB}")
a(f"s_cmp_lt_u32 s{S_J}, 14")
a("s_cbranch_scc1 .Lwbok")
a(f"v_mov_b32 v{VWB2}, 0x40000000")
a(f"s_cmp_lt_u32 s{S_J}, 15")
a("s_cbranch_scc1 .Lwbok")
a(f"v_mov_b32 v{VWB}, 0x40000000")
a.label(".Lwbok")
a(f"v_lshlrev_b32 v{LN16}, 4, v0")
srd(a, DBG_, 32, 256)
a(f"s_lshl_b32 s83, s{S_IDX}, 2")
a("s_add_u32 s83, s83, s14")
a("s_cmp_lt_u32 s83, 86")
a(f"s_cselect_b32 s{WT_}, s26, s20")
a(f"s_cselect_b32 s{WT_+1}, s27, s21")
a(f"s_mov_b32 s{WT_+2}, {1376*1024}")
a(f"s_cselect_b32 s{WT_+2}, s{WT_+2}, {512*1024}")
a(f"s_mov_b32 s{WT_+3}, 0x00020000")
a("s_cselect_b32 s84, 0, 86")
a("s_sub_u32 s84, s83, s84")
a("s_lshl_b32 s84, s84, 14")
a(f"s_lshl_b32 s85, s{S_XCD}, 7")
a("s_add_u32 s84, s84, s85")
a("v_lshlrev_b32 v8, 10, v1")
a("v_add_u32 v8, v8, v2")
a("s_lshl_b32 s85, s14, 11")
a(f"s_add_u32 s85, s85, {BOUNCE}")
a("v_lshrrev_b32 v9, 5, v0")
a("v_lshlrev_b32 v9, 8, v9")
a("v_bfe_u32 v4, v0, 2, 2")
a("v_lshl_add_u32 v9, v4, 6, v9")
a("v_bfe_u32 v4, v0, 4, 1")
a("v_lshl_add_u32 v9, v4, 5, v9")
a("v_and_b32 v4, 3, v0")
a("v_lshl_add_u32 v9, v4, 3, v9")
a("v_add_u32 v9, s85, v9")
a("v_mov_b32 v10, 0")
BSCHED = {4: [0, 1, 2], 5: [3, 4], 6: [5, 6], 7: [7]}
if SCH == "b":
    issue_Bhalf(0)
    BSCHED = {3: [1], 4: [2], 5: [3, 4], 6: [5, 6], 7: [7]}
if SCH == "c":
    BSCHED = {0: [0], 4: [1, 2], 5: [3, 4], 6: [5, 6], 7: [7]}
if SCH == "d":
    BSCHED = {1: [0], 5: [1, 2, 3], 6: [4, 5], 7: [6, 7]}
if SCH == "e":
    BSCHED = {2: [0], 5: [1, 2], 6: [3, 4, 5], 7: [6, 7]}
if SCH == "f":
    BSCHED = {1: [0], 3: [1], 4: [2], 5: [3, 4], 6: [5, 6], 7: [7]}
for p in range(8):
    vq.wait(("A", p))
    a("s_barrier")
    if p == 0: stamp(1)
    if p == 0 and SCH != "a": issue_A(2)
    if p + 3 < 8: issue_A(p+3)
    for h in BSCHED.get(p, []): issue_Bhalf(h)
    if p == WFP:
        a(f"buffer_load_dword v11, v10, {S4(DBG_)}, 0 offen{SC}")
        vq.issue("nonce", 1)
        a("s_mov_b32 m0, s85")
        a("s_nop 0")
        a(f"buffer_load_dwordx4 v8, {S4(WT_)}, s84 offen lds")
        a("s_add_u32 m0, s85, 960")
        a("s_nop 0")
        a(f"buffer_load_dwordx4 v8, {S4(WT_)}, s84 offen offset:64 lds")
        vq.issue("wfld", 2)
    if p == WFP + 3:
        vq.wait("nonce")
        a(f"v_readfirstlane_b32 s{S_NONCE}, v11")
        a(f"s_cmp_lg_u32 s{S_NONCE}, 0")
        a("s_cbranch_scc1 .Lnonce_ok")
        a(f"s_mov_b32 s74, {SPIN}")
        a.label(".Lnonce_poll")
        a("s_sleep 1")
        a(f"buffer_load_dword v11, v10, {S4(DBG_)}, 0 offen{SC}")
        a("s_waitcnt vmcnt(0)")
        a(f"v_readfirstlane_b32 s{S_NONCE}, v11")
        a(f"s_cmp_lg_u32 s{S_NONCE}, 0")
        a("s_cbranch_scc1 .Lnonce_ok")
        a("s_sub_u32 s74, s74, 1")
        a("s_cmp_lg_u32 s74, 0")
        a("s_cbranch_scc1 .Lnonce_poll")
        a.label(".Lnonce_ok")
        a(f"v_mov_b32 v4, {NONCE_LDS}")
        a("ds_write_b32 v4, v11")
        for i_ in range(1, 8): a(f"ds_write_b32 v4, v10 offset:{4*i_}")
        a("s_waitcnt lgkmcnt(0)")
        vq.wait("wfld")
        for i in range(4): a(f"ds_read_b64_tr_b16 v[{12+2*i}:{13+2*i}], v9 offset:{512*i}")
        a(f"s_mul_i32 s84, s{S_XCD}, {2*118}")
        a("s_add_u32 s84, s84, s83")
        a("s_lshl_b32 s84, s84, 10")
        a(f"s_add_u32 s84, s84, {WF}")
        a("s_cmp_lt_u32 s83, 118")
        a("s_cselect_b32 s84, s84, 0x40000000")
        a(f"s_add_u32 s85, s84, {118*1024}")
        a("s_waitcnt lgkmcnt(0)")
        a(f"buffer_store_dwordx4 v[12:15], v{LN16}, {S4(WS_)}, s84 offen{SC}")
        a(f"buffer_store_dwordx4 v[16:19], v{LN16}, {S4(WS_)}, s85 offen{SC}")
        a(f"s_lshl_b32 s90, s{S_XCD}, 7")
        a("s_add_u32 s90, s90, s83")
        a("s_lshl_b32 s90, s90, 2")
        a(f"s_add_u32 s90, s90, {F_W}")
        vq.issue("wfst", 2)
    if p == min(7, WFP + 5):
        vq.wait("wfst")
        wpublish(90, T+3)
        vq.issue("fwflag", 1)
stamp(2)
a(f"v_lshlrev_b32 v{T+2}, 2, v{L}")
vq.wait(("B", 3))
a("s_barrier")
vq.wait(("B", 7))
a("s_barrier")
stamp(3)
a("s_mul_i32 s86, s14, 22")
a("s_cmp_eq_u32 s14, 3")
a("s_cselect_b32 s86, 65, s86")
a("s_add_u32 s87, s86, 22")
a("s_cmp_ge_u32 s14, 2")
a("s_cselect_b32 s88, 1, 0")
a("s_sub_u32 s87, s87, s88")
a(f"s_mul_i32 s92, s{S_CT}, 3")
a("s_mul_i32 s72, s97, 5")
a("s_add_u32 s92, s92, s72")
a("s_cmp_ge_u32 s92, 22")
a("s_cselect_b32 s72, 22, 0")
a("s_sub_u32 s92, s92, s72")
a("s_lshl_b32 s92, s92, 10")
a("s_mov_b32 s93, s92")
a(f"s_mul_i32 s72, s{S_CT}, {2*118}")
a("s_add_u32 s72, s72, s86")
a("s_lshl_b32 s72, s72, 10")
a(f"s_add_u32 s72, s72, {WF}")
a(f"v_add_u32 v{T}, s72, v{LN16}")
a(f"v_add_u32 v{T+1}, {118*1024}, v{T}")
W2R = 0; DACC = 160; HB = 224; NPRE = 20
def w2load(k):
    f = W2R + (k % NPRE)*8
    a(f"buffer_load_dwordx4 {vr(f,4)}, v{T}, {S4(WS_)}, s92 offen")
    a(f"buffer_load_dwordx4 {vr(f+4,4)}, v{T+1}, {S4(WS_)}, s92 offen")
    a("s_add_u32 s92, s92, 1024")
    a(f"s_cmp_eq_u32 s92, {22*1024}")
    a("s_cselect_b32 s92, 0, s92")
    vq.issue(("w", k), 2)
def fw_batch(name):
    a(f"s_lshl_b32 s91, s{S_CT}, 7")
    a("s_add_u32 s91, s91, s86")
    a("s_lshl_b32 s91, s91, 2")
    a(f"s_add_u32 s91, s91, {F_W}")
    a("s_mov_b32 s84, 0x3fffff")
    a("s_mov_b32 s85, 0")
    a("s_mov_b32 exec_hi, 0")
    poll_flags(91, 84, T+2, name)
    a("s_mov_b64 exec, -1")
    tick("fwOK")
    for k in range(NB1): w2load(k)
a("s_mov_b32 s85, 0")
a("s_cmp_lg_u32 s3, 4")
a("s_cbranch_scc1 .Lfa_wait")
a(f"s_lshr_b32 s76, s{S_HEAD}, 1")
a("s_lshl_b32 s76, s76, 8")
a(f"s_lshl_b32 s77, s{S_QB}, 5")
a("s_add_u32 s76, s76, s77")
a(f"s_add_u32 s76, s76, {F_A - 32}")
a("s_add_u32 s77, s76, 0x1000")
a("s_mov_b32 s84, 0xffff")
a(f"s_cmp_eq_u32 s{S_QB}, 0")
a("s_cselect_b32 s84, 0xff00, s84")
a(f"s_cmp_eq_u32 s{S_QB}, 4")
a(f"s_cselect_b32 s75, 0, {GMASK}")
a(f"s_mov_b32 s74, {SPIN}")
a("s_mov_b64 exec, 0xffff")
a.label(".Lfa_poll")
a(f"buffer_load_dword v{T+3}, v{T+2}, {S4(WS_)}, s77 offen{SC}")
a("s_waitcnt vmcnt(0)")
a(f"v_cmp_ne_u32 vcc, s{S_NONCE}, v{T+3}")
a("s_and_b64 s[84:85], vcc, s[84:85]")
a("s_cbranch_scc0 .Lfa_ok")
a("s_and_b32 s72, s74, s75")
a("s_cmp_lg_u32 s72, 0")
a("s_cbranch_scc1 .Lfa_skipg")
a(f"buffer_load_dword v{T+4}, v{T+2}, {S4(WS_)}, s76 offen{SC}")
a("s_waitcnt vmcnt(0)")
a(f"v_cmp_ne_u32 vcc, s{S_NONCE}, v{T+4}")
a("s_and_b64 s[84:85], vcc, s[84:85]")
a("s_cbranch_scc0 .Lfa_ok")
a.label(".Lfa_skipg")
a(f"s_sleep {FSLEEP}")
a("s_sub_u32 s74, s74, 1")
a("s_cmp_lg_u32 s74, 0")
a("s_cbranch_scc1 .Lfa_poll")
a.label(".Lfa_ok")
a("s_mov_b64 exec, -1")
lds_release(0, T+3)
a("s_branch .Lfa_go")
a.label(".Lfa_wait")
fw_batch("fwa")
lds_wait_rel(0, T+3, "fa")
a.label(".Lfa_go")
stamp(11)
a(f"s_lshl_b32 s72, s{S_HEAD}, 6")
a(f"s_lshl_b32 s73, s{S_QB}, 3")
a("s_add_u32 s72, s72, s73")
a("s_lshl_b32 s72, s72, 10")
a("s_lshl_b32 s73, s14, 11")
a("s_add_u32 s73, s73, s72")
a("s_add_u32 s74, s72, s81")
a(f"s_add_u32 s74, s74, {KF - 8192}")
a(f"s_lshl_b32 s75, s{S_QB}, 2")
a("s_add_u32 s75, s75, s14")
a("s_cmp_lt_u32 s75, 2")
a("s_cselect_b32 s74, 0x40000000, s74")
a(f"s_add_u32 s75, s74, {VF - KF}")
a(f"s_add_u32 m0, s81, {STG}")
a("s_nop 0")
for i in range(4): a(f"buffer_load_dwordx4 v{LN16}, {S4(WS_)}, s74 offen offset:{i*1024} lds")
a("s_lshl_b32 s74, s14, 11")
a(f"s_add_u32 m0, s74, {STG + 32768}")
a("s_nop 0")
for i in range(2): a(f"buffer_load_dwordx4 v{LN16}, {S4(WS_)}, s73 offen offset:{i*1024} lds")
a(f"s_add_u32 m0, s81, {STG + 16384}")
a("s_nop 0")
for i in range(4): a(f"buffer_load_dwordx4 v{LN16}, {S4(WS_)}, s75 offen offset:{i*1024} lds")
vq.drain()
vq.issue("stg", 10)
a(f"s_mul_i32 s72, s{S_RT}, {2*118*1024}")
a(f"s_add_u32 s72, s72, {AF}")
a("s_lshl_b32 s73, s87, 10")
for rt in range(2):
    a(f"s_add_u32 s{76+4*rt}, s34, s72")
    a(f"s_addc_u32 s{77+4*rt}, s35, 0")
    a(f"s_mov_b32 s{78+4*rt}, s73")
    a(f"s_mov_b32 s{79+4*rt}, 0x00020000")
    a(f"s_add_u32 s72, s72, {118*1024}")
a(f"s_mul_i32 s89, s14, 24576")
a("s_cmp_ge_u32 s14, 2")
a(f"s_cselect_b32 s72, {114688 - 49152}, 0")
a("s_add_u32 s89, s89, s72")
a("s_waitcnt vmcnt(0)")
lds_add(3, T+4)
a("s_mov_b64 exec, -1")
stamp(4)
vq.drain()
a("s_cmp_lg_u32 s3, 4")
a("s_cbranch_scc1 .Lw2rest")
fw_batch("fwb")
a.label(".Lw2rest")
for k in range(NB1, NPRE): w2load(k)
tick("w2iss")
a(f"s_lshl_b32 s91, s{S_RT}, 7")
a(f"s_add_u32 s91, s91, {F_B}")
a("s_mov_b32 s84, -1")
a("s_cmp_lg_u32 s3, 4")
a("s_cbranch_scc1 .Lfb_wait")
a("s_mov_b32 exec_hi, 0")
poll_flags(91, 84, T+2, "fb")
a("s_mov_b64 exec, -1")
lds_wait_cnt(4, 4, T+3, "bd")
lds_release(1, T+3)
a("s_branch .Lfb_go")
a.label(".Lfb_wait")
lds_wait_rel(1, T+3, "fb")
a.label(".Lfb_go")
stamp(7)
a("s_lshl_b32 s72, s86, 10")
a(f"v_add_u32 v{T+4}, s72, v{LN16}")
a(f"v_add_u32 v{T+5}, s89, v{LN16}")
def hdma(k):
    sl = k % NSL
    for rt in range(2):
        a(f"s_add_u32 m0, s89, {sl*2048 + rt*1024}")
        a("s_nop 0")
        a(f"buffer_load_dwordx4 v{T+4}, s[{76+4*rt}:{79+4*rt}], s93 offen lds")
    a("s_add_u32 s93, s93, 1024")
    a(f"s_cmp_eq_u32 s93, {22*1024}")
    a("s_cselect_b32 s93, 0, s93")
    vq.issue(("h", k), 2)
def hreads(k):
    return [f"ds_read_b128 {vr(HB+(k&1)*8+rt*4,4)}, v{T+5} offset:{(k % NSL)*2048 + rt*1024}" for rt in range(2)]
HW1 = int(os.environ.get("HW1", "0"))
for k in range(NSL):
    hdma(k)
    if k == HW1-1: vq.wait(("h", k))
GV = VX
a(f"v_and_b32 v{T+2}, 31, v{L}")
a(f"v_lshlrev_b32 v{T+2}, 2, v{T+2}")
a(f"s_lshl_b32 s72, s{S_RT}, 8")
a(f"s_add_u32 s72, s72, {GOFF}")
a(f"buffer_load_dword v{GV}, v{T+2}, {S4(WS_)}, s72 offen")
a(f"buffer_load_dword v{GV+1}, v{T+2}, {S4(WS_)}, s72 offen offset:128")
vq.issue("g", 2)
vq.wait(("h", 0))
for l in hreads(0): a(l)
PUBC_AT = int(os.environ.get("PUBC_AT", "0"))
for k in range(22):
    if k < 21: vq.wait(("h", k+1), ("w", k))
    else: vq.wait(("w", k))
    a("s_waitcnt lgkmcnt(0)")
    if k in (0, 1, 4, 8, 12, 16, 20): tick(f"D{k}")
    f = W2R + (k % NPRE)*8
    m = []
    for nt in range(2):
        for rt in range(2):
            acc = vr(DACC+(nt*2+rt)*16, 16)
            m.append(f"v_mfma_f32_32x32x16_bf16 {acc}, {vr(f+4*nt,4)}, {vr(HB+(k&1)*8+4*rt,4)}, {'0' if k == 0 else acc}")
    for l in inter(m, hreads(k+1) if k < 21 else []): a(l)
    if k + NSL < 22: hdma(k + NSL)
    if k + NPRE < 22: w2load(k + NPRE)
a("s_waitcnt vmcnt(0)")
for i in range(2):
    a(f"v_sub_f32 v{GV+i}, 1.0, v{GV+i}")
    a(f"v_cvt_pk_bf16_f32 v{GV+i}, v{GV+i}, v{GV+i}")
    a(f"v_lshlrev_b32 v{GV+i}, 16, v{GV+i}")
a("s_mov_b32 s90, s89")
a("s_branch .Lreduce")

a.label(".Lcompute")
if PRIO == 2: a("s_setprio 3")
XR = 0; ACC = 128; WFR = 176; XA = 212; XA2 = 216; WA = 232; TMP = 224; WFA = 235; WFD = 236
a(f"v_mov_b32 v{L}, v0")
a(f"v_and_b32 v{TMP}, 31, v{L}")
a(f"v_lshrrev_b32 v{TMP+1}, 5, v{L}")
a(f"v_bfe_u32 v{TMP+2}, v{L}, 1, 3")
a("s_lshl_b32 s72, s3, 12")
for sp in range(4):
    a(f"v_add_u32 v{TMP+3}, {2*sp}, v{TMP+1}")
    a(f"v_xor_b32 v{TMP+3}, v{TMP+3}, v{TMP+2}")
    a(f"v_lshlrev_b32 v{TMP+3}, 4, v{TMP+3}")
    a(f"v_lshl_add_u32 v{TMP+3}, v{TMP}, 7, v{TMP+3}")
    a(f"v_add_u32 v{XA+sp}, s72, v{TMP+3}")
    a(f"v_add_u32 v{XA2+sp}, {2*SLOT}, v{XA+sp}")
a(f"v_lshlrev_b32 v{WA}, 9, v{TMP+1}")
a(f"v_bfe_u32 v{TMP+3}, v{L}, 2, 2")
a(f"v_lshl_add_u32 v{WA}, v{TMP+3}, 6, v{WA}")
a(f"v_bfe_u32 v{TMP+3}, v{L}, 4, 1")
a(f"v_lshl_add_u32 v{WA}, v{TMP+3}, 5, v{WA}")
a(f"v_and_b32 v{TMP+3}, 3, v{L}")
a(f"v_lshl_add_u32 v{WA}, v{TMP+3}, 3, v{WA}")
a(f"v_add_u32 v{WA+1}, 0x10000, v{WA}")
a(f"v_add_u32 v{WA+2}, 0x20000, v{WA}")
a(f"v_lshlrev_b32 v{LN16}, 4, v{L}")
a("s_waitcnt lgkmcnt(0)")
srd(a, WS_, 34, WSBYTES)
srd(a, OUT_, 30, 2048*1024)
srd(a, DBG_, 32, 256)
srd(a, GT_, 28, 1024)
a("s_or_b32 s72, s2, s3")
a("s_cmp_lg_u32 s72, 0")
a("s_cbranch_scc1 .Lnononce")
a("s_memrealtime s[72:73]")
a("s_waitcnt lgkmcnt(0)")
a("s_or_b32 s72, s72, 1")
a(f"v_mov_b32 v{TMP}, 0")
a(f"v_mov_b32 v{TMP+1}, s72")
a("s_mov_b64 exec, 1")
a(f"buffer_store_dword v{TMP+1}, v{TMP}, {S4(DBG_)}, 0 offen{SC}")
a("s_mov_b64 exec, -1")
a("s_mov_b32 s72, 0")
a("s_mov_b32 s73, 0")
a.label(".Lnononce")
if DIAG:
    a("s_cmp_lg_u32 s3, 2")
    a("s_cbranch_scc1 .Lnodiag")
    a("s_memrealtime s[72:73]")
    a("s_waitcnt lgkmcnt(0)")
    a("s_not_b32 s72, s72")
    a(f"v_mov_b32 v{TMP}, 8")
    a(f"v_mov_b32 v{TMP+1}, s72")
    a("s_mov_b64 exec, 1")
    a(f"buffer_atomic_umax v{TMP+1}, v{TMP}, {S4(DBG_)}, 0 offen{SC}")
    a("s_mov_b64 exec, -1")
    a("s_mov_b32 s72, 0")
    a("s_mov_b32 s73, 0")
    a.label(".Lnodiag")
if CPF:
    a("s_cmp_lg_u32 s3, 1")
    a("s_cbranch_scc1 .Lnocpf")
    a(f"s_cmp_ge_u32 s{S_IDX}, CODE_KB")
    a("s_cbranch_scc1 .Lnocpf")
    a("s_getpc_b64 s[72:73]")
    a.label(".Lpcref")
    a(f"s_sub_u32 s72, s72, .Lpcref-{KNAME}")
    a("s_subb_u32 s73, s73, 0")
    a(f"s_lshl_b32 s74, s{S_IDX}, 10")
    a(f"v_add_u32 v{TMP}, s74, v{LN16}")
    a(f"global_load_dwordx4 v[236:239], v{TMP}, s[72:73]")
    a.label(".Lnocpf")

if PFW1:
    srd(a, W1_, 24, 512*2752)
    a(f"s_lshl_b32 s72, s{S_ROT}, 6")
    a(f"v_add_u32 v3, s72, v{L}")
    a("v_mul_u32_u24 v3, 2752, v3")
    a(f"s_mul_i32 s72, s{S_J}, 192")
    a("s_lshl_b32 s73, s14, 6")
    a("s_add_u32 s72, s72, s73")
    a(f"s_cmp_lt_u32 s{S_J}, 15")
    a("s_cselect_b32 s72, s72, 0x40000000")
    a(f"buffer_load_dword v{WFD+2}, v3, {S4(W1_)}, s72 offen")

def wread(dst, addr):
    return f"ds_read_b64_tr_b16 {vr(dst,2)}, v{WA + (addr >> 16)} offset:{addr & 0xffff}"
def reads_A(t):
    p, sp = t >> 2, t & 3
    slot = p % 4
    r = [f"ds_read_b128 {vr(XR+4*t,4)}, v{(XA if slot < 2 else XA2)+sp} offset:{(slot & 1)*SLOT}"]
    for b in range(3):
        for rd in range(2):
            r.append(wread(WFR + (t % 3)*12 + b*4 + rd*2, slot*SLOT + 16384 + b*4096 + (4*sp+rd)*256))
    return r
def reads_B(t):
    p, sp = t >> 2, t & 3
    return [wread(WFR + (t % 3)*12 + b*4 + rd*2, BH[p] + b*4096 + (4*sp+rd)*256) for b in range(3) for rd in range(2)]
def mf(t, kinds, first):
    m = []
    for b, kd in enumerate(kinds):
        acc = vr(ACC+16*b, 16); x = vr(XR+4*t, 4); w = vr(WFR+(t % 3)*12+b*4, 4)
        c = "0" if first else acc
        if kd == 'T': m.append(f"v_mfma_f32_32x32x16_bf16 {acc}, {w}, {x}, {c}")
        else:         m.append(f"v_mfma_f32_32x32x16_bf16 {acc}, {x}, {w}, {c}")
    return m
lq = Q("lgkmcnt", 15)
a(f"s_lshl_b32 s76, s{S_J}, 4")
a(f"s_add_u32 s76, s76, s{S_RB}")
a("s_lshl_b32 s76, s76, 2")
a("s_add_u32 s76, s76, s3")
a("s_lshl_b32 s76, s76, 2")
a(f"s_add_u32 s76, s76, {FLG}")
a("s_barrier")
stamp(1)
for tt in (0, 1):
    for l in reads_A(tt): a(l)
    lq.issue(tt, 7)
for t in range(32):
    lq.wait(t)
    sp = t & 3
    nxt = []; tags = []
    if sp < 2:
        nxt = reads_A(t+2); tags = [(t+2, 7)]
    elif sp == 3 and t < 31:
        tick(f"A{t>>2}pre")
        a("s_barrier")
        tick(f"A{t>>2}post")
        nxt = reads_A(t+1) + reads_A(t+2); tags = [(t+1, 7), (t+2, 7)]
    for l in inter(mf(t, "TTN", t == 0), nxt): a(l)
    for tg, n in tags: lq.issue(tg, n)
assert not lq.q, lq.q
stamp(2)
a(f"s_lshl_b32 s72, s{S_RB}, 2")
a("s_add_u32 s72, s72, s3")
a(f"s_lshl_b32 s73, s{S_J}, 7")
a("s_add_u32 s72, s72, s73")
a("s_lshl_b32 s72, s72, 10")
a(f"v_add_u32 v{TMP}, s72, v{LN16}")
a(f"v_add_u32 v{TMP+1}, 0x10000, v{TMP}")
a(f"v_and_b32 v{TMP+2}, 15, v{L}")
a(f"v_lshrrev_b32 v{TMP+3}, 5, v{L}")
a(f"v_lshl_add_u32 v{TMP+2}, v{TMP+3}, 4, v{TMP+2}")
a(f"v_lshlrev_b32 v{TMP+2}, 4, v{TMP+2}")
a(f"v_bfe_u32 v{TMP+3}, v{L}, 4, 1")
a(f"v_lshl_add_u32 v{TMP+2}, v{TMP+3}, 16, v{TMP+2}")
a(f"v_add_u32 v{TMP+2}, s72, v{TMP+2}")
a(f"s_mov_b32 s73, {CSCALE}")
a(f"s_mov_b32 s74, {KF}")
a(f"s_mov_b32 s75, {VF}")
a("s_nop 3")
for b in (1, 2, 0):
    r = ACC + 16*b
    if b == 0:
        for i in range(16): a(f"v_mul_f32 v{r+i}, s73, v{r+i}")
    for i in range(8): a(f"v_cvt_pk_bf16_f32 v{r+i}, v{r+2*i}, v{r+2*i+1}")
def qkv_stores(fl, so_k, so_v, with_q):
    for b in (1, 2, 0):
        r = ACC + 16*b
        if b == 0 and not with_q: continue
        if b < 2:
            so = "0" if b == 0 else so_k
            a(f"buffer_store_dwordx4 {vr(r,4)}, v{TMP}, {S4(WS_)}, {so} offen{fl}")
            a(f"buffer_store_dwordx4 {vr(r+4,4)}, v{TMP+1}, {S4(WS_)}, {so} offen{fl}")
        else:
            a(f"buffer_store_dwordx4 {vr(r,4)}, v{TMP+2}, {S4(WS_)}, {so_v} offen{fl}")
            a(f"buffer_store_dwordx4 {vr(r+4,4)}, v{TMP+2}, {S4(WS_)}, {so_v} offen offset:512{fl}")
if LOCAL:
    a(f"s_lshr_b32 s72, s{S_RB}, 1")
    a("s_cmp_lg_u32 s72, 3")
    a("s_cbranch_scc1 .Lnohalo")
    a(f"s_mov_b32 s72, {K2F}")
    a(f"s_mov_b32 s73, {V2F}")
    qkv_stores(SC, "s72", "s73", False)
    a.label(".Lnohalo")
    a("s_cmp_eq_u32 s88, 1")
    a("s_cbranch_scc0 .Lqkv_safe")
    qkv_stores("", "s74", "s75", True)
    a("s_branch .Lqkv_done")
    a.label(".Lqkv_safe")
qkv_stores(SC, "s74", "s75", True)
a.label(".Lqkv_done")
a(f"s_cmp_eq_u32 s{S_J}, 15")
a("s_cbranch_scc1 .Lgate")
tick("epiA")
a("s_barrier")
tick("B01")
a(f"v_mov_b32 v{TMP+2}, {NONCE_LDS}")
a(f"ds_read_b32 v{TMP+3}, v{TMP+2}")
lq.issue("n", 1)
for tt in (0, 1):
    for l in reads_B(tt): a(l)
    lq.issue(tt, 6)
for t in range(32):
    lq.wait(t)
    if t == 2: a(f"v_readfirstlane_b32 s{S_NONCE}, v{TMP+3}")
    if t == PUBA_T:
        a("s_waitcnt vmcnt(0)")
        tick("pubA")
        wpublish(76, TMP, dual=True)
    if t == B23_T:
        tick("B23pre")
        a("s_barrier")
        tick("B23post")
    nxt = reads_B(t+2) if t < 30 else []
    for l in inter(mf(t, "TTT", t == 0), nxt): a(l)
    if t < 30: lq.issue(t+2, 6)
stamp(3)
a(f"s_lshl_b32 s72, s{S_RB}, 2")
a("s_add_u32 s72, s72, s3")
a("s_mul_i32 s72, s72, 118")
a(f"s_mul_i32 s73, s{S_J}, 6")
a("s_add_u32 s72, s72, s73")
a("s_lshl_b32 s72, s72, 10")
a(f"s_add_u32 s72, s72, {AF}")
a("s_add_u32 s73, s72, 4096")
a("s_nop 5")
for b in range(3):
    r = ACC + 16*b
    for i in range(8): a(f"v_cvt_pk_bf16_f32 v{r+i}, v{r+2*i}, v{r+2*i+1}")
    for i in range(8): a(f"v_pk_max_i16 v{r+i}, v{r+i}, 0")
    so = "s72" if b < 2 else "s73"
    o = (b & 1)*2048
    a(f"buffer_store_dwordx4 {vr(r,4)}, v{LN16}, {S4(WS_)}, {so} offen offset:{o}{SC}")
    a(f"buffer_store_dwordx4 {vr(r+4,4)}, v{LN16}, {S4(WS_)}, {so} offen offset:{o+1024}{SC}")
    if b == 0:
        a(f"s_cmp_eq_u32 s{S_J}, 14")
        a("s_cbranch_scc1 .Lattn")
a("s_branch .Lattn")
a.label(".Lgate")
a(f"s_lshl_b32 s72, s3, 10")
a(f"s_add_u32 s72, s72, 110592")
a("s_barrier")
a("s_mov_b32 m0, s72")
a("s_nop 0")
a(f"buffer_load_dwordx4 v{LN16}, {S4(GT_)}, 0 offen lds")
a(f"v_mov_b32 v{TMP+2}, {NONCE_LDS}")
a(f"ds_read_b32 v{TMP+3}, v{TMP+2}")
a("s_waitcnt vmcnt(0) lgkmcnt(0)")
a(f"v_readfirstlane_b32 s{S_NONCE}, v{TMP+3}")
a("s_mov_b32 s75, s72")
wpublish(76, TMP, dual=True)
a("s_mov_b32 s72, s75")
a("s_barrier")
a(f"v_lshrrev_b32 v{TMP}, 5, v{L}")
a(f"v_lshlrev_b32 v{TMP}, 4, v{TMP}")
a(f"v_add_u32 v{TMP}, s72, v{TMP}")
a(f"s_mov_b32 s73, s{S_ROT}")
for p in range(8):
    a("s_lshl_b32 s74, s73, 7")
    a(f"v_add_u32 v{TMP+1}, s74, v{TMP}")
    gb = ACC + 16 + (p & 1)*16
    for sp in range(4):
        a(f"ds_read_b128 {vr(gb+4*sp,4)}, v{TMP+1} offset:{sp*32}")
    a("s_add_u32 s73, s73, 1")
    a("s_and_b32 s73, s73, 7")
    a("s_waitcnt lgkmcnt(0)")
    for sp in range(4):
        t = 4*p+sp
        a(f"v_mfma_f32_32x32x16_bf16 {vr(ACC,16)}, {vr(gb+4*sp,4)}, {vr(XR+4*t,4)}, {'0' if t == 0 else vr(ACC,16)}")
a("s_nop 15")
z = ACC
a(f"v_cvt_pk_bf16_f32 v{z}, v{z}, v{z}")
a(f"v_lshlrev_b32 v{z}, 16, v{z}")
a(f"v_mul_f32 v{z}, 0xbfb8aa3b, v{z}")
a(f"v_exp_f32 v{z}, v{z}")
a("s_nop 0")
a(f"v_add_f32 v{z}, 1.0, v{z}")
a(f"v_rcp_f32 v{z}, v{z}")
a("s_nop 0")
a(f"v_cvt_pk_bf16_f32 v{z}, v{z}, v{z}")
a(f"v_lshlrev_b32 v{z}, 16, v{z}")
a(f"s_lshl_b32 s72, s{S_RB}, 7")
a("s_lshl_b32 s73, s3, 5")
a("s_add_u32 s72, s72, s73")
a("s_lshl_b32 s72, s72, 2")
a(f"s_add_u32 s72, s72, {GOFF}")
a(f"v_lshlrev_b32 v{TMP}, 2, v{L}")
a("s_mov_b32 exec_hi, 0")
a(f"buffer_store_dword v{z}, v{TMP}, {S4(WS_)}, s72 offen{SC}")
a("s_mov_b64 exec, -1")

a.label(".Lattn")
if PRIO in (1, 3): a("s_setprio 2")
KK = 0; QQ = 40; VV = 48; SS = 64; CD = 96; CF = 112; NM = 176; PP = 208; OO = 128; MM = 160
VAD = 240; KAD = 241; T0 = 242
a("s_lshl_b32 s72, s3, 11")
a(f"s_add_u32 s72, s72, {STG}")
a(f"v_add_u32 v{KAD}, s72, v{LN16}")
a(f"v_and_b32 v2, 15, v{L}")
a(f"v_lshrrev_b32 v3, 5, v{L}")
a("v_lshl_add_u32 v2, v3, 4, v2")
a("v_lshlrev_b32 v2, 4, v2")
a(f"v_add_u32 v{VAD}, s72, v2")
for i in range(16): a(f"v_mov_b32 v{VV+i}, 0x3f803f80")
a(f"v_and_b32 v2, 31, v{L}")
a("v_lshlrev_b32 v3, 2, v3")
a(f"v_sub_u32 v{T0}, v2, v3")
a(f"v_mov_b32 v{T0+1}, {NINF}")
for r in range(16):
    br = (r & 3) + 8*(r >> 2)
    a(f"v_cmp_le_i32 vcc, {br}, v{T0}")
    a("s_nop 1")
    a(f"v_cndmask_b32 v{CD+r}, v{T0+1}, 0, vcc")
    a(f"v_cndmask_b32 v{CF+r}, 0, v{T0+1}, vcc")
for i in range(4): a(f"v_mov_b32 v{MM+i}, {NINF}")
a("s_lshl_b32 s15, s3, 1")
a("s_sub_u32 s15, 8, s15")
a(f"s_cmp_eq_u32 s{S_QB}, 0")
a("s_cselect_b32 s15, s15, 0")
a(f"s_lshl_b32 s76, s{S_RB}, 2")
a("s_add_u32 s76, s76, s3")
a("s_lshl_b32 s76, s76, 4")
a(f"s_add_u32 s76, s76, s{S_J}")
a("s_lshl_b32 s76, s76, 2")
a(f"s_add_u32 s76, s76, {F_B}")
lds_add(4, T0)
a("s_mov_b64 exec, -1")
tick("cArr")
a("s_mov_b32 s77, 0")
a(f"s_mov_b32 s74, {SPIN*16}")
a.label(".Lstg_cw")
a(f"v_mov_b32 v{T0}, {REL_LDS + 12}")
a(f"ds_read_b32 v{T0+1}, v{T0}")
a("s_waitcnt lgkmcnt(0)")
a(f"v_readfirstlane_b32 s72, v{T0+1}")
a("s_cmp_eq_u32 s72, 4")
a("s_cbranch_scc1 .Lstg_cok")
a("s_cmp_lg_u32 s77, 0")
a("s_cbranch_scc1 .Lstg_np")
a("s_getreg_b32 s72, hwreg(HW_REG_IB_STS)")
a("s_and_b32 s72, s72, 0xc0000f")
a("s_cmp_lg_u32 s72, 0")
a("s_cbranch_scc1 .Lstg_np")
a("s_waitcnt vmcnt(0)")
wpublish(76, T0)
stamp(5)
a("s_mov_b32 s77, 1")
a.label(".Lstg_np")
a("s_sleep 1")
a("s_sub_u32 s74, s74, 1")
a("s_cmp_lg_u32 s74, 0")
a("s_cbranch_scc1 .Lstg_cw")
a.label(".Lstg_cok")
stamp(4)
a(f"ds_read_b128 {vr(QQ+4,4)}, v{KAD} offset:{32768+1024}")
a(f"ds_read_b128 {vr(KK+36,4)}, v{KAD} offset:{9*1024}")
a(f"ds_read_b128 {vr(QQ,4)}, v{KAD} offset:32768")
for v in range(8, -1, -1):
    a(f"ds_read_b128 {vr(KK+4*v,4)}, v{KAD} offset:{v*1024}")
units = [(1, 9)]
for v in range(8, 0, -1): units += [(0, v), (1, v)]
units += [(0, 0)]
def edge(task, v):
    if (task, v) in ((1, 9), (0, 8)): return CD
    if (task, v) in ((1, 1), (0, 0)): return CF
    return None
def smf(task, v, c):
    return f"v_mfma_f32_32x32x16_bf16 {vr(SS+16*task,16)}, {vr(KK+4*v,4)}, {vr(QQ+4*task,4)}, {c}"
def vread(v):
    b = VV + 8*(v & 1)
    a("s_mov_b32 exec_lo, 0xffff")
    a("s_mov_b32 exec_hi, 0xffff")
    a(f"ds_read_b128 {vr(b,4)}, v{VAD} offset:{16384+v*1024}")
    a(f"ds_read_b128 {vr(b+4,4)}, v{VAD} offset:{16384+v*1024+512}")
    a("s_mov_b64 exec, -1")
a("s_waitcnt lgkmcnt(8)")
def c1(u):
    e = edge(*u); return vr(e, 16) if e is not None else "0"
def pass2(sfx, fast, done):
    cc = (lambda u: c1(u)) if fast else (lambda u: vr(NM+16*u[0], 16))
    a(smf(*units[0], cc(units[0])))
    if fast: a("s_waitcnt lgkmcnt(4)")
    a("s_nop 11")
    first = {0: True, 1: True}
    def pv(task, v):
        vb = VV + 8*(v & 1); p = PP + 8*task; o = vr(OO+16*task, 16)
        return [f"v_mfma_f32_32x32x16_bf16 {o}, {vr(vb,4)}, {vr(p,4)}, {'0' if first[task] else o}",
                f"v_mfma_f32_32x32x16_bf16 {o}, {vr(vb+4,4)}, {vr(p+4,4)}, {o}"]
    exits = []
    pend = None
    for i, (task, v) in enumerate(units):
        if i + 1 < len(units): a(smf(*units[i+1], cc(units[i+1])))
        b = SS + 16*task; p = PP + 8*task
        e = edge(task, v)
        if e is not None and not fast:
            for k in range(16): a(f"v_add_f32 v{b+k}, v{b+k}, v{e+k}")
        for k in range(16):
            a(f"v_exp_f32 v{b+k}, v{b+k}")
            if pend is not None and k == 3:
                pt, pvv = pend
                if (pt, pvv) == (1, 9) or pt == 0: a("s_waitcnt lgkmcnt(0)")
                m = pv(pt, pvv); a(m[0])
            if pend is not None and k == 8:
                a(m[1]); first[pend[0]] = False
                pt, pvv = pend
                if pt == 1 and pvv >= 2: vread(pvv-2)
        a("s_nop 0")
        for k in range(8): a(f"v_cvt_pk_bf16_f32 v{p+k}, v{b+2*k}, v{b+2*k+1}")
        pend = (task, v)
        if fast and i == 2:
            a("s_cmp_lg_u32 s77, 0")
            a("s_cbranch_scc1 .Lfbdone")
            a("s_waitcnt vmcnt(0)")
            wpublish(76, T0)
            stamp(5)
            a.label(".Lfbdone")
        if task == 1 and v in (8, 6, 4, 2):
            a(f"s_cmp_eq_u32 s15, {v}")
            a(f"s_cbranch_scc1 .Lp2x{sfx}{v}")
            exits.append((v, pv(task, v)))
    a("s_waitcnt lgkmcnt(0)")
    for l in pv(*pend): a(l)
    a(f"s_branch {done}")
    for v, m in exits:
        a.label(f".Lp2x{sfx}{v}")
        a("s_nop 0")
        for l in m: a(l)
        a(f"s_branch {done}")
if FAST:
    vread(9); vread(8)
    a("s_waitcnt lgkmcnt(12)")
    pass2("f", True, ".Lfchk")
    a.label(".Lfchk")
    a("s_mov_b32 s72, 0x21800000")
    a("s_mov_b32 s73, 0x53800000")
    a("s_mov_b32 s74, 0x7f000000")
    a("s_waitcnt lgkmcnt(0)")
    a("s_nop 9")
    a("s_mov_b64 s[84:85], 0")
    for task in range(2):
        o = OO + 16*task
        a(f"v_cmp_nle_f32 vcc, s72, v{o+8}")
        a("s_or_b64 s[84:85], s[84:85], vcc")
        a(f"v_cmp_nge_f32 vcc, s73, v{o+8}")
        a("s_or_b64 s[84:85], s[84:85], vcc")
        a(f"v_max3_f32 v{T0}, abs(v{o}), abs(v{o+1}), abs(v{o+2})")
        a(f"v_max3_f32 v{T0}, abs(v{o+3}), abs(v{o+4}), v{T0}")
        a(f"v_max3_f32 v{T0}, abs(v{o+5}), abs(v{o+6}), v{T0}")
        a(f"v_max_f32 v{T0}, abs(v{o+7}), v{T0}")
        a(f"v_cmp_nge_f32 vcc, s74, v{T0}")
        a("s_or_b64 s[84:85], s[84:85], vcc")
    if FORCE_EXACT: a("s_mov_b64 s[84:85], 1")
    a("s_cmp_eq_u64 s[84:85], 0")
    a("s_cbranch_scc1 .Lp2done")
a(smf(*units[0], c1(units[0])))
a("s_waitcnt lgkmcnt(0)")
a("s_nop 7")
for i, (task, v) in enumerate(units):
    if i + 1 < len(units): a(smf(*units[i+1], c1(units[i+1])))
    a("s_nop 2")
    b = SS + 16*task
    for k in range(8):
        a(f"v_max3_f32 v{MM+2*task+(k&1)}, v{b+2*k}, v{b+2*k+1}, v{MM+2*task+(k&1)}")
    if task == 1 and v in (8, 6, 4, 2):
        a(f"s_cmp_eq_u32 s15, {v}")
        a("s_cbranch_scc1 .Lp1done")
a.label(".Lp1done")
vread(9)
vread(8)
for task in range(2):
    m = MM + 2*task
    a(f"v_max_f32 v{m}, v{m}, v{m+1}")
    a(f"v_mov_b32 v{m+1}, v{m}")
a("s_nop 1")
for task in range(2):
    m = MM + 2*task
    a(f"v_permlane32_swap_b32 v{m}, v{m+1}")
a("s_nop 1")
for task in range(2):
    m = MM + 2*task
    a(f"v_max_f32 v{m}, v{m}, v{m+1}")
for task in (1, 0):
    for i in range(16): a(f"v_sub_f32 v{NM+16*task+i}, 0, v{MM+2*task}")
a("s_nop 1")
if not FAST:
    a("s_cmp_lg_u32 s77, 0")
    a("s_cbranch_scc1 .Lfbdone0")
    a("s_waitcnt vmcnt(0)")
    wpublish(76, T0)
    stamp(5)
    a.label(".Lfbdone0")
pass2("e", False, ".Lp2done")
a.label(".Lp2done")
a(f"s_lshl_b32 s72, s{S_QB}, 3")
a("s_lshl_b32 s73, s3, 1")
a("s_add_u32 s72, s72, s73")
a("s_mul_i32 s72, s72, 118")
a(f"s_add_u32 s72, s72, s{S_HEAD}")
a("s_lshl_b32 s72, s72, 10")
a(f"s_add_u32 s72, s72, {AF + 86*1024}")
a(f"s_add_u32 s73, s72, {118*1024}")
a("s_waitcnt lgkmcnt(0)")
a(f"v_mov_b32 v{T0}, {CNT_LDS}")
a(f"v_mov_b32 v{T0+1}, 1")
a("s_mov_b64 exec, 1")
a(f"ds_add_u32 v{T0}, v{T0+1}")
a("s_mov_b64 exec, -1")
a("s_nop 7")
for task in (1, 0):
    o = OO + 16*task
    a(f"v_rcp_f32 v{MM}, v{o+8}")
    a("s_nop 0")
    for i in range(8): a(f"v_mul_f32 v{o+i}, v{o+i}, v{MM}")
    for i in range(4): a(f"v_cvt_pk_bf16_f32 v{o+i}, v{o+2*i}, v{o+2*i+1}")
    a(f"buffer_store_dwordx4 {vr(o,4)}, v{LN16}, {S4(WS_)}, s{72+task} offen{SC}")
stamp(6)
EW = 0; EH = 64
a(f"s_mul_i32 s72, s{S_CT}, {2*118}")
a("s_lshl_b32 s73, s3, 3")
a("s_add_u32 s72, s72, s73")
a("s_lshl_b32 s72, s72, 10")
a(f"s_add_u32 s72, s72, {WF + 86*1024}")
a(f"v_add_u32 v{T}, s72, v{LN16}")
a(f"v_add_u32 v{T+1}, {118*1024}, v{T}")
a(f"s_mul_i32 s72, s{S_RT}, {2*118*1024}")
a(f"s_add_u32 s72, s72, {AF}")
for rt in range(2):
    a(f"s_add_u32 s{76+4*rt}, s34, s72")
    a(f"s_addc_u32 s{77+4*rt}, s35, 0")
    a(f"s_mov_b32 s{78+4*rt}, {118*1024}")
    a(f"s_mov_b32 s{79+4*rt}, 0x00020000")
    a(f"s_add_u32 s72, s72, {118*1024}")
a(f"s_lshl_b32 s91, s{S_QB}, 2")
a("s_add_u32 s91, s91, s3")
a("s_lshl_b32 s91, s91, 5")
a(f"s_add_u32 s91, s91, s{S_HEAD}")
a("s_lshl_b32 s91, s91, 2")
a(f"s_add_u32 s91, s91, {F_C}")
a(f"v_mov_b32 v{T+2}, 0")
a(f"v_mov_b32 v{T+3}, s{S_NONCE}")
a("s_waitcnt vmcnt(0)")
a("s_mov_b64 exec, 1")
a(f"buffer_store_dword v{T+3}, v{T+2}, {S4(WS_)}, s91 offen{SC}")
a("s_mov_b64 exec, -1")
tick("pubC")
a(f"s_lshl_b32 s91, s{S_CT}, 7")
a("s_lshl_b32 s72, s3, 3")
a("s_add_u32 s91, s91, s72")
a("s_lshl_b32 s91, s91, 2")
a(f"s_add_u32 s91, s91, {F_W + 86*4}")
a("s_mov_b32 s84, 0xff")
a("s_mov_b32 s85, 0")
a(f"v_lshlrev_b32 v{T+2}, 2, v{L}")
poll_flags(91, 84, T+2, "fwe")
for k in range(8):
    if k == 4:
        a(f"v_add_u32 v{T}, 4096, v{T}")
        a(f"v_add_u32 v{T+1}, 4096, v{T+1}")
    a(f"buffer_load_dwordx4 {vr(EW+8*k,4)}, v{T}, {S4(WS_)}, 0 offen offset:{(k%4)*1024}")
    a(f"buffer_load_dwordx4 {vr(EW+8*k+4,4)}, v{T+1}, {S4(WS_)}, 0 offen offset:{(k%4)*1024}")
a(f"s_lshl_b32 s91, s{S_RT}, 7")
a(f"s_add_u32 s91, s91, {F_B}")
a(f"s_lshl_b32 s92, s{S_RT}, 7")
a(f"s_add_u32 s92, s92, {F_C}")
a("s_mov_b32 s84, -1")
a("s_mov_b32 s85, 0")
a(f"v_lshlrev_b32 v{T+2}, 2, v{L}")
a("s_cmp_lg_u32 s3, 0")
a("s_cbranch_scc1 .Lfc_wait")
a("s_mov_b32 exec_hi, 0")
a(f"s_mov_b32 s74, {SPIN}")
a.label(".Lfc_poll")
a(f"buffer_load_dword v{T+3}, v{T+2}, {S4(WS_)}, s92 offen{SC}")
a(f"buffer_load_dword v{T+4}, v{T+2}, {S4(WS_)}, s91 offen{SC}")
a("s_waitcnt vmcnt(0)")
a(f"v_cmp_ne_u32 vcc, s{S_NONCE}, v{T+3}")
a("s_and_b64 s[72:73], vcc, s[84:85]")
a(f"v_cmp_ne_u32 vcc, s{S_NONCE}, v{T+4}")
a("s_and_b32 s73, vcc_lo, 0x80008000")
a("s_or_b32 s72, s72, s73")
a("s_cbranch_scc0 .Lfc_ok")
a(f"s_sleep {PSLEEP}")
a("s_sub_u32 s74, s74, 1")
a("s_cmp_lg_u32 s74, 0")
a("s_cbranch_scc1 .Lfc_poll")
a.label(".Lfc_ok")
a("s_mov_b64 exec, -1")
lds_release(2, T+3)
a("s_branch .Lfc_go")
a.label(".Lfc_wait")
lds_wait_rel(2, T+3, "fc")
a.label(".Lfc_go")
stamp(7)
a("s_lshl_b32 s72, s3, 13")
a(f"s_add_u32 s72, s72, {86*1024}")
a(f"v_add_u32 v{T}, s72, v{LN16}")
for k in range(8):
    if k == 4: a(f"v_add_u32 v{T}, 4096, v{T}")
    a(f"buffer_load_dwordx4 {vr(EH+8*k,4)}, v{T}, s[76:79], 0 offen offset:{(k%4)*1024}")
    a(f"buffer_load_dwordx4 {vr(EH+8*k+4,4)}, v{T}, s[80:83], 0 offen offset:{(k%4)*1024}")
a(f"v_and_b32 v{T+2}, 31, v{L}")
a(f"v_lshlrev_b32 v{T+2}, 2, v{T+2}")
a(f"s_lshl_b32 s72, s{S_RT}, 8")
a(f"s_add_u32 s72, s72, {GOFF}")
a(f"buffer_load_dword v{GV}, v{T+2}, {S4(WS_)}, s72 offen")
a(f"buffer_load_dword v{GV+1}, v{T+2}, {S4(WS_)}, s72 offen offset:128")
for k in range(8):
    a(f"s_waitcnt vmcnt({2*(7-k)+2})")
    for nt in range(2):
        for rt in range(2):
            acc = vr(DACC+(nt*2+rt)*16, 16)
            a(f"v_mfma_f32_32x32x16_bf16 {acc}, {vr(EW+8*k+4*nt,4)}, {vr(EH+8*k+4*rt,4)}, {'0' if k == 0 else acc}")
a("s_waitcnt vmcnt(0)")
a(f"s_lshl_b32 s90, s3, 14")
a(f"s_add_u32 s90, s90, {EAREA}")
a(f"v_mov_b32 v{T}, {CNT_LDS}")
a(f"s_mov_b32 s74, {SPIN}")
a.label(".Lcnt_poll")
a(f"ds_read_b32 v{T+1}, v{T}")
a("s_waitcnt lgkmcnt(0)")
a(f"v_readfirstlane_b32 s72, v{T+1}")
a("s_cmp_eq_u32 s72, 4")
a("s_cbranch_scc1 .Lreduce")
a("s_sub_u32 s74, s74, 1")
a("s_cmp_lg_u32 s74, 0")
a("s_cbranch_scc1 .Lcnt_poll")

a.label(".Lreduce")
stamp(8)
a(f"v_and_b32 v1, 31, v{L}")
a(f"v_lshrrev_b32 v3, 5, v{L}")
a(f"v_and_b32 v6, 15, v{L}")
a("v_lshlrev_b32 v1, 8, v1")
a("v_add_u32 v1, s90, v1")
a("v_xor_b32 v3, v3, v6")
a("s_nop 4")
for nt in range(2):
    for rt in range(2):
        r = DACC + (nt*2+rt)*16
        for i in range(16): a(f"v_mul_f32 v{r+i}, v{r+i}, v{GV+rt}")
for s in range(8):
    a(f"v_xor_b32 v7, {2*s}, v3")
    a(f"v_lshl_add_u32 v{8+s}, v7, 4, v1")
for nt in range(2):
    for rt in range(2):
        for qq in range(4):
            a(f"ds_write_b128 v{8+nt*4+qq}, {vr(DACC+(nt*2+rt)*16+4*qq,4)} offset:{rt*8192}")
a("s_waitcnt lgkmcnt(0)")
a("s_barrier")
stamp(9)
a(f"v_lshrrev_b32 v1, 3, v{L}")
a("s_lshl_b32 s72, s3, 3")
a("v_add_u32 v1, s72, v1")
a(f"v_and_b32 v3, 7, v{L}")
a("v_and_b32 v6, 15, v1")
a("v_lshlrev_b32 v7, 1, v3")
a("v_xor_b32 v7, v7, v6")
a("v_xor_b32 v6, 1, v7")
a("v_lshlrev_b32 v4, 8, v1")
a("v_lshl_add_u32 v7, v7, 4, v4")
a("v_lshl_add_u32 v6, v6, 4, v4")
a(f"v_add_u32 v4, {EAREA}, v7")
a(f"v_add_u32 v5, {EAREA}, v6")
a(f"v_add_u32 v2, {DAREA[2]}, v7")
a(f"v_add_u32 v0, {DAREA[2]}, v6")
for w in range(4):
    a(f"ds_read_b128 {vr(8+w*8,4)}, v4 offset:{w*ESZ}")
    a(f"ds_read_b128 {vr(12+w*8,4)}, v5 offset:{w*ESZ}")
for w in range(4):
    a(f"ds_read_b128 {vr(40+w*8,4)}, v{7 if w < 2 else 2} offset:{(w&1)*24576}")
    a(f"ds_read_b128 {vr(44+w*8,4)}, v{6 if w < 2 else 0} offset:{(w&1)*24576}")
a("s_waitcnt lgkmcnt(0)")
for step in (32, 16, 8):
    for i in range(step):
        a(f"v_add_f32 v{8+i}, v{8+i}, v{8+step+i}")
for i in range(4): a(f"v_cvt_pk_bf16_f32 v{8+i}, v{8+2*i}, v{8+2*i+1}")
a(f"s_lshl_b32 s72, s{S_RT}, 16")
a(f"s_lshl_b32 s73, s{S_CT}, 7")
a("s_add_u32 s72, s72, s73")
a("v_lshlrev_b32 v1, 10, v1")
a("v_lshl_add_u32 v1, v3, 4, v1")
a(f"buffer_store_dwordx4 v[8:11], v1, {S4(OUT_)}, s72 offen")
if DIAG:
    a("s_cmp_lg_u32 s3, 2")
    a("s_cbranch_scc1 .Lend")
    a("s_waitcnt vmcnt(0)")
    a("s_memrealtime s[72:73]")
    a("s_waitcnt lgkmcnt(0)")
    a("v_mov_b32 v1, 12")
    a("v_mov_b32 v2, s72")
    a("s_mov_b64 exec, 1")
    a(f"buffer_atomic_umax v2, v1, {S4(DBG_)}, 0 offen{SC}")
if PROF:
    a("s_waitcnt vmcnt(0)")
    stamp(10)
    a("s_memtime s[98:99]")
    a("s_waitcnt lgkmcnt(0)")
    a("v_writelane_b32 v255, s98, 13")
    a("s_lshl_b32 s72, s2, 3")
    a("s_add_u32 s72, s72, s3")
    a("s_lshl_b32 s72, s72, 8")
    a(f"s_add_u32 s72, s72, {PROFOFF}")
    a(f"v_lshlrev_b32 v1, 2, v{L}")
    a(f"buffer_store_dword v255, v1, {S4(WS_)}, s72 offen")
    json.dump(ticks, open("ticks.json", "w"))
a.label(".Lend")

KN = "gated_mix__sliding_block__dense_activation_relu__prompt_kernel"
hdr = open("gated_mix__sliding_block__dense_activation_relu__prompt.s.ref").read().split("; Override launch")[0]
out = hdr + "; @launch grid=(256,1,1) block=(512,1,1) lds=163840\n"
out += '.amdgcn_target "amdgcn-amd-amdhsa--gfx950"\n'
body = a.text()
import subprocess, re
tmp = out + kernel_wrap(KN, body.replace("CODE_KB", "20"), 256, 100)
open("_t.s", "w").write(tmp)
subprocess.run(["clang", "-x", "assembler", "-target", "amdgcn-amd-amdhsa", "-mcpu=gfx950", "-c", "_t.s", "-o", "_t.o"], check=True)
h = subprocess.run(["llvm-objdump", "-h", "_t.o"], capture_output=True, text=True).stdout
sz = int(re.search(r"\.text\s+([0-9a-f]+)", h).group(1), 16)
print("code bytes", sz)
out += kernel_wrap(KN, body.replace("CODE_KB", str(min(32, sz // 1024))), 256, 100)
open(sys.argv[1], "w").write(out)
```

```python
import sys, os, json
from asmlib import *

QF, KF, VF = 0x000000, 0x200000, 0x400000
AF = 0x600000
WF = 0xE00000
GOFF = 0x1000000
FLG = 0x1010000
F_A, F_AL, F_B, F_C, F_W = FLG, FLG+0x1000, FLG+0x2000, FLG+0x3000, FLG+0x5000
WSBYTES = 0x1600000
CSCALE = 0x3EB8AA3B
NINF = 0xFF800000
PROF = len(sys.argv) > 2 and sys.argv[2] == "prof"
PROFOFF = 0x1080000
SC = " sc1"
SPIN = 1 << 14
PSLEEP = int(os.environ.get("PSLEEP", "2"))
WFP = int(os.environ.get("WFP", "3"))
CPF = int(os.environ.get("CPF", "1"))
DIAG = int(os.environ.get("DIAG", "0"))
GMASK = int(os.environ.get("GMASK", "3"))
PRIO = int(os.environ.get("PRIO", "0"))
NONP = int(os.environ.get("NONP", "4"))
B23_T = int(os.environ.get("B23_T", "14"))
W2WAIT = int(os.environ.get("W2WAIT", "0"))
FSLEEP = int(os.environ.get("FSLEEP", "1"))
KNAME = "gated_mix__sliding_block__dense_activation_relu__prompt_kernel"
NP1 = int(os.environ.get("NP1", "3"))
NP2 = int(os.environ.get("NP2", "1"))
PFW1 = int(os.environ.get("PFW1", "0"))
LOCAL = 0
PUBA_T = int(os.environ.get("PUBA_T", "12"))
K2F, V2F = 0x1200000, 0x1400000

a = Asm()
def stamp(i):
    if PROF:
        a("s_memrealtime s[98:99]")
        a("s_waitcnt lgkmcnt(0)")
        a(f"v_writelane_b32 v255, s98, {i}")
ticks = {}
def tick(name):
    if PROF:
        if name not in ticks: ticks[name] = 16 + len(ticks)
        assert ticks[name] < 64
        stamp(ticks[name])

XS = lambda k: k*16384
WSL = lambda k: 65536 + k*16384
BH = [131072, 139264, 0, 8192, 73728, 16384, 24576, 81920]
BOUNCE = 147456
NONCE_LDS = 155648
STG = 32768
GATE_LDS = 114688
EAREA = 32768; ESZ = 16384
DAREA = [0, 16384, 98304, 114688]
NSL = 8
S_G = 96
CNT_LDS = NONCE_LDS + 4; REL_LDS = NONCE_LDS + 8

S_XCD, S_IDX, S_RB, S_J, S_HEAD, S_QB, S_RT, S_CT, S_ROT, S_NONCE = 4, 5, 6, 7, 8, 9, 10, 11, 12, 13
X_, WQ_, WS_, W1_, WT_, OUT_, DBG_, GT_ = 36, 40, 44, 48, 52, 60, 64, 68
def S4(b): return f"s[{b}:{b+3}]"

class Q:
    def __init__(self, kind, cap): self.q = []; self.kind = kind; self.cap = cap
    def issue(self, tag, n=1): self.q.extend([tag]*n)
    def wait(self, *tags):
        idx = [i for i, t in enumerate(self.q) if t in tags]
        if not idx: return
        n = len(self.q) - 1 - max(idx)
        a(f"s_waitcnt {self.kind}({min(n, self.cap)})")
        self.q = self.q[max(idx)+1:]
    def drain(self): self.q = []

def poll_flags(off_sreg, mask, vtmp, name, pre=False):
    a(f"s_mov_b32 s74, {SPIN}")
    a.label(f".L{name}_poll")
    a(f"buffer_load_dword v{vtmp+1}, v{vtmp}, {S4(WS_)}, s{off_sreg} offen{SC}")
    a("s_waitcnt vmcnt(0)")
    a(f"v_cmp_ne_u32 vcc, s{S_NONCE}, v{vtmp+1}")
    a(f"s_and_b64 s[72:73], vcc, s[{mask}:{mask+1}]")
    a(f"s_cbranch_scc0 .L{name}_ok")
    a(f"s_sleep {PSLEEP}")
    a("s_sub_u32 s74, s74, 1")
    a("s_cmp_lg_u32 s74, 0")
    a(f"s_cbranch_scc1 .L{name}_poll")
    a.label(f".L{name}_ok")

def publish(off_sreg, vtmp, dual=False):
    l = a.newlabel("pub")
    a("s_cmp_lg_u32 s3, 0")
    a(f"s_cbranch_scc1 {l}")
    a("s_mov_b64 exec, 1")
    a(f"v_mov_b32 v{vtmp}, 0")
    a(f"v_mov_b32 v{vtmp+1}, s{S_NONCE}")
    if dual: a(f"buffer_store_dword v{vtmp+1}, v{vtmp}, {S4(WS_)}, s{off_sreg} offen offset:{0x2000 & 0xfff | 0x800}")
    a(f"buffer_store_dword v{vtmp+1}, v{vtmp}, {S4(WS_)}, s{off_sreg} offen{SC}")
    a("s_mov_b64 exec, -1")
    a.label(l)

def wpublish(off_sreg, vtmp, dual=False):
    a("s_mov_b64 exec, 1")
    a(f"v_mov_b32 v{vtmp}, 0")
    a(f"v_mov_b32 v{vtmp+1}, s{S_NONCE}")
    if dual:
        a(f"s_add_u32 s72, s{off_sreg}, 0x1000")
        a(f"buffer_store_dword v{vtmp+1}, v{vtmp}, {S4(WS_)}, s72 offen")
    a(f"buffer_store_dword v{vtmp+1}, v{vtmp}, {S4(WS_)}, s{off_sreg} offen{SC}")
    a("s_mov_b64 exec, -1")

PSLEEP = int(os.environ.get("PSLEEP", "2"))
def lds_release(i, vt):
    a(f"v_mov_b32 v{vt}, {REL_LDS + 4*i}")
    a(f"v_mov_b32 v{vt+1}, 1")
    a(f"ds_write_b32 v{vt}, v{vt+1}")
def lds_add(i, vt):
    a(f"v_mov_b32 v{vt}, {REL_LDS + 4*i}")
    a(f"v_mov_b32 v{vt+1}, 1")
    a("s_mov_b64 exec, 1")
    a(f"ds_add_u32 v{vt}, v{vt+1}")
def lds_wait_cnt(i, n, vt, name):
    a(f"v_mov_b32 v{vt}, {REL_LDS + 4*i}")
    a(f"s_mov_b32 s74, {SPIN*16}")
    a.label(f".L{name}_cw")
    a(f"ds_read_b32 v{vt+1}, v{vt}")
    a("s_waitcnt lgkmcnt(0)")
    a(f"v_readfirstlane_b32 s72, v{vt+1}")
    a(f"s_cmp_eq_u32 s72, {n}")
    a(f"s_cbranch_scc1 .L{name}_cok")
    a("s_sleep 1")
    a("s_sub_u32 s74, s74, 1")
    a("s_cmp_lg_u32 s74, 0")
    a(f"s_cbranch_scc1 .L{name}_cw")
    a.label(f".L{name}_cok")
def lds_wait_rel(i, vt, name):
    a(f"v_mov_b32 v{vt}, {REL_LDS + 4*i}")
    a(f"s_mov_b32 s74, {SPIN*16}")
    a.label(f".L{name}_lw")
    a(f"ds_read_b32 v{vt+1}, v{vt}")
    a("s_waitcnt lgkmcnt(0)")
    a(f"v_readfirstlane_b32 s72, v{vt+1}")
    a("s_cmp_lg_u32 s72, 0")
    a(f"s_cbranch_scc1 .L{name}_lok")
    a("s_sleep 1")
    a("s_sub_u32 s74, s74, 1")
    a("s_cmp_lg_u32 s74, 0")
    a(f"s_cbranch_scc1 .L{name}_lw")
    a.label(f".L{name}_lok")

def inter(m, r):
    out = []; per = -(-len(r) // len(m)) if r else 0; ri = 0
    for mm in m:
        out.append(mm)
        for _ in range(per):
            if ri < len(r): out.append(r[ri]); ri += 1
    return out

a("s_cmp_ge_u32 s2, 256")
a("s_cbranch_scc1 .Lend")
a("s_load_dwordx16 s[16:31], s[0:1], 0")
a("s_load_dwordx4 s[32:35], s[0:1], 64")
if PROF: a("v_mov_b32 v255, 0")
stamp(0)
if PROF:
    a("s_memtime s[98:99]")
    a("s_waitcnt lgkmcnt(0)")
    a("v_writelane_b32 v255, s98, 12")
a("v_lshrrev_b32 v1, 6, v0")
a("v_and_b32 v0, 63, v0")
a("v_readfirstlane_b32 s3, v1")
a(f"s_and_b32 s{S_XCD}, s2, 7")
a(f"s_lshr_b32 s{S_IDX}, s2, 3")
a(f"s_and_b32 s72, s{S_XCD}, 1")
a(f"s_lshr_b32 s73, s{S_XCD}, 1")
a(f"s_and_b32 s74, s{S_IDX}, 7")
a(f"s_lshr_b32 s75, s{S_IDX}, 3")
a(f"s_lshl_b32 s{S_RB}, s72, 3")
a(f"s_add_u32 s{S_RB}, s{S_RB}, s74")
a(f"s_lshl_b32 s{S_J}, s73, 2")
a(f"s_add_u32 s{S_J}, s{S_J}, s75")
a(f"s_lshl_b32 s{S_ROT}, s75, 1")
a(f"s_add_u32 s{S_ROT}, s{S_ROT}, s74")
a(f"s_and_b32 s{S_ROT}, s{S_ROT}, 7")
a(f"s_lshl_b32 s{S_HEAD}, s73, 3")
a(f"s_add_u32 s{S_HEAD}, s{S_HEAD}, s74")
a(f"s_lshl_b32 s{S_QB}, s72, 2")
a(f"s_add_u32 s{S_QB}, s{S_QB}, s75")
a(f"s_lshl_b32 s{S_RT}, s{S_XCD}, 2")
a(f"s_add_u32 s{S_RT}, s{S_RT}, s75")
a(f"s_mov_b32 s{S_CT}, s74")
a(f"s_mov_b32 s{S_NONCE}, 0")
a("s_and_b32 s14, s3, 3")
a(f"s_lshr_b32 s97, s{S_IDX}, 3")
a(f"s_lshr_b32 s{S_G}, s{S_XCD}, 1")
a(f"s_mul_i32 s95, s{S_G}, 12")
a("s_lshl_b32 s72, s97, 1")
a("s_add_u32 s72, s72, 6")
a("s_cmp_eq_u32 s97, 3")
a("s_cselect_b32 s72, 4, s72")
a("s_add_u32 s94, s95, s72")
a(f"s_lshl_b32 s93, s{S_RB}, 2")
a("s_add_u32 s93, s93, s14")
a("s_cmp_lt_u32 s3, 4")
a("s_cbranch_scc1 .Lcompute")

if PRIO == 3: a("s_setprio 3")
VX = 240; VWA = 244; VWB = 245; VWB2 = 246; LN16 = 247; T = 248; L = 254
a(f"v_mov_b32 v{L}, v0")
a("v_lshrrev_b32 v1, 3, v0")
a("v_and_b32 v2, 7, v0")
a("v_lshrrev_b32 v3, 4, v0")
a(f"s_lshl_b32 s72, s{S_RB}, 7")
a("s_lshl_b32 s73, s14, 5")
a("s_add_u32 s72, s72, s73")
for j in range(4):
    a(f"v_add_u32 v4, {4*(j&1)}, v3")
    a("v_xor_b32 v4, v4, v2")
    a("v_lshlrev_b32 v4, 4, v4")
    a(f"v_add_u32 v5, {8*j}, v1")
    a("v_add_u32 v5, s72, v5")
    a(f"v_lshl_add_u32 v{VX+j}, v5, 10, v4")
a("v_lshrrev_b32 v1, 2, v0")
a("s_lshl_b32 s72, s14, 4")
a("v_add_u32 v6, s72, v1")
a("v_and_b32 v2, 3, v0")
a("v_lshlrev_b32 v2, 4, v2")
a("s_cmp_eq_u32 s97, 3")
a("s_mov_b32 s86, 3072")
a("s_cselect_b32 s86, 2752, s86")
a("s_lshl_b32 s72, s97, 10")
a(f"s_lshl_b32 s73, s{S_G}, 8")
a("s_add_u32 s72, s72, s73")
a("s_lshl_b32 s73, s95, 6")
a("s_cmp_eq_u32 s97, 3")
a("s_cselect_b32 s72, s73, s72")
a(f"v_mul_lo_u32 v{VWA}, v6, s86")
a(f"v_add3_u32 v{VWA}, v{VWA}, v2, s72")
a("s_lshl_b32 s86, s86, 6")
a(f"s_lshl_b32 s78, s{S_ROT}, 7")
a(f"s_mul_i32 s79, s{S_ROT}, s86")
a(f"s_mul_i32 s80, s{S_ROT}, {64*2752}")
a("s_lshl_b32 s81, s14, 12")
a("s_lshl_b32 s82, s14, 10")
a("s_waitcnt lgkmcnt(0)")
srd(a, X_, 16, 2048*1024)
a("s_cmp_eq_u32 s97, 3")
a(f"s_cselect_b32 s{WQ_}, s24, s18")
a(f"s_cselect_b32 s{WQ_+1}, s25, s19")
a(f"s_mov_b32 s{WQ_+2}, {512*3072}")
a(f"s_cselect_b32 s{WQ_+2}, {512*2752}, s{WQ_+2}")
a(f"s_mov_b32 s{WQ_+3}, 0x00020000")
vq = Q("vmcnt", 63)
def issue_A(p):
    slot = p % 4
    for j in range(4):
        a(f"s_add_u32 m0, s81, {XS(slot) + j*1024}")
        a("s_nop 0")
        a(f"buffer_load_dwordx4 v{VX+j}, {S4(X_)}, s78 offen lds")
    for b in range(4):
        a(f"s_add_u32 m0, s82, {WSL(slot) + b*4096 - b*64}")
        a("s_nop 0")
        a(f"buffer_load_dwordx4 v{VWA}, {S4(WQ_)}, s79 offen offset:{b*64} lds")
    a("s_add_u32 s78, s78, 128")
    a("s_add_u32 s79, s79, s86")
    a("s_cmp_eq_u32 s78, 1024")
    a("s_cselect_b32 s78, 0, s78")
    a("s_cselect_b32 s79, 0, s79")
    vq.issue(("A", p), 8)
def issue_Bhalf(h):
    for b in range(2):
        a(f"s_add_u32 m0, s82, {BH[h] + b*4096 - b*64}")
        a("s_nop 0")
        a(f"buffer_load_dwordx4 v{VWB}, {S4(W1_)}, s80 offen offset:{b*64} lds")
    a(f"s_add_u32 s80, s80, {64*2752}")
    a(f"s_cmp_eq_u32 s80, {512*2752}")
    a("s_cselect_b32 s80, 0, s80")
    vq.issue(("B", h), 2)
SCH = "c"
issue_A(0)
issue_A(1)
srd(a, WS_, 34, WSBYTES)
srd(a, W1_, 24, 512*2752)
srd(a, OUT_, 30, 2048*1024)
a("s_lshl_b32 s72, s94, 6")
a("s_cmp_lt_u32 s94, 43")
a("s_cselect_b32 s72, s72, 0x40000000")
a(f"v_mul_u32_u24 v{VWB}, 2752, v6")
a(f"v_add3_u32 v{VWB}, v{VWB}, v2, s72")
a(f"v_lshlrev_b32 v{LN16}, 4, v0")
srd(a, DBG_, 32, 256)
a(f"s_lshl_b32 s83, s{S_IDX}, 2")
a("s_add_u32 s83, s83, s14")
a("s_cmp_lt_u32 s83, 86")
a(f"s_cselect_b32 s{WT_}, s26, s20")
a(f"s_cselect_b32 s{WT_+1}, s27, s21")
a(f"s_mov_b32 s{WT_+2}, {1376*1024}")
a(f"s_cselect_b32 s{WT_+2}, s{WT_+2}, {512*1024}")
a(f"s_mov_b32 s{WT_+3}, 0x00020000")
a("s_cselect_b32 s84, 0, 86")
a("s_sub_u32 s84, s83, s84")
a("s_lshl_b32 s84, s84, 14")
a(f"s_lshl_b32 s85, s{S_XCD}, 7")
a("s_add_u32 s84, s84, s85")
a("v_lshlrev_b32 v8, 10, v1")
a("v_add_u32 v8, v8, v2")
a("s_lshl_b32 s85, s14, 11")
a(f"s_add_u32 s85, s85, {BOUNCE}")
a("v_lshrrev_b32 v9, 5, v0")
a("v_lshlrev_b32 v9, 8, v9")
a("v_bfe_u32 v4, v0, 2, 2")
a("v_lshl_add_u32 v9, v4, 6, v9")
a("v_bfe_u32 v4, v0, 4, 1")
a("v_lshl_add_u32 v9, v4, 5, v9")
a("v_and_b32 v4, 3, v0")
a("v_lshl_add_u32 v9, v4, 3, v9")
a("v_add_u32 v9, s85, v9")
a("v_mov_b32 v10, 0")
BSCHED = {0: [0], 4: [1], 5: [2, 3, 4], 6: [5, 6, 7]}
for p in range(8):
    vq.wait(("A", p))
    a("s_barrier")
    if p == 0: stamp(1)
    if p == 0 and SCH != "a": issue_A(2)
    if p + 3 < 8: issue_A(p+3)
    if p == NONP:
        a(f"buffer_load_dword v11, v10, {S4(DBG_)}, 0 offen{SC}")
        vq.issue("nonce", 1)
    for h in BSCHED.get(p, []): issue_Bhalf(h)
    if p == WFP:
        a("s_mov_b32 m0, s85")
        a("s_nop 0")
        a(f"buffer_load_dwordx4 v8, {S4(WT_)}, s84 offen lds")
        a("s_add_u32 m0, s85, 960")
        a("s_nop 0")
        a(f"buffer_load_dwordx4 v8, {S4(WT_)}, s84 offen offset:64 lds")
        vq.issue("wfld", 2)
vq.wait("nonce")
a(f"v_readfirstlane_b32 s{S_NONCE}, v11")
a(f"s_cmp_lg_u32 s{S_NONCE}, 0")
a("s_cbranch_scc1 .Lnonce_ok")
a(f"s_mov_b32 s74, {SPIN}")
a.label(".Lnonce_poll")
a("s_sleep 1")
a(f"buffer_load_dword v11, v10, {S4(DBG_)}, 0 offen{SC}")
a("s_waitcnt vmcnt(0)")
a(f"v_readfirstlane_b32 s{S_NONCE}, v11")
a(f"s_cmp_lg_u32 s{S_NONCE}, 0")
a("s_cbranch_scc1 .Lnonce_ok")
a("s_sub_u32 s74, s74, 1")
a("s_cmp_lg_u32 s74, 0")
a("s_cbranch_scc1 .Lnonce_poll")
a.label(".Lnonce_ok")
a(f"v_mov_b32 v4, {NONCE_LDS}")
a("ds_write_b32 v4, v11")
for i_ in range(1, 8): a(f"ds_write_b32 v4, v10 offset:{4*i_}")
a("s_waitcnt lgkmcnt(0)")
stamp(2)
a(f"v_lshlrev_b32 v{T+2}, 2, v{L}")
vq.wait("wfld")
for i in range(4): a(f"ds_read_b64_tr_b16 v[{12+2*i}:{13+2*i}], v9 offset:{512*i}")
a(f"s_mul_i32 s84, s{S_XCD}, {2*118}")
a("s_add_u32 s84, s84, s83")
a("s_lshl_b32 s84, s84, 10")
a(f"s_add_u32 s84, s84, {WF}")
a("s_cmp_lt_u32 s83, 118")
a("s_cselect_b32 s84, s84, 0x40000000")
a(f"s_add_u32 s85, s84, {118*1024}")
a("s_waitcnt lgkmcnt(0)")
a(f"buffer_store_dwordx4 v[12:15], v{LN16}, {S4(WS_)}, s84 offen{SC}")
a(f"buffer_store_dwordx4 v[16:19], v{LN16}, {S4(WS_)}, s85 offen{SC}")
a(f"s_lshl_b32 s90, s{S_XCD}, 7")
a("s_add_u32 s90, s90, s83")
a("s_lshl_b32 s90, s90, 2")
a(f"s_add_u32 s90, s90, {F_W}")
vq.issue("wfst", 2)
vq.wait(("B", 3))
a("s_barrier")
vq.wait(("B", 7))
a("s_barrier")
stamp(3)
a("s_mov_b32 s85, 0")
a("s_waitcnt vmcnt(0)")
wpublish(90, T+3)
a("s_cmp_lg_u32 s3, 4")
a("s_cbranch_scc1 .Lfa_wait")
a(f"s_lshr_b32 s76, s{S_HEAD}, 2")
a("s_lshl_b32 s76, s76, 9")
a(f"s_lshl_b32 s77, s{S_QB}, 6")
a("s_add_u32 s76, s76, s77")
a(f"s_add_u32 s76, s76, {F_A - 64}")
a("s_add_u32 s77, s76, 0x1000")
a("s_mov_b32 s84, 0x77776666")
a(f"s_cmp_eq_u32 s{S_QB}, 0")
a("s_cselect_b32 s84, 0x77770000, s84")
a(f"s_cmp_eq_u32 s{S_QB}, 4")
a(f"s_cselect_b32 s75, 0, {GMASK}")
a(f"s_mov_b32 s74, {SPIN}")
a("s_mov_b32 exec_hi, 0")
a.label(".Lfa_poll")
a(f"buffer_load_dword v{T+3}, v{T+2}, {S4(WS_)}, s77 offen{SC}")
a("s_waitcnt vmcnt(0)")
a(f"v_cmp_ne_u32 vcc, s{S_NONCE}, v{T+3}")
a("s_and_b64 s[84:85], vcc, s[84:85]")
a("s_cbranch_scc0 .Lfa_ok")
a("s_and_b32 s72, s74, s75")
a("s_cmp_lg_u32 s72, 0")
a("s_cbranch_scc1 .Lfa_skipg")
a(f"buffer_load_dword v{T+4}, v{T+2}, {S4(WS_)}, s76 offen{SC}")
a("s_waitcnt vmcnt(0)")
a(f"v_cmp_ne_u32 vcc, s{S_NONCE}, v{T+4}")
a("s_and_b64 s[84:85], vcc, s[84:85]")
a("s_cbranch_scc0 .Lfa_ok")
a.label(".Lfa_skipg")
a(f"s_sleep {FSLEEP}")
a("s_sub_u32 s74, s74, 1")
a("s_cmp_lg_u32 s74, 0")
a("s_cbranch_scc1 .Lfa_poll")
a.label(".Lfa_ok")
a("s_mov_b64 exec, -1")
lds_release(0, T+3)
a("s_branch .Lfa_go")
a.label(".Lfa_wait")
lds_wait_rel(0, T+3, "fa")
a.label(".Lfa_go")
stamp(11)
a(f"s_lshl_b32 s72, s{S_HEAD}, 6")
a(f"s_lshl_b32 s73, s{S_QB}, 3")
a("s_add_u32 s72, s72, s73")
a("s_lshl_b32 s72, s72, 10")
a("s_lshl_b32 s73, s14, 11")
a("s_add_u32 s73, s73, s72")
a("s_add_u32 s74, s72, s81")
a(f"s_add_u32 s74, s74, {KF - 8192}")
a(f"s_lshl_b32 s75, s{S_QB}, 2")
a("s_add_u32 s75, s75, s14")
a("s_cmp_lt_u32 s75, 2")
a("s_cselect_b32 s74, 0x40000000, s74")
a(f"s_add_u32 s75, s74, {VF - KF}")
a(f"s_add_u32 m0, s81, {STG}")
a("s_nop 0")
for i in range(4): a(f"buffer_load_dwordx4 v{LN16}, {S4(WS_)}, s74 offen offset:{i*1024} lds")
a("s_lshl_b32 s74, s14, 11")
a(f"s_add_u32 m0, s74, {STG + 32768}")
a("s_nop 0")
for i in range(2): a(f"buffer_load_dwordx4 v{LN16}, {S4(WS_)}, s73 offen offset:{i*1024} lds")
a(f"s_add_u32 m0, s81, {STG + 16384}")
a("s_nop 0")
for i in range(4): a(f"buffer_load_dwordx4 v{LN16}, {S4(WS_)}, s75 offen offset:{i*1024} lds")
vq.drain()
vq.issue("stg", 10)
a("s_mul_i32 s86, s14, 22")
a("s_cmp_eq_u32 s14, 3")
a("s_cselect_b32 s86, 65, s86")
a("s_add_u32 s87, s86, 22")
a("s_cmp_ge_u32 s14, 2")
a("s_cselect_b32 s88, 1, 0")
a("s_sub_u32 s87, s87, s88")
a(f"s_mul_i32 s92, s{S_CT}, 3")
a("s_mul_i32 s72, s97, 5")
a("s_add_u32 s92, s92, s72")
a("s_cmp_ge_u32 s92, 22")
a("s_cselect_b32 s72, 22, 0")
a("s_sub_u32 s92, s92, s72")
a("s_lshl_b32 s92, s92, 10")
a("s_mov_b32 s93, s92")
a(f"s_mul_i32 s72, s{S_CT}, {2*118}")
a("s_add_u32 s72, s72, s86")
a("s_lshl_b32 s72, s72, 10")
a(f"s_add_u32 s72, s72, {WF}")
a(f"v_add_u32 v{T}, s72, v{LN16}")
a(f"v_add_u32 v{T+1}, {118*1024}, v{T}")
a(f"s_mul_i32 s72, s{S_RT}, {2*118*1024}")
a(f"s_add_u32 s72, s72, {AF}")
a("s_lshl_b32 s73, s87, 10")
for rt in range(2):
    a(f"s_add_u32 s{76+4*rt}, s34, s72")
    a(f"s_addc_u32 s{77+4*rt}, s35, 0")
    a(f"s_mov_b32 s{78+4*rt}, s73")
    a(f"s_mov_b32 s{79+4*rt}, 0x00020000")
    a(f"s_add_u32 s72, s72, {118*1024}")
a(f"s_lshl_b32 s89, s14, 14")
a("s_cmp_ge_u32 s14, 2")
a(f"s_cselect_b32 s72, {98304 - 32768}, 0")
a("s_add_u32 s89, s89, s72")
a(f"s_lshl_b32 s91, s{S_CT}, 7")
a("s_add_u32 s91, s91, s86")
a("s_lshl_b32 s91, s91, 2")
a(f"s_add_u32 s91, s91, {F_W}")
a("s_mov_b32 s84, 0x3fffff")
a("s_mov_b32 s85, 0")
a("s_mov_b32 exec_hi, 0")
a(f"buffer_load_dword v{T+3}, v{T+2}, {S4(WS_)}, s91 offen{SC}")
a("s_waitcnt vmcnt(1)")
lds_add(3, T+4)
a("s_mov_b32 exec_lo, -1")
stamp(4)
a("s_waitcnt vmcnt(0)")
a(f"v_cmp_ne_u32 vcc, s{S_NONCE}, v{T+3}")
a("s_and_b64 s[72:73], vcc, s[84:85]")
a("s_cbranch_scc0 .Lfw_ok")
poll_flags(91, 84, T+2, "fw")
a("s_mov_b64 exec, -1")
vq.drain()
if W2WAIT: lds_wait_cnt(3, 4, T+3, "sw")
tick("fwOK")
if PRIO == 3: a("s_setprio 0")
W2R = 0; DACC = 160; HB = 224; NPRE = 20
def w2load(k):
    f = W2R + (k % NPRE)*8
    a(f"buffer_load_dwordx4 {vr(f,4)}, v{T}, {S4(WS_)}, s92 offen")
    a(f"buffer_load_dwordx4 {vr(f+4,4)}, v{T+1}, {S4(WS_)}, s92 offen")
    a("s_add_u32 s92, s92, 1024")
    a(f"s_cmp_eq_u32 s92, {22*1024}")
    a("s_cselect_b32 s92, 0, s92")
    vq.issue(("w", k), 2)
for k in range(NPRE): w2load(k)
tick("w2iss")
a(f"s_lshl_b32 s91, s{S_RT}, 7")
a(f"s_add_u32 s91, s91, {F_B}")
a("s_mov_b32 s84, -1")
a("s_cmp_lg_u32 s3, 4")
a("s_cbranch_scc1 .Lfb_wait")
a("s_mov_b32 exec_hi, 0")
poll_flags(91, 84, T+2, "fb")
a("s_mov_b64 exec, -1")
lds_wait_cnt(4, 4, T+3, "bd")
lds_release(1, T+3)
a("s_branch .Lfb_go")
a.label(".Lfb_wait")
lds_wait_rel(1, T+3, "fb")
a.label(".Lfb_go")
stamp(7)
a("s_lshl_b32 s72, s86, 10")
a(f"v_add_u32 v{T+4}, s72, v{LN16}")
a(f"v_add_u32 v{T+5}, s89, v{LN16}")
def hdma(k):
    sl = k % NSL
    for rt in range(2):
        a(f"s_add_u32 m0, s89, {sl*2048 + rt*1024}")
        a("s_nop 0")
        a(f"buffer_load_dwordx4 v{T+4}, s[{76+4*rt}:{79+4*rt}], s93 offen lds")
    a("s_add_u32 s93, s93, 1024")
    a(f"s_cmp_eq_u32 s93, {22*1024}")
    a("s_cselect_b32 s93, 0, s93")
    vq.issue(("h", k), 2)
def hreads(k):
    return [f"ds_read_b128 {vr(HB+(k&1)*8+rt*4,4)}, v{T+5} offset:{(k % NSL)*2048 + rt*1024}" for rt in range(2)]
HW1 = int(os.environ.get("HW1", "0"))
for k in range(NSL):
    hdma(k)
    if k == HW1-1: vq.wait(("h", k))
GV = VX
a(f"v_and_b32 v{T+2}, 31, v{L}")
a(f"v_lshlrev_b32 v{T+2}, 2, v{T+2}")
a(f"s_lshl_b32 s72, s{S_RT}, 8")
a(f"s_add_u32 s72, s72, {GOFF}")
a(f"buffer_load_dword v{GV}, v{T+2}, {S4(WS_)}, s72 offen")
a(f"buffer_load_dword v{GV+1}, v{T+2}, {S4(WS_)}, s72 offen offset:128")
vq.issue("g", 2)
vq.wait(("h", 0))
for l in hreads(0): a(l)
PUBC_AT = int(os.environ.get("PUBC_AT", "0"))
for k in range(22):
    if k < 21: vq.wait(("h", k+1), ("w", k))
    else: vq.wait(("w", k))
    a("s_waitcnt lgkmcnt(0)")
    if k in (0, 1, 4, 8, 12, 16, 20): tick(f"D{k}")
    f = W2R + (k % NPRE)*8
    m = []
    for nt in range(2):
        for rt in range(2):
            acc = vr(DACC+(nt*2+rt)*16, 16)
            m.append(f"v_mfma_f32_32x32x16_bf16 {acc}, {vr(f+4*nt,4)}, {vr(HB+(k&1)*8+4*rt,4)}, {'0' if k == 0 else acc}")
    for l in inter(m, hreads(k+1) if k < 21 else []): a(l)
    if k + NSL < 22: hdma(k + NSL)
    if k + NPRE < 22: w2load(k + NPRE)
a("s_waitcnt vmcnt(0)")
for i in range(2):
    a(f"v_sub_f32 v{GV+i}, 1.0, v{GV+i}")
    a(f"v_cvt_pk_bf16_f32 v{GV+i}, v{GV+i}, v{GV+i}")
    a(f"v_lshlrev_b32 v{GV+i}, 16, v{GV+i}")
a("s_mov_b32 s90, s89")
a("s_branch .Lreduce")

a.label(".Lcompute")
if PRIO == 2: a("s_setprio 3")
XR = 0; ACC = 128; WFR = 192; XO = 216; XA = 228; XA2 = 232; WA = 240; TMP = 248; WFD = 236
a(f"v_mov_b32 v{L}, v0")
a("s_lshr_b32 s78, s3, 1")
a("s_and_b32 s79, s3, 1")
a(f"v_and_b32 v{TMP}, 31, v{L}")
a(f"v_lshrrev_b32 v{TMP+1}, 5, v{L}")
a(f"v_bfe_u32 v{TMP+2}, v{L}, 1, 3")
a("s_lshl_b32 s72, s3, 12")
a("s_xor_b32 s73, s72, 4096")
for sp in range(4):
    a(f"v_add_u32 v{TMP+3}, {2*sp}, v{TMP+1}")
    a(f"v_xor_b32 v{TMP+3}, v{TMP+3}, v{TMP+2}")
    a(f"v_lshlrev_b32 v{TMP+3}, 4, v{TMP+3}")
    a(f"v_lshl_add_u32 v{TMP+3}, v{TMP}, 7, v{TMP+3}")
    a(f"v_add_u32 v{XA+sp}, s72, v{TMP+3}")
    a(f"v_add_u32 v{XA2+sp}, s73, v{TMP+3}")
a(f"v_lshlrev_b32 v{WA}, 9, v{TMP+1}")
a(f"v_bfe_u32 v{TMP+3}, v{L}, 2, 2")
a(f"v_lshl_add_u32 v{WA}, v{TMP+3}, 6, v{WA}")
a(f"v_bfe_u32 v{TMP+3}, v{L}, 4, 1")
a(f"v_lshl_add_u32 v{WA}, v{TMP+3}, 5, v{WA}")
a(f"v_and_b32 v{TMP+3}, 3, v{L}")
a(f"v_lshl_add_u32 v{WA}, v{TMP+3}, 3, v{WA}")
a(f"v_add_u32 v{WA+1}, 0x10000, v{WA}")
a(f"v_add_u32 v{WA+2}, 0x20000, v{WA}")
a("s_lshl_b32 s72, s79, 13")
a(f"v_add_u32 v{WA+3}, s72, v{WA+1}")
a(f"v_lshlrev_b32 v{LN16}, 4, v{L}")
a("s_waitcnt lgkmcnt(0)")
srd(a, WS_, 34, WSBYTES)
srd(a, OUT_, 30, 2048*1024)
srd(a, DBG_, 32, 256)
srd(a, GT_, 28, 1024)
a("s_or_b32 s72, s2, s3")
a("s_cmp_lg_u32 s72, 0")
a("s_cbranch_scc1 .Lnononce")
a("s_memrealtime s[72:73]")
a("s_waitcnt lgkmcnt(0)")
a("s_or_b32 s72, s72, 1")
a(f"v_mov_b32 v{TMP}, 0")
a(f"v_mov_b32 v{TMP+1}, s72")
a("s_mov_b64 exec, 1")
a(f"buffer_store_dword v{TMP+1}, v{TMP}, {S4(DBG_)}, 0 offen{SC}")
a("s_mov_b64 exec, -1")
a("s_mov_b32 s72, 0")
a("s_mov_b32 s73, 0")
a.label(".Lnononce")
if DIAG:
    a("s_cmp_lg_u32 s3, 2")
    a("s_cbranch_scc1 .Lnodiag")
    a("s_memrealtime s[72:73]")
    a("s_waitcnt lgkmcnt(0)")
    a("s_not_b32 s72, s72")
    a(f"v_mov_b32 v{TMP}, 8")
    a(f"v_mov_b32 v{TMP+1}, s72")
    a("s_mov_b64 exec, 1")
    a(f"buffer_atomic_umax v{TMP+1}, v{TMP}, {S4(DBG_)}, 0 offen{SC}")
    a("s_mov_b64 exec, -1")
    a("s_mov_b32 s72, 0")
    a("s_mov_b32 s73, 0")
    a.label(".Lnodiag")
if CPF:
    a("s_cmp_lg_u32 s3, 1")
    a("s_cbranch_scc1 .Lnocpf")
    a(f"s_cmp_ge_u32 s{S_IDX}, CODE_KB")
    a("s_cbranch_scc1 .Lnocpf")
    a("s_getpc_b64 s[72:73]")
    a.label(".Lpcref")
    a(f"s_sub_u32 s72, s72, .Lpcref-{KNAME}")
    a("s_subb_u32 s73, s73, 0")
    a(f"s_lshl_b32 s74, s{S_IDX}, 10")
    a(f"v_add_u32 v{TMP}, s74, v{LN16}")
    a(f"global_load_dwordx4 v[236:239], v{TMP}, s[72:73]")
    a.label(".Lnocpf")

if PFW1:
    srd(a, W1_, 24, 512*2752)
    a(f"s_lshl_b32 s72, s{S_ROT}, 6")
    a(f"v_add_u32 v3, s72, v{L}")
    a("v_mul_u32_u24 v3, 2752, v3")
    a(f"s_mul_i32 s72, s{S_J}, 192")
    a("s_lshl_b32 s73, s14, 6")
    a("s_add_u32 s72, s72, s73")
    a(f"s_cmp_lt_u32 s{S_J}, 15")
    a("s_cselect_b32 s72, s72, 0x40000000")
    a(f"buffer_load_dword v{WFD+2}, v3, {S4(W1_)}, s72 offen")

def wread(dst, addr):
    return f"ds_read_b64_tr_b16 {vr(dst,2)}, v{WA + (addr >> 16)} offset:{addr & 0xffff}"
def reads_A(t):
    p, sp = t >> 2, t & 3
    slot = p % 4
    r = [f"ds_read_b128 {vr(XR+4*t,4)}, v{XA+sp} offset:{XS(slot)}",
         f"ds_read_b128 {vr(XO+4*(t % 3),4)}, v{XA2+sp} offset:{XS(slot)}"]
    for ct in range(2):
        for rd in range(2):
            r.append(f"ds_read_b64_tr_b16 {vr(WFR + (t % 3)*8 + ct*4 + rd*2,2)}, v{WA+3} offset:{slot*16384 + ct*4096 + (4*sp+rd)*256}")
    return r
def reads_B(t):
    p, sp = t >> 2, t & 3
    return [wread(WFR + (t % 3)*8 + b*4 + rd*2, BH[p] + b*4096 + (4*sp+rd)*256) for b in range(2) for rd in range(2)]
def mfA(t, kd):
    m = []
    for ct in range(2):
        for po in range(2):
            acc = vr(ACC+(ct*2+po)*16, 16)
            x = vr(XR+4*t, 4) if po == 0 else vr(XO+4*(t % 3), 4)
            w = vr(WFR+(t % 3)*8+ct*4, 4)
            c = "0" if t == 0 else acc
            m.append(f"v_mfma_f32_32x32x16_bf16 {acc}, {w}, {x}, {c}" if kd == 'T' else f"v_mfma_f32_32x32x16_bf16 {acc}, {x}, {w}, {c}")
    return m
def mfB(t):
    return [f"v_mfma_f32_32x32x16_bf16 {vr(ACC+16*b,16)}, {vr(WFR+(t % 3)*8+b*4,4)}, {vr(XR+4*t,4)}, {'0' if t == 0 else vr(ACC+16*b,16)}" for b in range(2)]
lq = Q("lgkmcnt", 15)
a(f"s_lshl_b32 s76, s{S_G}, 1")
a("s_add_u32 s76, s76, s79")
a("s_lshl_b32 s76, s76, 5")
a(f"s_lshl_b32 s72, s{S_RB}, 1")
a("s_add_u32 s72, s72, s78")
a("s_add_u32 s76, s76, s72")
a("s_lshl_b32 s76, s76, 2")
a("s_add_u32 s76, s76, s97")
a("s_lshl_b32 s76, s76, 2")
a(f"s_add_u32 s76, s76, {F_A}")
def stageA(kd, tk):
    a("s_barrier")
    if tk: stamp(1)
    for tt in (0, 1):
        for l in reads_A(tt): a(l)
        lq.issue(tt, 6)
    for t in range(32):
        lq.wait(t)
        sp = t & 3
        nxt = []; tags = []
        if sp < 2:
            nxt = reads_A(t+2); tags = [(t+2, 6)]
        elif sp == 3 and t < 31:
            if tk: tick(f"A{t>>2}pre")
            a("s_barrier")
            if tk: tick(f"A{t>>2}post")
            nxt = reads_A(t+1) + reads_A(t+2); tags = [(t+1, 6), (t+2, 6)]
        for l in inter(mfA(t, kd), nxt): a(l)
        for tg, n in tags: lq.issue(tg, n)
    assert not lq.q
    stamp(2)
a("s_cmp_eq_u32 s97, 2")
a("s_cbranch_scc1 .LstageAV")
stageA("T", True)
a("s_cmp_eq_u32 s97, 3")
a("s_cbranch_scc1 .LepiH")
a(f"s_lshl_b32 s72, s{S_G}, 9")
a("s_lshl_b32 s73, s79, 8")
a("s_add_u32 s72, s72, s73")
a("s_add_u32 s72, s72, s93")
a("s_lshl_b32 s72, s72, 10")
a("s_lshl_b32 s73, s97, 21")
a("s_add_u32 s72, s72, s73")
a("s_xor_b32 s74, s72, 1024")
a(f"s_mov_b32 s73, {CSCALE}")
a("s_cmp_eq_u32 s97, 0")
a("s_cselect_b32 s73, s73, 1.0")
a(f"v_add_u32 v{TMP}, 0x10000, v{LN16}")
a("s_nop 2")
for ct in range(2):
    for po in range(2):
        r = ACC + (ct*2+po)*16
        for i in range(16): a(f"v_mul_f32 v{r+i}, s73, v{r+i}")
        for i in range(8): a(f"v_cvt_pk_bf16_f32 v{r+i}, v{r+2*i}, v{r+2*i+1}")
        so = "s72" if po == 0 else "s74"
        a(f"buffer_store_dwordx4 {vr(r,4)}, v{LN16}, {S4(WS_)}, {so} offen{SC}")
        a(f"buffer_store_dwordx4 {vr(r+4,4)}, v{TMP}, {S4(WS_)}, {so} offen{SC}")
    if ct == 0:
        a("s_add_u32 s72, s72, 0x20000")
        a("s_add_u32 s74, s74, 0x20000")
a("s_branch .LstageB")
a.label(".LepiH")
a("s_lshl_b32 s73, s79, 1")
a("s_add_u32 s73, s73, s95")
a("s_lshl_b32 s73, s73, 1")
a("s_mul_i32 s72, s93, 118")
a("s_add_u32 s72, s72, s73")
a("s_lshl_b32 s72, s72, 10")
a(f"s_add_u32 s72, s72, {AF}")
a("s_xor_b32 s74, s93, 1")
a("s_mul_i32 s74, s74, 118")
a("s_add_u32 s74, s74, s73")
a("s_lshl_b32 s74, s74, 10")
a(f"s_add_u32 s74, s74, {AF}")
a("s_nop 2")
for ct in range(2):
    for po in range(2):
        r = ACC + (ct*2+po)*16
        for i in range(8): a(f"v_cvt_pk_bf16_f32 v{r+i}, v{r+2*i}, v{r+2*i+1}")
        for i in range(8): a(f"v_pk_max_i16 v{r+i}, v{r+i}, 0")
        so = "s72" if po == 0 else "s74"
        a(f"buffer_store_dwordx4 {vr(r,4)}, v{LN16}, {S4(WS_)}, {so} offen offset:{ct*2048}{SC}")
        a(f"buffer_store_dwordx4 {vr(r+4,4)}, v{LN16}, {S4(WS_)}, {so} offen offset:{ct*2048+1024}{SC}")
a("s_branch .LstageB")
a.label(".LstageAV")
stageA("N", False)
a(f"s_lshl_b32 s72, s{S_G}, 9")
a("s_lshl_b32 s73, s79, 8")
a("s_add_u32 s72, s72, s73")
a("s_add_u32 s72, s72, s93")
a("s_lshl_b32 s72, s72, 10")
a(f"s_add_u32 s72, s72, {VF}")
a("s_xor_b32 s74, s72, 1024")
a(f"v_and_b32 v{TMP+2}, 15, v{L}")
a(f"v_lshrrev_b32 v{TMP+3}, 5, v{L}")
a(f"v_lshl_add_u32 v{TMP+2}, v{TMP+3}, 4, v{TMP+2}")
a(f"v_lshlrev_b32 v{TMP+2}, 4, v{TMP+2}")
a(f"v_bfe_u32 v{TMP+3}, v{L}, 4, 1")
a(f"v_lshl_add_u32 v{TMP+2}, v{TMP+3}, 16, v{TMP+2}")
for ct in range(2):
    for po in range(2):
        r = ACC + (ct*2+po)*16
        for i in range(8): a(f"v_cvt_pk_bf16_f32 v{r+i}, v{r+2*i}, v{r+2*i+1}")
        so = "s72" if po == 0 else "s74"
        a(f"buffer_store_dwordx4 {vr(r,4)}, v{TMP+2}, {S4(WS_)}, {so} offen{SC}")
        a(f"buffer_store_dwordx4 {vr(r+4,4)}, v{TMP+2}, {S4(WS_)}, {so} offen offset:512{SC}")
    if ct == 0:
        a("s_add_u32 s72, s72, 0x20000")
        a("s_add_u32 s74, s74, 0x20000")
a.label(".LstageB")
a(f"s_cmp_eq_u32 s{S_J}, 13")
a("s_cbranch_scc1 .Lgate")
tick("epiA")
a("s_barrier")
tick("B01")
a(f"v_mov_b32 v{TMP+2}, {NONCE_LDS}")
a(f"ds_read_b32 v{TMP+3}, v{TMP+2}")
lq.issue("n", 1)
for tt in (0, 1):
    for l in reads_B(tt): a(l)
    lq.issue(tt, 4)
for t in range(32):
    lq.wait(t)
    if t == 2: a(f"v_readfirstlane_b32 s{S_NONCE}, v{TMP+3}")
    if t == PUBA_T:
        a("s_waitcnt vmcnt(0)")
        tick("pubA")
        wpublish(76, TMP, dual=True)
    if t == 14:
        tick("B23pre")
        a("s_barrier")
        tick("B23post")
    nxt = reads_B(t+2) if t < 30 else []
    for l in inter(mfB(t), nxt): a(l)
    if t < 30: lq.issue(t+2, 4)
stamp(3)
a("s_mul_i32 s72, s93, 118")
a("s_lshl_b32 s73, s94, 1")
a("s_add_u32 s72, s72, s73")
a("s_lshl_b32 s72, s72, 10")
a(f"s_add_u32 s72, s72, {AF}")
a("s_nop 6")
for b in range(2):
    r = ACC + 16*b
    for i in range(8): a(f"v_cvt_pk_bf16_f32 v{r+i}, v{r+2*i}, v{r+2*i+1}")
    for i in range(8): a(f"v_pk_max_i16 v{r+i}, v{r+i}, 0")
    a(f"s_add_u32 s73, s94, {b}")
    a("s_cmp_lt_u32 s73, 43")
    a("s_cselect_b32 s73, s72, 0x40000000")
    a(f"buffer_store_dwordx4 {vr(r,4)}, v{LN16}, {S4(WS_)}, s73 offen offset:{b*2048}{SC}")
    a(f"buffer_store_dwordx4 {vr(r+4,4)}, v{LN16}, {S4(WS_)}, s73 offen offset:{b*2048+1024}{SC}")
a("s_branch .Lattn")
a.label(".Lgate")
a(f"s_lshl_b32 s75, s3, 10")
a(f"s_add_u32 s75, s75, {GATE_LDS}")
a("s_barrier")
a("s_mov_b32 m0, s75")
a("s_nop 0")
a(f"buffer_load_dwordx4 v{LN16}, {S4(GT_)}, 0 offen lds")
a(f"v_mov_b32 v{TMP+2}, {NONCE_LDS}")
a(f"ds_read_b32 v{TMP+3}, v{TMP+2}")
a("s_waitcnt vmcnt(0) lgkmcnt(0)")
a(f"v_readfirstlane_b32 s{S_NONCE}, v{TMP+3}")
a("s_nop 1")
wpublish(76, TMP, dual=True)
a("s_barrier")
a(f"v_lshrrev_b32 v{TMP}, 5, v{L}")
a(f"v_lshlrev_b32 v{TMP}, 4, v{TMP}")
a(f"v_add_u32 v{TMP}, s75, v{TMP}")
a(f"s_mov_b32 s73, s{S_ROT}")
for p in range(8):
    a("s_lshl_b32 s74, s73, 7")
    a(f"v_add_u32 v{TMP+1}, s74, v{TMP}")
    gb = ACC + 16 + (p & 1)*16
    for sp in range(4):
        a(f"ds_read_b128 {vr(gb+4*sp,4)}, v{TMP+1} offset:{sp*32}")
    a("s_add_u32 s73, s73, 1")
    a("s_and_b32 s73, s73, 7")
    a("s_waitcnt lgkmcnt(0)")
    for sp in range(4):
        t = 4*p+sp
        a(f"v_mfma_f32_32x32x16_bf16 {vr(ACC,16)}, {vr(gb+4*sp,4)}, {vr(XR+4*t,4)}, {'0' if t == 0 else vr(ACC,16)}")
a("s_nop 15")
z = ACC
a(f"v_cvt_pk_bf16_f32 v{z}, v{z}, v{z}")
a(f"v_lshlrev_b32 v{z}, 16, v{z}")
a(f"v_mul_f32 v{z}, 0xbfb8aa3b, v{z}")
a(f"v_exp_f32 v{z}, v{z}")
a("s_nop 0")
a(f"v_add_f32 v{z}, 1.0, v{z}")
a(f"v_rcp_f32 v{z}, v{z}")
a("s_nop 0")
a(f"v_cvt_pk_bf16_f32 v{z}, v{z}, v{z}")
a(f"v_lshlrev_b32 v{z}, 16, v{z}")
a("s_lshl_b32 s72, s93, 7")
a(f"s_add_u32 s72, s72, {GOFF}")
a(f"v_lshlrev_b32 v{TMP}, 2, v{L}")
a("s_mov_b32 exec_hi, 0")
a(f"buffer_store_dword v{z}, v{TMP}, {S4(WS_)}, s72 offen{SC}")
a("s_mov_b64 exec, -1")

a.label(".Lattn")
if PRIO in (1, 3): a("s_setprio 2")
KK = 0; QQ = 40; VV = 48; SS = 64; CD = 96; CF = 112; NM = 176; PP = 208; OO = 128; MM = 160
VAD = 240; KAD = 241; T0 = 242
a("s_lshl_b32 s72, s3, 11")
a(f"s_add_u32 s72, s72, {STG}")
a(f"v_add_u32 v{KAD}, s72, v{LN16}")
a(f"v_and_b32 v2, 15, v{L}")
a(f"v_lshrrev_b32 v3, 5, v{L}")
a("v_lshl_add_u32 v2, v3, 4, v2")
a("v_lshlrev_b32 v2, 4, v2")
a(f"v_add_u32 v{VAD}, s72, v2")
for i in range(16): a(f"v_mov_b32 v{VV+i}, 0x3f803f80")
a(f"v_and_b32 v2, 31, v{L}")
a("v_lshlrev_b32 v3, 2, v3")
a(f"v_sub_u32 v{T0}, v2, v3")
a(f"v_mov_b32 v{T0+1}, {NINF}")
for r in range(16):
    br = (r & 3) + 8*(r >> 2)
    a(f"v_cmp_le_i32 vcc, {br}, v{T0}")
    a("s_nop 1")
    a(f"v_cndmask_b32 v{CD+r}, v{T0+1}, 0, vcc")
    a(f"v_cndmask_b32 v{CF+r}, 0, v{T0+1}, vcc")
for i in range(4): a(f"v_mov_b32 v{MM+i}, {NINF}")
a("s_lshl_b32 s15, s3, 1")
a("s_sub_u32 s15, 8, s15")
a(f"s_cmp_eq_u32 s{S_QB}, 0")
a("s_cselect_b32 s15, s15, 0")
a(f"s_lshl_b32 s76, s{S_RB}, 2")
a("s_add_u32 s76, s76, s3")
a("s_lshl_b32 s76, s76, 4")
a(f"s_add_u32 s76, s76, s{S_J}")
a("s_lshl_b32 s76, s76, 2")
a(f"s_add_u32 s76, s76, {F_B}")
lds_add(4, T0)
a("s_mov_b64 exec, -1")
tick("cArr")
a("s_mov_b32 s77, 0")
a(f"s_mov_b32 s74, {SPIN*16}")
a.label(".Lstg_cw")
a(f"v_mov_b32 v{T0}, {REL_LDS + 12}")
a(f"ds_read_b32 v{T0+1}, v{T0}")
a("s_waitcnt lgkmcnt(0)")
a(f"v_readfirstlane_b32 s72, v{T0+1}")
a("s_cmp_eq_u32 s72, 4")
a("s_cbranch_scc1 .Lstg_cok")
a("s_cmp_lg_u32 s77, 0")
a("s_cbranch_scc1 .Lstg_np")
a("s_getreg_b32 s72, hwreg(HW_REG_IB_STS)")
a("s_and_b32 s72, s72, 0xc0000f")
a("s_cmp_lg_u32 s72, 0")
a("s_cbranch_scc1 .Lstg_np")
a("s_waitcnt vmcnt(0)")
wpublish(76, T0)
stamp(5)
a("s_mov_b32 s77, 1")
a.label(".Lstg_np")
a("s_sleep 1")
a("s_sub_u32 s74, s74, 1")
a("s_cmp_lg_u32 s74, 0")
a("s_cbranch_scc1 .Lstg_cw")
a.label(".Lstg_cok")
stamp(4)
a(f"ds_read_b128 {vr(QQ+4,4)}, v{KAD} offset:{32768+1024}")
a(f"ds_read_b128 {vr(KK+36,4)}, v{KAD} offset:{9*1024}")
a(f"ds_read_b128 {vr(QQ,4)}, v{KAD} offset:32768")
for v in range(8, -1, -1):
    a(f"ds_read_b128 {vr(KK+4*v,4)}, v{KAD} offset:{v*1024}")
units = [(1, 9)]
for v in range(8, 0, -1): units += [(0, v), (1, v)]
units += [(0, 0)]
def edge(task, v):
    if (task, v) in ((1, 9), (0, 8)): return CD
    if (task, v) in ((1, 1), (0, 0)): return CF
    return None
def smf(task, v, c):
    return f"v_mfma_f32_32x32x16_bf16 {vr(SS+16*task,16)}, {vr(KK+4*v,4)}, {vr(QQ+4*task,4)}, {c}"
def vread(v):
    b = VV + 8*(v & 1)
    a("s_mov_b32 exec_lo, 0xffff")
    a("s_mov_b32 exec_hi, 0xffff")
    a(f"ds_read_b128 {vr(b,4)}, v{VAD} offset:{16384+v*1024}")
    a(f"ds_read_b128 {vr(b+4,4)}, v{VAD} offset:{16384+v*1024+512}")
    a("s_mov_b64 exec, -1")
a("s_waitcnt lgkmcnt(8)")
def c1(u):
    e = edge(*u); return vr(e, 16) if e is not None else "0"
a(smf(*units[0], c1(units[0])))
a("s_waitcnt lgkmcnt(0)")
a("s_nop 7")
for i, (task, v) in enumerate(units):
    if i + 1 < len(units): a(smf(*units[i+1], c1(units[i+1])))
    a("s_nop 2")
    b = SS + 16*task
    for k in range(8):
        a(f"v_max3_f32 v{MM+2*task+(k&1)}, v{b+2*k}, v{b+2*k+1}, v{MM+2*task+(k&1)}")
    if task == 1 and v in (8, 6, 4, 2):
        a(f"s_cmp_eq_u32 s15, {v}")
        a("s_cbranch_scc1 .Lp1done")
a.label(".Lp1done")
vread(9)
vread(8)
for task in range(2):
    m = MM + 2*task
    a(f"v_max_f32 v{m}, v{m}, v{m+1}")
    a(f"v_mov_b32 v{m+1}, v{m}")
a("s_nop 1")
for task in range(2):
    m = MM + 2*task
    a(f"v_permlane32_swap_b32 v{m}, v{m+1}")
a("s_nop 1")
for task in range(2):
    m = MM + 2*task
    a(f"v_max_f32 v{m}, v{m}, v{m+1}")
for task in (1, 0):
    for i in range(16): a(f"v_sub_f32 v{NM+16*task+i}, 0, v{MM+2*task}")
tick("p1end")
a("s_cmp_lg_u32 s77, 0")
a("s_cbranch_scc1 .Lfbdone")
a("s_waitcnt vmcnt(0)")
wpublish(76, T0)
stamp(5)
a.label(".Lfbdone")
a("s_nop 1")
a(smf(*units[0], vr(NM+16, 16)))
a("s_nop 11")
first = {0: True, 1: True}
def pv(task, v):
    vb = VV + 8*(v & 1); p = PP + 8*task; o = vr(OO+16*task, 16)
    r = [f"v_mfma_f32_32x32x16_bf16 {o}, {vr(vb,4)}, {vr(p,4)}, {'0' if first[task] else o}",
         f"v_mfma_f32_32x32x16_bf16 {o}, {vr(vb+4,4)}, {vr(p+4,4)}, {o}"]
    return r
exits = []
pend = None
for i, (task, v) in enumerate(units):
    if i + 1 < len(units):
        nt_, nv = units[i+1]
        a(smf(nt_, nv, vr(NM+16*nt_, 16)))
    b = SS + 16*task; p = PP + 8*task
    e = edge(task, v)
    if e is not None:
        for k in range(16): a(f"v_add_f32 v{b+k}, v{b+k}, v{e+k}")
    for k in range(16):
        a(f"v_exp_f32 v{b+k}, v{b+k}")
        if pend is not None and k == 3:
            pt, pvv = pend
            if (pt, pvv) == (1, 9) or pt == 0: a("s_waitcnt lgkmcnt(0)")
            m = pv(pt, pvv); a(m[0])
        if pend is not None and k == 8:
            a(m[1]); first[pend[0]] = False
            pt, pvv = pend
            if pt == 1 and pvv >= 2: vread(pvv-2)
    a("s_nop 0")
    for k in range(8): a(f"v_cvt_pk_bf16_f32 v{p+k}, v{b+2*k}, v{b+2*k+1}")
    pend = (task, v)
    if task == 1 and v in (8, 6, 4, 2):
        a(f"s_cmp_eq_u32 s15, {v}")
        a(f"s_cbranch_scc1 .Lp2x{v}")
        exits.append((v, pv(task, v)))
a("s_waitcnt lgkmcnt(0)")
for l in pv(*pend): a(l)
a("s_branch .Lp2done")
for v, m in exits:
    a.label(f".Lp2x{v}")
    a("s_nop 0")
    for l in m: a(l)
    a("s_branch .Lp2done")
a.label(".Lp2done")
a(f"s_lshl_b32 s72, s{S_QB}, 3")
a("s_lshl_b32 s73, s3, 1")
a("s_add_u32 s72, s72, s73")
a("s_mul_i32 s72, s72, 118")
a(f"s_add_u32 s72, s72, s{S_HEAD}")
a("s_lshl_b32 s72, s72, 10")
a(f"s_add_u32 s72, s72, {AF + 86*1024}")
a(f"s_add_u32 s73, s72, {118*1024}")
a("s_waitcnt lgkmcnt(0)")
a(f"v_mov_b32 v{T0}, {CNT_LDS}")
a(f"v_mov_b32 v{T0+1}, 1")
a("s_mov_b64 exec, 1")
a(f"ds_add_u32 v{T0}, v{T0+1}")
a("s_mov_b64 exec, -1")
a("s_nop 7")
for task in (1, 0):
    o = OO + 16*task
    a(f"v_rcp_f32 v{MM}, v{o+8}")
    a("s_nop 0")
    for i in range(8): a(f"v_mul_f32 v{o+i}, v{o+i}, v{MM}")
    for i in range(4): a(f"v_cvt_pk_bf16_f32 v{o+i}, v{o+2*i}, v{o+2*i+1}")
    a(f"buffer_store_dwordx4 {vr(o,4)}, v{LN16}, {S4(WS_)}, s{72+task} offen{SC}")
stamp(6)
EW = 0; EH = 64
a(f"s_mul_i32 s72, s{S_CT}, {2*118}")
a("s_lshl_b32 s73, s3, 3")
a("s_add_u32 s72, s72, s73")
a("s_lshl_b32 s72, s72, 10")
a(f"s_add_u32 s72, s72, {WF + 86*1024}")
a(f"v_add_u32 v{T}, s72, v{LN16}")
a(f"v_add_u32 v{T+1}, {118*1024}, v{T}")
a(f"s_mul_i32 s72, s{S_RT}, {2*118*1024}")
a(f"s_add_u32 s72, s72, {AF}")
for rt in range(2):
    a(f"s_add_u32 s{76+4*rt}, s34, s72")
    a(f"s_addc_u32 s{77+4*rt}, s35, 0")
    a(f"s_mov_b32 s{78+4*rt}, {118*1024}")
    a(f"s_mov_b32 s{79+4*rt}, 0x00020000")
    a(f"s_add_u32 s72, s72, {118*1024}")
a(f"s_lshl_b32 s91, s{S_QB}, 2")
a("s_add_u32 s91, s91, s3")
a("s_lshl_b32 s91, s91, 5")
a(f"s_add_u32 s91, s91, s{S_HEAD}")
a("s_lshl_b32 s91, s91, 2")
a(f"s_add_u32 s91, s91, {F_C}")
a(f"v_mov_b32 v{T+2}, 0")
a(f"v_mov_b32 v{T+3}, s{S_NONCE}")
a("s_waitcnt vmcnt(0)")
a("s_mov_b64 exec, 1")
a(f"buffer_store_dword v{T+3}, v{T+2}, {S4(WS_)}, s91 offen{SC}")
a("s_mov_b64 exec, -1")
tick("pubC")
a(f"s_lshl_b32 s91, s{S_CT}, 7")
a("s_lshl_b32 s72, s3, 3")
a("s_add_u32 s91, s91, s72")
a("s_lshl_b32 s91, s91, 2")
a(f"s_add_u32 s91, s91, {F_W + 86*4}")
a("s_mov_b32 s84, 0xff")
a("s_mov_b32 s85, 0")
a(f"v_lshlrev_b32 v{T+2}, 2, v{L}")
poll_flags(91, 84, T+2, "fwe")
for k in range(8):
    if k == 4:
        a(f"v_add_u32 v{T}, 4096, v{T}")
        a(f"v_add_u32 v{T+1}, 4096, v{T+1}")
    a(f"buffer_load_dwordx4 {vr(EW+8*k,4)}, v{T}, {S4(WS_)}, 0 offen offset:{(k%4)*1024}")
    a(f"buffer_load_dwordx4 {vr(EW+8*k+4,4)}, v{T+1}, {S4(WS_)}, 0 offen offset:{(k%4)*1024}")
a(f"s_lshl_b32 s91, s{S_RT}, 7")
a(f"s_add_u32 s91, s91, {F_B}")
a(f"s_lshl_b32 s92, s{S_RT}, 7")
a(f"s_add_u32 s92, s92, {F_C}")
a("s_mov_b32 s84, -1")
a("s_mov_b32 s85, 0")
a(f"v_lshlrev_b32 v{T+2}, 2, v{L}")
a("s_cmp_lg_u32 s3, 0")
a("s_cbranch_scc1 .Lfc_wait")
a("s_mov_b32 exec_hi, 0")
a(f"s_mov_b32 s74, {SPIN}")
a.label(".Lfc_poll")
a(f"buffer_load_dword v{T+3}, v{T+2}, {S4(WS_)}, s92 offen{SC}")
a(f"buffer_load_dword v{T+4}, v{T+2}, {S4(WS_)}, s91 offen{SC}")
a("s_waitcnt vmcnt(0)")
a(f"v_cmp_ne_u32 vcc, s{S_NONCE}, v{T+3}")
a("s_and_b64 s[72:73], vcc, s[84:85]")
a(f"v_cmp_ne_u32 vcc, s{S_NONCE}, v{T+4}")
a("s_and_b32 s73, vcc_lo, 0x20002000")
a("s_or_b32 s72, s72, s73")
a("s_cbranch_scc0 .Lfc_ok")
a(f"s_sleep {PSLEEP}")
a("s_sub_u32 s74, s74, 1")
a("s_cmp_lg_u32 s74, 0")
a("s_cbranch_scc1 .Lfc_poll")
a.label(".Lfc_ok")
a("s_mov_b64 exec, -1")
lds_release(2, T+3)
a("s_branch .Lfc_go")
a.label(".Lfc_wait")
lds_wait_rel(2, T+3, "fc")
a.label(".Lfc_go")
stamp(7)
a("s_lshl_b32 s72, s3, 13")
a(f"s_add_u32 s72, s72, {86*1024}")
a(f"v_add_u32 v{T}, s72, v{LN16}")
for k in range(8):
    if k == 4: a(f"v_add_u32 v{T}, 4096, v{T}")
    a(f"buffer_load_dwordx4 {vr(EH+8*k,4)}, v{T}, s[76:79], 0 offen offset:{(k%4)*1024}")
    a(f"buffer_load_dwordx4 {vr(EH+8*k+4,4)}, v{T}, s[80:83], 0 offen offset:{(k%4)*1024}")
a(f"v_and_b32 v{T+2}, 31, v{L}")
a(f"v_lshlrev_b32 v{T+2}, 2, v{T+2}")
a(f"s_lshl_b32 s72, s{S_RT}, 8")
a(f"s_add_u32 s72, s72, {GOFF}")
a(f"buffer_load_dword v{GV}, v{T+2}, {S4(WS_)}, s72 offen")
a(f"buffer_load_dword v{GV+1}, v{T+2}, {S4(WS_)}, s72 offen offset:128")
for k in range(8):
    a(f"s_waitcnt vmcnt({2*(7-k)+2})")
    for nt in range(2):
        for rt in range(2):
            acc = vr(DACC+(nt*2+rt)*16, 16)
            a(f"v_mfma_f32_32x32x16_bf16 {acc}, {vr(EW+8*k+4*nt,4)}, {vr(EH+8*k+4*rt,4)}, {'0' if k == 0 else acc}")
a("s_waitcnt vmcnt(0)")
a(f"s_lshl_b32 s90, s3, 14")
a(f"s_add_u32 s90, s90, {EAREA}")
a(f"v_mov_b32 v{T}, {CNT_LDS}")
a(f"s_mov_b32 s74, {SPIN}")
a.label(".Lcnt_poll")
a(f"ds_read_b32 v{T+1}, v{T}")
a("s_waitcnt lgkmcnt(0)")
a(f"v_readfirstlane_b32 s72, v{T+1}")
a("s_cmp_eq_u32 s72, 4")
a("s_cbranch_scc1 .Lreduce")
a("s_sub_u32 s74, s74, 1")
a("s_cmp_lg_u32 s74, 0")
a("s_cbranch_scc1 .Lcnt_poll")

a.label(".Lreduce")
stamp(8)
a(f"v_and_b32 v1, 31, v{L}")
a(f"v_lshrrev_b32 v3, 5, v{L}")
a(f"v_and_b32 v6, 15, v{L}")
a("v_lshlrev_b32 v1, 8, v1")
a("v_add_u32 v1, s90, v1")
a("v_xor_b32 v3, v3, v6")
a("s_nop 4")
for nt in range(2):
    for rt in range(2):
        r = DACC + (nt*2+rt)*16
        for i in range(16): a(f"v_mul_f32 v{r+i}, v{r+i}, v{GV+rt}")
for s in range(8):
    a(f"v_xor_b32 v7, {2*s}, v3")
    a(f"v_lshl_add_u32 v{8+s}, v7, 4, v1")
for nt in range(2):
    for rt in range(2):
        for qq in range(4):
            a(f"ds_write_b128 v{8+nt*4+qq}, {vr(DACC+(nt*2+rt)*16+4*qq,4)} offset:{rt*8192}")
a("s_waitcnt lgkmcnt(0)")
a("s_barrier")
stamp(9)
a(f"v_lshrrev_b32 v1, 3, v{L}")
a("s_lshl_b32 s72, s3, 3")
a("v_add_u32 v1, s72, v1")
a(f"v_and_b32 v3, 7, v{L}")
a("v_and_b32 v6, 15, v1")
a("v_lshlrev_b32 v7, 1, v3")
a("v_xor_b32 v7, v7, v6")
a("v_xor_b32 v6, 1, v7")
a("v_lshlrev_b32 v4, 8, v1")
a("v_lshl_add_u32 v7, v7, 4, v4")
a("v_lshl_add_u32 v6, v6, 4, v4")
a(f"v_add_u32 v4, {EAREA}, v7")
a(f"v_add_u32 v5, {EAREA}, v6")
a(f"v_add_u32 v2, {DAREA[2]}, v7")
a(f"v_add_u32 v0, {DAREA[2]}, v6")
for w in range(4):
    a(f"ds_read_b128 {vr(8+w*8,4)}, v4 offset:{w*ESZ}")
    a(f"ds_read_b128 {vr(12+w*8,4)}, v5 offset:{w*ESZ}")
for w in range(4):
    a(f"ds_read_b128 {vr(40+w*8,4)}, v{7 if w < 2 else 2} offset:{(w&1)*16384}")
    a(f"ds_read_b128 {vr(44+w*8,4)}, v{6 if w < 2 else 0} offset:{(w&1)*16384}")
a("s_waitcnt lgkmcnt(0)")
for step in (32, 16, 8):
    for i in range(step):
        a(f"v_add_f32 v{8+i}, v{8+i}, v{8+step+i}")
for i in range(4): a(f"v_cvt_pk_bf16_f32 v{8+i}, v{8+2*i}, v{8+2*i+1}")
a(f"s_lshl_b32 s72, s{S_RT}, 16")
a(f"s_lshl_b32 s73, s{S_CT}, 7")
a("s_add_u32 s72, s72, s73")
a("v_lshlrev_b32 v1, 10, v1")
a("v_lshl_add_u32 v1, v3, 4, v1")
a(f"buffer_store_dwordx4 v[8:11], v1, {S4(OUT_)}, s72 offen")
if DIAG:
    a("s_cmp_lg_u32 s3, 2")
    a("s_cbranch_scc1 .Lend")
    a("s_waitcnt vmcnt(0)")
    a("s_memrealtime s[72:73]")
    a("s_waitcnt lgkmcnt(0)")
    a("v_mov_b32 v1, 12")
    a("v_mov_b32 v2, s72")
    a("s_mov_b64 exec, 1")
    a(f"buffer_atomic_umax v2, v1, {S4(DBG_)}, 0 offen{SC}")
if PROF:
    a("s_waitcnt vmcnt(0)")
    stamp(10)
    a("s_memtime s[98:99]")
    a("s_waitcnt lgkmcnt(0)")
    a("v_writelane_b32 v255, s98, 13")
    a("s_lshl_b32 s72, s2, 3")
    a("s_add_u32 s72, s72, s3")
    a("s_lshl_b32 s72, s72, 8")
    a(f"s_add_u32 s72, s72, {PROFOFF}")
    a(f"v_lshlrev_b32 v1, 2, v{L}")
    a(f"buffer_store_dword v255, v1, {S4(WS_)}, s72 offen")
    json.dump(ticks, open("ticks.json", "w"))
a.label(".Lend")

KN = "gated_mix__sliding_block__dense_activation_relu__prompt_kernel"
hdr = open("gated_mix__sliding_block__dense_activation_relu__prompt.s.ref").read().split("; Override launch")[0]
out = hdr + "; @launch grid=(256,1,1) block=(512,1,1) lds=163840\n"
out += '.amdgcn_target "amdgcn-amd-amdhsa--gfx950"\n'
body = a.text()
import subprocess, re
tmp = out + kernel_wrap(KN, body.replace("CODE_KB", "20"), 256, 100)
open("_t.s", "w").write(tmp)
subprocess.run(["clang", "-x", "assembler", "-target", "amdgcn-amd-amdhsa", "-mcpu=gfx950", "-c", "_t.s", "-o", "_t.o"], check=True)
h = subprocess.run(["llvm-objdump", "-h", "_t.o"], capture_output=True, text=True).stdout
sz = int(re.search(r"\.text\s+([0-9a-f]+)", h).group(1), 16)
print("code bytes", sz)
out += kernel_wrap(KN, body.replace("CODE_KB", str(min(32, sz // 1024))), 256, 100)
open(sys.argv[1], "w").write(out)
```
